```python
import torch

def _softmax(x, axis=-1):
    return torch.softmax(x, dim=axis)
def _gelu(x):
    return torch.nn.functional.gelu(x, approximate="tanh")
def _silu(x):
    return torch.nn.functional.silu(x)
def _sigmoid(x):
    return torch.sigmoid(x)
def _layernorm(x, axis=-1, eps=1e-5):
    m = x.mean(dim=axis, keepdim=True)
    v = x.var(dim=axis, keepdim=True, unbiased=False)
    return (x - m) / torch.sqrt(v + eps)
def _scatter_add(tgt, idx, src, axis=0):
    return tgt.clone().index_add_(axis, idx, src)
def _segment_sum(src, seg, n):
    out = torch.zeros((n,) + src.shape[1:], dtype=src.dtype)
    return out.index_add_(0, seg, src)
def _pad(x, pw):
    flat = tuple(v for pair in reversed(pw) for v in pair)
    return torch.nn.functional.pad(x, flat)

kernel_name = 'sequential_preLN__gqa_block_cached__dense_activation_squared_relu__decode'

def setup_inputs():

    _w = (lambda a: (lambda t: t.to(torch.bfloat16) if t.is_floating_point() else t)(torch.as_tensor(a)))
    def _A_setup():
        B, Sq, D = 8, 1, 448
        Hq, Hkv, Sk, Dh = 16, 8, 4096, 256
        assert Hq % Hkv == 0, (Hq, Hkv)
        return {
            "x": _w((lambda *s: torch.randn(*s, dtype=torch.bfloat16) * 0.05)(B, Sq, D)),
            "k_cache": _w((lambda *s: torch.randn(*s, dtype=torch.bfloat16) * 3.2)(B, Hkv, Sk, Dh)),
            "v_cache": _w((lambda *s: torch.randn(*s, dtype=torch.bfloat16) * 0.4)(B, Hkv, Sk, Dh)),
            "wq": _w((lambda *s: torch.randn(*s, dtype=torch.bfloat16) * 3.2)(D, Hq * Dh) * (D ** -0.5)),
            "wo": _w((lambda *s: torch.randn(*s, dtype=torch.bfloat16) * 0.4)(Hq * Dh, D) * ((Hq * Dh) ** -0.5)),
        }
    _A_in = _A_setup()

    def _B_setup():
        B, S, D, F = 8, 1, 448, 1792
        return {
            "x": _w((lambda *s: torch.randn(*s, dtype=torch.bfloat16) * 0.05)(B, S, D)),
            "w1": _w((lambda *s: torch.randn(*s, dtype=torch.bfloat16) * 0.05)(D, F)),
            "b1": _w((lambda *s: torch.randn(*s, dtype=torch.bfloat16) * 0.8)(F)),
            "w2": _w((lambda *s: torch.randn(*s, dtype=torch.bfloat16) * 0.05)(F, D)),
            "b2": _w((lambda *s: torch.randn(*s, dtype=torch.bfloat16) * 3.2)(D)),
        }
    _B_in = _B_setup()

    return {
        "A_x": _A_in["x"],
        "A_k_cache": _A_in["k_cache"],
        "A_v_cache": _A_in["v_cache"],
        "A_wq": _A_in["wq"],
        "A_wo": _A_in["wo"],
        "B_x": _B_in["x"],
        "B_w1": _B_in["w1"],
        "B_b1": _B_in["b1"],
        "B_w2": _B_in["w2"],
        "B_b2": _B_in["b2"],
    }

def reference(A_x, A_k_cache, A_v_cache, A_wq, A_wo, B_x, B_w1, B_b1, B_w2, B_b2):
    def _A_ref(x, k_cache, v_cache, wq, wo):
        B, Sq, D = x.shape
        Hq, Dh = 16, 256
        Hkv = k_cache.shape[1]
        rep = Hq // Hkv
        q = (lambda x, *d: x.permute(*d))((x @ wq).reshape(B, Sq, Hq, Dh), 0, 2, 1, 3)
        k = (lambda x, n, axis: torch.repeat_interleave(x, n, dim=axis))(k_cache, rep, axis=1)
        v = (lambda x, n, axis: torch.repeat_interleave(x, n, dim=axis))(v_cache, rep, axis=1)
        scores = torch.einsum("bhqd,bhkd->bhqk", q, k) * (Dh ** -0.5)
        p = _softmax(scores, axis=-1)
        o = torch.einsum("bhqk,bhkd->bhqd", p, v)
        return (lambda x, *d: x.permute(*d))(o, 0, 2, 1, 3).reshape(B, Sq, Hq * Dh) @ wo

    def _B_ref(x, w1, b1, w2, b2):
        h = torch.einsum("bsd,df->bsf", x, w1) + b1
        zero = torch.zeros_like(h)
        r = torch.where(h > zero, h, zero)
        h = r * r
        out = torch.einsum("bsf,fd->bsd", h, w2) + b2
        return out

    x = A_x
    h = x + _A_ref(_layernorm(x, axis=-1), A_k_cache, A_v_cache, A_wq, A_wo)
    h2 = h + _B_ref(_layernorm(h, axis=-1), B_w1, B_b1, B_w2, B_b2)
    return h2
```

```python
import sys, struct

KN = "sequential_preLN__gqa_block_cached__dense_activation_squared_relu__decode_kernel"

def f32(x):
    return struct.unpack("<I", struct.pack("<f", x))[0]

TAG = 0x5A17C0DE
LOG2E_16 = 1.4426950408889634 / 16.0

WS_Q = 0x0
WS_OB1 = 0x10000
WS_ML = 0x110000
WS_OB2 = 0x120000
WS_OB3 = 0x160000
WS_ST = 0x300000
WS_SIZE = 0x400000

L_WO = 0
L_S = 131072
L_XN = L_S
L_WQ = L_S + 7168
L_QF = L_S + 21504
L_PART = L_S
L_PML = L_S + 8192
L_ODUP = L_S + 8448
L_RED = L_S + 10496
L_H = L_S + 12544
L_XD = L_S + 13568
L_RED2 = L_S + 15616
L_R2 = L_S + 17664
LDS_SIZE = L_S + 22528

class G:
    def __init__(self):
        self.L = []
        self.nlab = 0
    def __call__(self, s):
        self.L.append("  " + s)
    def lab(self, name):
        self.L.append(name + ":")
    def newlab(self, p="L"):
        self.nlab += 1
        return f"{p}_{self.nlab}"
    def c(self, s):
        self.L.append("  ; " + s)

def vr(a, n=1):
    return f"v{a}" if n == 1 else f"v[{a}:{a+n-1}]"
def sr(a, n=1):
    return f"s{a}" if n == 1 else f"s[{a}:{a+n-1}]"

DPPM = "row_mask:0xf bank_mask:0xf"

def gen(RG0=20, RS=10, stamps=False, kflags="nt", spin=1 << 18):
    A = G()
    hdr = []
    hdr.append(f"; @launch grid=(256,1,1) block=(512,1,1) lds={LDS_SIZE}")
    hdr.append('.amdgcn_target "amdgcn-amd-amdhsa--gfx950"')
    hdr.append(".text")
    hdr.append(f".globl {KN}")
    hdr.append(".p2align 8")
    hdr.append(f".type {KN},@function")
    hdr.append(f"{KN}:")

    S_K, S_V, S_X, S_WQ, S_WO, S_W1, S_B1, S_W2, S_B2, S_OUT, S_DBG, S_WS = [44 + 4 * i for i in range(12)]
    sWG = 2
    sWAVE = 3
    sHKV, sB, sS, sLID, sI = 4, 5, 6, 7, 8
    sT0, sT1, sT2, sT3 = 9, 10, 11, 12
    sTAG, sC = 13, 14
    sCNT = 15
    sEX = 42
    sST = 92

    nstamp = [0]
    def stamp(idx):
        if stamps:
            A(f"s_memrealtime s[{sST+2*idx}:{sST+2*idx+1}]")

    def srd(dst, ptr, size):
        A(f"s_mov_b32 s{dst}, s{ptr}")
        A(f"s_mov_b32 s{dst+1}, s{ptr+1}")
        A(f"s_mov_b32 s{dst+2}, {hex(size)}")
        A(f"s_mov_b32 s{dst+3}, 0x20000")

    A("s_cmp_ge_u32 s2, 256")
    A("s_cbranch_scc1 L_end")
    A("s_load_dwordx16 s[16:31], s[0:1], 0")
    A("s_load_dwordx8 s[32:39], s[0:1], 64")
    A("s_load_dwordx2 s[40:41], s[0:1], 96")
    stamp(0)
    A("v_lshrrev_b32 v1, 6, v0")
    A("v_and_b32 v0, 63, v0")
    A(f"v_readfirstlane_b32 s{sWAVE}, v1")
    A(f"s_and_b32 s{sHKV}, s2, 7")
    A(f"s_lshr_b32 s{sT0}, s2, 3")
    A(f"s_lshr_b32 s{sB}, s{sT0}, 2")
    A(f"s_and_b32 s{sS}, s{sT0}, 3")
    A(f"s_lshl_b32 s{sI}, s{sHKV}, 2")
    A(f"s_add_u32 s{sI}, s{sI}, s{sS}")
    A(f"s_lshl_b32 s{sLID}, s{sB}, 5")
    A(f"s_add_u32 s{sLID}, s{sLID}, s{sI}")
    A(f"s_mov_b32 s{sTAG}, {hex(TAG)}")
    A(f"s_mov_b32 s{sC}, {hex(f32(LOG2E_16))}")
    A("v_and_b32 v2, 15, v0")
    A("v_lshrrev_b32 v3, 4, v0")
    A("v_and_b32 v8, 7, v2")
    A("v_and_b32 v9, 1, v8")
    A("v_mov_b32 v10, 0xffff")
    A("v_lshlrev_b32 v9, 4, v9")
    A("v_lshlrev_b32 v10, v9, v10")
    A("v_lshrrev_b32 v9, 1, v8")
    for k in range(4):
        A(f"v_cmp_eq_u32 vcc, {k}, v9")
        A("s_nop 1")
        A(f"v_cndmask_b32 v{4+k}, 0, v10, vcc")
    A("s_waitcnt lgkmcnt(0)")
    srd(S_K, 18, 0x8000000)
    srd(S_V, 20, 0x8000000)
    srd(S_WS, 40, WS_SIZE)
    A(f"s_cmp_lt_u32 s{sWAVE}, 4")
    A("s_cbranch_scc1 L_helper")

    vOFF = 1
    vMAX, vL, vNMC = 11, 12, 13
    vT = 14
    vQ = 16
    vO = 32
    vA = 40
    vU = 48
    vSC = 56
    vP = 88
    vRING = 96
    sBASE = 16
    sOFF = 17
    A.c("stream wave")
    A(f"s_sub_u32 s{sT0}, s{sWAVE}, 4")
    A(f"s_lshl_b32 s{sT1}, s{sB}, 3")
    A(f"s_add_u32 s{sT1}, s{sT1}, s{sHKV}")
    A(f"s_lshl_b32 s{sT1}, s{sT1}, 21")
    A(f"s_lshl_b32 s{sT2}, s{sS}, 19")
    A(f"s_add_u32 s{sT1}, s{sT1}, s{sT2}")
    A(f"s_lshl_b32 s{sT2}, s{sT0}, 11")
    A(f"s_add_u32 s{sBASE}, s{sT1}, s{sT2}")
    A(f"v_lshlrev_b32 v{vOFF}, 9, v3")
    A(f"v_lshl_add_u32 v{vOFF}, v2, 4, v{vOFF}")

    NG = 64
    issued = [0]
    def issue(j):
        s = S_K if j < NG else S_V
        r = vRING + 8 * (j % RG0)
        off = (j % NG) * 8192
        out = []
        out.append(f"s_add_u32 s{sOFF}, s{sBASE}, {off}")
        out.append(f"buffer_load_dwordx4 {vr(r,4)}, v{vOFF}, {sr(s,4)}, s{sOFF} offen {kflags}")
        out.append(f"buffer_load_dwordx4 {vr(r+4,4)}, v{vOFF}, {sr(s,4)}, s{sOFF} offen offset:256 {kflags}")
        issued[0] = j + 1
        return out
    for j in range(RG0):
        for x in issue(j): A(x)
    for k in range(8): A(f"v_mov_b32 v{vO+k}, 0")
    A(f"v_mov_b32 v{vMAX}, 0xff800000")
    A(f"v_mov_b32 v{vL}, 0")
    A(f"v_lshrrev_b32 v{vT}, 3, v2")
    A(f"v_lshlrev_b32 v{vT}, 9, v{vT}")
    A(f"v_lshl_add_u32 v{vT}, v2, 4, v{vT}")
    A(f"v_xor_b32 v{vT+1}, 512, v{vT}")
    A(f"v_add_u32 v{vT}, {L_QF}, v{vT}")
    A(f"v_add_u32 v{vT+1}, {L_QF}, v{vT+1}")
    A("s_barrier")
    A("s_barrier")
    stamp(1)
    A(f"ds_read_b128 {vr(vQ,4)}, v{vT}")
    A(f"ds_read_b128 {vr(vQ+4,4)}, v{vT} offset:256")
    A(f"ds_read_b128 {vr(vQ+8,4)}, v{vT+1}")
    A(f"ds_read_b128 {vr(vQ+12,4)}, v{vT+1} offset:256")
    A("s_waitcnt lgkmcnt(0)")

    def after_consume(i):
        out = []
        j = i + RS
        if j >= RG0 and j < 2 * NG and j == issued[0]:
            out += issue(j)
        return out

    def merge(X, Y, every=3):
        out = []
        yi = 0
        for k, x in enumerate(X):
            out.append(x)
            if (k + 1) % every == 0 and yi < len(Y):
                out.append(Y[yi]); yi += 1
        while yi < len(Y):
            out.append(Y[yi]); yi += 1
            out.append("s_nop 1")
        return out

    Yprev = []
    for p in range(NG // 2):
        ga, gb = 2 * p, 2 * p + 1
        ub = vU + 4 * (p & 1)
        ua_, wa_, ub_, wb_ = ub, ub + 1, ub + 2, ub + 3
        ra = vRING + 8 * (ga % RG0)
        rb = vRING + 8 * (gb % RG0)
        n_after = 2 * (issued[0] - (gb + 1))
        A(f"s_waitcnt vmcnt({n_after})")
        X = []
        for e in range(8):
            qoffU = vQ + e
            qoffW = vQ + 8 + e
            for (acc, r, q) in ((ua_, ra, qoffU), (wa_, ra, qoffW), (ub_, rb, qoffU), (wb_, rb, qoffW)):
                src2 = "0" if e == 0 else f"v{acc}"
                X.append(f"v_dot2_f32_bf16 v{acc}, v{r+e}, v{q}, {src2}")
        for x in merge(X, Yprev): A(x)
        for x in after_consume(ga): A(x)
        for x in after_consume(gb): A(x)
        Y = []
        Y.append(f"v_add_f32_dpp v{ua_}, v{wa_}, v{ua_} row_ror:8 {DPPM}")
        Y.append(f"v_add_f32_dpp v{ub_}, v{wb_}, v{ub_} row_ror:8 {DPPM}")
        for m in ("quad_perm:[1,0,3,2]", "quad_perm:[2,3,0,1]", "row_half_mirror"):
            Y.append(f"v_add_f32_dpp v{ua_}, v{ua_}, v{ua_} {m} {DPPM}")
            Y.append(f"v_add_f32_dpp v{ub_}, v{ub_}, v{ub_} {m} {DPPM}")
        Y.append(f"v_cvt_pk_bf16_f32 v{vSC+p}, v{ua_}, v{ub_}")
        Y.append(f"v_max3_f32 v{vMAX}, v{ua_}, v{ub_}, v{vMAX}")
        Yprev = Y
    A("s_nop 2")
    for y in Yprev:
        A(y); A("s_nop 1")
    A(f"v_mov_b32 v{vT}, v{vMAX}")
    A("s_nop 1")
    A(f"v_permlane16_swap_b32 v{vMAX}, v{vT}")
    A("s_nop 1")
    A(f"v_max_f32 v{vMAX}, v{vMAX}, v{vT}")
    A(f"v_mov_b32 v{vT}, v{vMAX}")
    A("s_nop 1")
    A(f"v_permlane32_swap_b32 v{vMAX}, v{vT}")
    A("s_nop 1")
    A(f"v_max_f32 v{vMAX}, v{vMAX}, v{vT}")
    A(f"v_cvt_pk_bf16_f32 v{vMAX}, v{vMAX}, v{vMAX}")
    A(f"v_and_b32 v{vMAX}, 0xffff0000, v{vMAX}")
    A(f"v_mul_f32 v{vNMC}, s{sC}, v{vMAX}")
    A(f"v_sub_f32 v{vNMC}, 0, v{vNMC}")
    stamp(2)

    def pbuild(i):
        a = vA + 4 * (i & 1)
        t = vP + (i & 1)
        sc = vSC + (i >> 1)
        out = []
        if i & 1:
            out.append(f"v_and_b32 v{t}, 0xffff0000, v{sc}")
        else:
            out.append(f"v_lshlrev_b32 v{t}, 16, v{sc}")
        out.append(f"v_fma_f32 v{t}, v{t}, s{sC}, v{vNMC}")
        out.append(f"v_exp_f32 v{t}, v{t}")
        out.append("s_nop 0")
        out.append(f"v_add_f32 v{vL}, v{vL}, v{t}")
        out.append(f"v_cvt_pk_bf16_f32 v{t}, v{t}, v{t}")
        for k in range(4):
            out.append(f"v_and_b32 v{a+k}, v{4+k}, v{t}")
        return out
    for x in pbuild(0): A(x)
    for i in range(NG):
        gi = NG + i
        r = vRING + 8 * (gi % RG0)
        a = vA + 4 * (i & 1)
        n_after = 2 * (issued[0] - (gi + 1))
        nxt = pbuild(i + 1) if i + 1 < NG else ["s_nop 1"]
        for x in nxt[:3]: A(x)
        A(f"s_waitcnt vmcnt({n_after})")
        A(f"v_mfma_f32_16x16x32_bf16 {vr(vO,4)}, {vr(a,4)}, {vr(r,4)}, {vr(vO,4)}")
        A(f"v_mfma_f32_16x16x32_bf16 {vr(vO+4,4)}, {vr(a,4)}, {vr(r+4,4)}, {vr(vO+4,4)}")
        for x in after_consume(gi): A(x)
        for x in nxt[3:]: A(x)
    A(f"v_mov_b32 v{vT}, v{vL}")
    A("s_nop 1")
    A(f"v_permlane16_swap_b32 v{vL}, v{vT}")
    A("s_nop 1")
    A(f"v_add_f32 v{vL}, v{vL}, v{vT}")
    A(f"v_mov_b32 v{vT}, v{vL}")
    A("s_nop 1")
    A(f"v_permlane32_swap_b32 v{vL}, v{vT}")
    A("s_nop 1")
    A(f"v_add_f32 v{vL}, v{vL}, v{vT}")
    A(f"v_lshrrev_b32 v{vT}, 1, v3")
    A(f"v_lshlrev_b32 v{vT}, 10, v{vT}")
    A(f"v_lshl_add_u32 v{vT}, v2, 5, v{vT}")
    A(f"v_and_b32 v{vT+1}, 1, v3")
    A(f"v_lshl_add_u32 v{vT}, v{vT+1}, 4, v{vT}")
    A(f"s_lshl_b32 s{sT1}, s{sT0}, 11")
    A(f"s_add_u32 s{sT1}, s{sT1}, {L_PART}")
    A(f"v_add_u32 v{vT}, s{sT1}, v{vT}")
    A(f"ds_write_b128 v{vT}, {vr(vO,4)}")
    A(f"ds_write_b128 v{vT}, {vr(vO+4,4)} offset:512")
    A(f"v_mov_b32 v{vMAX+1}, v{vL}") if False else None
    A(f"v_lshlrev_b32 v{vT}, 0, v2")
    A(f"v_and_b32 v{vT}, 8, v{vT}")
    A(f"s_lshl_b32 s{sT1}, s{sT0}, 4")
    A(f"s_add_u32 s{sT1}, s{sT1}, {L_PML}")
    A(f"v_add_u32 v{vT}, s{sT1}, v{vT}")
    A(f"v_mov_b32 v{vP}, v{vMAX}")
    A(f"v_mov_b32 v{vP+1}, v{vL}")
    A(f"ds_write_b64 v{vT}, {vr(vP,2)}")
    A("s_waitcnt lgkmcnt(0)")
    stamp(3)
    A("s_barrier")
    if stamps:
        A("s_waitcnt lgkmcnt(0)")
        A(f"s_lshl_b32 s{sT1}, s2, 3")
        A(f"s_add_u32 s{sT1}, s{sT1}, s{sWAVE}")
        A(f"s_lshl_b32 s{sT1}, s{sT1}, 6")
        A(f"s_add_u32 s{sT1}, s{sT1}, {WS_ST}")
        A("v_mov_b32 v20, 0")
        A("v_cmp_eq_u32 vcc, 0, v0")
        A(f"s_and_saveexec_b64 s[{sEX}:{sEX+1}], vcc")
        for k in range(4):
            A(f"v_mov_b32 v21, s{sST+2*k}")
            A(f"buffer_store_dword v21, v20, {sr(S_WS,4)}, s{sT1} offen offset:{4*k}")
    A("s_endpgm")

    A.lab("L_helper")
    vW1 = 128
    vW2 = 184
    vTH = 1
    srd(S_X, 16, 7168)
    srd(S_WQ, 22, 448 * 8192)
    srd(S_WO, 24, 4096 * 896)
    srd(S_W1, 28, 448 * 3584)
    srd(S_B1, 30, 3584)
    srd(S_W2, 32, 1792 * 896)
    srd(S_B2, 34, 896)
    srd(S_OUT, 36, 7168)
    srd(S_DBG, 38, 256)
    sW = sWAVE
    sA, sBq, sCq, sD = 16, 17, 18, 19
    A(f"s_lshl_b32 s{sA}, s{sW}, 6")
    A(f"v_add_u32 v{vTH}, s{sA}, v0")
    A("v_lshlrev_b32 v12, 4, v0")
    A("v_cmp_gt_u32 vcc, 56, v0")
    A("v_mov_b32 v13, 0x7fffff00")
    A("s_nop 0")
    A("v_cndmask_b32 v12, v13, v12, vcc")
    A("v_cndmask_b32 v11, 0, 1.0, vcc") if False else None
    A(f"s_mul_i32 s{sA}, s{sW}, 1792")
    A(f"buffer_load_dwordx4 v[16:19], v12, {sr(S_X,4)}, s{sA} offen")
    A(f"buffer_load_dwordx4 v[20:23], v12, {sr(S_X,4)}, s{sA} offen offset:896")
    A(f"v_lshrrev_b32 v13, 1, v{vTH}")
    A("v_lshlrev_b32 v13, 13, v13")
    A(f"v_and_b32 v14, 1, v{vTH}")
    A("v_lshl_add_u32 v13, v14, 4, v13")
    A(f"s_lshr_b32 s{sBq}, s2, 3")
    A(f"s_lshl_b32 s{sCq}, s{sHKV}, 5")
    A(f"s_add_u32 s{sCq}, s{sCq}, s{sBq}")
    A(f"s_lshl_b32 s{sBq}, s{sCq}, 5")
    A(f"s_lshl_b32 s{sA}, s{sW}, 10")
    A(f"s_add_u32 s{sA}, s{sA}, {L_WQ}")
    for i in range(4):
        skip = None
        if i == 3:
            skip = A.newlab("L_skipwq")
            A(f"s_cmp_ge_u32 s{sW}, 2")
            A(f"s_cbranch_scc1 {skip}")
        A(f"s_add_u32 m0, s{sA}, {i*4096}")
        A(f"s_add_u32 s{sD}, s{sBq}, {i*128*8192}")
        A(f"buffer_load_dwordx4 v13, {sr(S_WQ,4)}, s{sD} offen lds")
        if skip: A.lab(skip)
    for k in range(4): A(f"v_mov_b32 v{24+k}, 0")
    A(f"v_lshlrev_b32 v14, 4, v{vTH}")
    A(f"s_lshl_b32 s{sA}, s{sLID}, 12")
    A(f"s_add_u32 s{sD}, s{sA}, {WS_OB1}")
    A(f"buffer_store_dwordx4 v[24:27], v14, {sr(S_WS,4)}, s{sD} offen sc1")
    A(f"s_add_u32 s{sD}, s{sA}, {WS_OB3}")
    A(f"buffer_store_dwordx4 v[24:27], v14, {sr(S_WS,4)}, s{sD} offen sc1")
    lab = A.newlab("L_skipclr")
    A(f"s_cmp_lg_u32 s{sW}, 0")
    A(f"s_cbranch_scc1 {lab}")
    A(f"s_lshl_b32 s{sA}, s{sLID}, 10")
    A(f"s_add_u32 s{sD}, s{sA}, {WS_OB2}")
    A(f"buffer_store_dwordx4 v[24:27], v14, {sr(S_WS,4)}, s{sD} offen sc1")
    A(f"s_lshl_b32 s{sA}, s{sLID}, 7")
    A(f"s_add_u32 s{sD}, s{sA}, {WS_ML}")
    A("v_cmp_gt_u32 vcc, 8, v0")
    A(f"s_and_saveexec_b64 s[{sEX}:{sEX+1}], vcc")
    A(f"buffer_store_dwordx4 v[24:27], v14, {sr(S_WS,4)}, s{sD} offen sc1")
    A(f"s_mov_b64 exec, s[{sEX}:{sEX+1}]")
    A.lab(lab)

    def wave_sum(v, t):
        for m in ("quad_perm:[1,0,3,2]", "quad_perm:[2,3,0,1]", "row_half_mirror", "row_mirror"):
            A("s_nop 1")
            A(f"v_add_f32_dpp v{v}, v{v}, v{v} {m} {DPPM}")
        A(f"v_mov_b32 v{t}, v{v}")
        A("s_nop 1")
        A(f"v_permlane16_swap_b32 v{v}, v{t}")
        A("s_nop 1")
        A(f"v_add_f32 v{v}, v{v}, v{t}")
        A(f"v_mov_b32 v{t}, v{v}")
        A("s_nop 1")
        A(f"v_permlane32_swap_b32 v{v}, v{t}")
        A("s_nop 1")
        A(f"v_add_f32 v{v}, v{v}, v{t}")

    def div448(v, t):
        A(f"v_mul_f32 v{t}, {hex(f32(1.0/448.0))}, v{v}")
        A(f"v_mov_b32 v{t+1}, {hex(f32(-448.0))}")
        A(f"v_fma_f32 v{v}, v{t}, v{t+1}, v{v}")
        A(f"v_mul_f32 v{v}, {hex(f32(1.0/448.0))}, v{v}")
        A(f"v_add_f32 v{v}, v{v}, v{t}")

    def rbf(v):
        A(f"v_cvt_pk_bf16_f32 v{v}, v{v}, v{v}")
        A(f"v_and_b32 v{v}, 0xffff0000, v{v}")

    def layernorm(src, f, t, vvalid):
        for k in range(4):
            A(f"v_lshlrev_b32 v{f+2*k}, 16, v{src+k}")
            A(f"v_and_b32 v{f+2*k+1}, 0xffff0000, v{src+k}")
        A(f"v_add_f32 v{t}, v{f}, v{f+1}")
        for k in range(2, 8): A(f"v_add_f32 v{t}, v{t}, v{f+k}")
        wave_sum(t, t + 1)
        div448(t, t + 1)
        A(f"v_sub_f32 v{t+1}, v{f}, v{t}")
        A(f"v_mul_f32 v{t+3}, v{t+1}, v{t+1}")
        for k in range(1, 8):
            A(f"v_sub_f32 v{t+1}, v{f+k}, v{t}")
            A(f"v_fma_f32 v{t+3}, v{t+1}, v{t+1}, v{t+3}")
        A(f"v_mul_f32 v{t+3}, v{t+3}, v{vvalid}")
        wave_sum(t + 3, t + 1)
        div448(t + 3, t + 4)
        rbf(t + 3)
        A(f"v_add_f32 v{t+3}, {hex(f32(1e-5))}, v{t+3}")
        rbf(t + 3)
        A(f"v_sqrt_f32 v{t+3}, v{t+3}")
        A("s_nop 0")
        rbf(t + 3)
        A(f"v_rcp_f32 v{t+3}, v{t+3}")
        rbf(t)
        for k in range(8): A(f"v_sub_f32 v{f+k}, v{f+k}, v{t}")
        for k in range(4):
            A(f"v_cvt_pk_bf16_f32 v{src+k}, v{f+2*k}, v{f+2*k+1}")
        for k in range(4):
            A(f"v_lshlrev_b32 v{f+2*k}, 16, v{src+k}")
            A(f"v_and_b32 v{f+2*k+1}, 0xffff0000, v{src+k}")
        for k in range(8): A(f"v_mul_f32 v{f+k}, v{f+k}, v{t+3}")
        for k in range(4):
            A(f"v_cvt_pk_bf16_f32 v{src+k}, v{f+2*k}, v{f+2*k+1}")

    vVAL = 11
    A("v_cmp_gt_u32 vcc, 56, v0")
    A("v_mov_b32 v15, 1.0")
    A("s_nop 0")
    A(f"v_cndmask_b32 v{vVAL}, 0, v15, vcc")
    A("s_waitcnt vmcnt(0)")
    layernorm(16, 32, 40, vVAL)
    layernorm(20, 32, 40, vVAL)
    A(f"s_mul_i32 s{sA}, s{sW}, 1792")
    A(f"s_add_u32 s{sA}, s{sA}, {L_XN}")
    A("v_lshlrev_b32 v12, 4, v0")
    A(f"v_add_u32 v12, s{sA}, v12")
    A("v_cmp_gt_u32 vcc, 56, v0")
    A(f"s_and_saveexec_b64 s[{sEX}:{sEX+1}], vcc")
    A("ds_write_b128 v12, v[16:19]")
    A("ds_write_b128 v12, v[20:23] offset:896")
    A(f"s_mov_b64 exec, s[{sEX}:{sEX+1}]")
    A("s_waitcnt lgkmcnt(0)")
    A("s_barrier")

    def weight_loads():
        A("v_mul_u32_u24 v12, 28672, v3")
        A("v_lshl_add_u32 v12, v2, 4, v12")
        A(f"s_lshl_b32 s{sA}, s{sHKV}, 9")
        A(f"s_lshl_b32 s{sD}, s{sW}, 7")
        A(f"s_add_u32 s{sA}, s{sA}, s{sD}")
        A(f"s_mul_i32 s{sA}, s{sA}, 896")
        A(f"s_lshl_b32 s{sD}, s{sS}, 8")
        A(f"s_add_u32 s{sA}, s{sA}, s{sD}")
        A(f"s_lshl_b32 s{sBq}, s{sW}, 15")
        for t in range(32):
            A(f"s_add_u32 m0, s{sBq}, {L_WO + t*1024}")
            A(f"s_add_u32 s{sD}, s{sA}, {t*896}")
            A(f"buffer_load_dwordx4 v12, {sr(S_WO,4)}, s{sD} offen lds")
        lab = A.newlab("L_noffn")
        A(f"s_cmp_ge_u32 s{sI}, 28")
        A(f"s_cbranch_scc1 {lab}")
        A("v_lshrrev_b32 v13, 3, v2")
        A("v_lshl_add_u32 v13, v3, 1, v13")
        A("v_mul_u32_u24 v13, 50176, v13")
        A("v_and_b32 v14, 7, v2")
        A("v_lshl_add_u32 v13, v14, 4, v13")
        A(f"s_mul_i32 s{sA}, s{sW}, {112*3584}")
        A(f"s_lshl_b32 s{sD}, s{sI}, 7")
        A(f"s_add_u32 s{sA}, s{sA}, s{sD}")
        for t in range(14):
            A(f"s_add_u32 s{sD}, s{sA}, {t*3584}")
            A(f"buffer_load_dwordx4 {vr(vW1+4*t,4)}, v13, {sr(S_W1,4)}, s{sD} offen")
        A("v_mul_u32_u24 v13, 14336, v3")
        A("v_lshl_add_u32 v13, v2, 4, v13")
        A(f"s_mul_i32 s{sA}, s{sI}, {64*896}")
        A(f"s_lshl_b32 s{sD}, s{sW}, 8")
        A(f"s_add_u32 s{sA}, s{sA}, s{sD}")
        for t in range(16):
            A(f"s_add_u32 s{sD}, s{sA}, {t*896}")
            A(f"buffer_load_dwordx4 {vr(vW2+4*t,4)}, v13, {sr(S_W2,4)}, s{sD} offen")
        A.lab(lab)

    A(f"s_cmp_eq_u32 s{sW}, 0")
    A("s_cbranch_scc1 L_h0")
    weight_loads()
    A("s_barrier")
    A("s_branch L_hjoin")

    A.lab("L_h0")
    A("v_lshrrev_b32 v12, 2, v2")
    A("v_lshl_add_u32 v12, v3, 3, v12")
    A("v_lshlrev_b32 v12, 5, v12")
    A("v_and_b32 v13, 3, v2")
    A("v_lshl_add_u32 v12, v13, 3, v12")
    A(f"v_add_u32 v12, {L_WQ}, v12")
    A("v_and_b32 v13, 7, v2")
    A("v_mul_u32_u24 v13, 896, v13")
    A("v_lshl_add_u32 v13, v3, 4, v13")
    A(f"v_add_u32 v13, {L_XN}, v13")
    for half in range(2):
        for kk in range(7):
            k0 = (half * 7 + kk) * 32
            r = 32 + 8 * kk
            A(f"ds_read_b64_tr_b16 {vr(r,2)}, v12 offset:{k0*32}")
            A(f"ds_read_b64_tr_b16 {vr(r+2,2)}, v12 offset:{k0*32+128}")
            A(f"ds_read_b128 {vr(r+4,4)}, v13 offset:{k0*2}")
            if kk == 4: A("s_waitcnt lgkmcnt(0)")
        A("s_waitcnt lgkmcnt(0)")
        for kk in range(7):
            r = 32 + 8 * kk
            c = "0" if (half == 0 and kk == 0) else "v[24:27]"
            A(f"v_mfma_f32_16x16x32_bf16 v[24:27], {vr(r,4)}, {vr(r+4,4)}, {c}")
        A("s_nop 7")
    A("s_nop 3")
    A("v_cvt_pk_bf16_f32 v28, v24, v25")
    A("v_cvt_pk_bf16_f32 v29, v26, v27")
    A("v_lshlrev_b32 v12, 13, v2")
    A("v_lshl_add_u32 v12, v3, 3, v12")
    A(f"s_lshl_b32 s{sD}, s{sCq}, 5")
    A("v_cmp_gt_u32 vcc, 8, v2")
    A(f"s_and_saveexec_b64 s[{sEX}:{sEX+1}], vcc")
    A(f"buffer_store_dwordx2 v[28:29], v12, {sr(S_WS,4)}, s{sD} offen sc1")
    A(f"s_mov_b64 exec, s[{sEX}:{sEX+1}]")
    A("s_waitcnt vmcnt(0)")
    A("v_mov_b32 v12, 1")
    A("v_mov_b32 v13, 0")
    A(f"s_lshl_b32 s{sD}, s{sHKV}, 5")
    A("v_cmp_eq_u32 vcc, 0, v0")
    A(f"s_and_saveexec_b64 s[{sEX}:{sEX+1}], vcc")
    A(f"buffer_atomic_add v12, v13, {sr(S_DBG,4)}, s{sD} offen sc1")
    A(f"s_mov_b64 exec, s[{sEX}:{sEX+1}]")
    A(f"s_mov_b32 s{sCNT}, {spin}")
    lp = A.newlab("L_pq"); dn = A.newlab("L_pqd")
    A.lab(lp)
    A(f"buffer_load_dword v14, v13, {sr(S_DBG,4)}, s{sD} offen sc1")
    A("s_waitcnt vmcnt(0)")
    A("v_cmp_ne_u32 vcc, 32, v14")
    A(f"s_cbranch_vccz {dn}")
    A("s_sleep 1")
    A(f"s_sub_u32 s{sCNT}, s{sCNT}, 1")
    A(f"s_cmp_lg_u32 s{sCNT}, 0")
    A(f"s_cbranch_scc1 {lp}")
    A.lab(dn)
    A("v_lshlrev_b32 v12, 4, v0")
    A(f"s_lshl_b32 s{sD}, s{sB}, 13")
    A(f"s_lshl_b32 s{sA}, s{sHKV}, 10")
    A(f"s_add_u32 s{sD}, s{sD}, s{sA}")
    A(f"buffer_load_dwordx4 v[16:19], v12, {sr(S_WS,4)}, s{sD} offen sc1")
    A(f"v_add_u32 v12, {L_QF}, v12")
    A("s_waitcnt vmcnt(0)")
    A("ds_write_b128 v12, v[16:19]")
    A("s_waitcnt lgkmcnt(0)")
    A("s_barrier")
    A("v_and_b32 v13, 7, v0")
    A("v_lshlrev_b32 v13, 5, v13")
    A(f"s_mov_b32 s{sCNT}, {spin}")
    lp = A.newlab("L_pa"); dn = A.newlab("L_pad")
    A.lab(lp)
    A(f"buffer_load_dword v14, v13, {sr(S_DBG,4)}, 0 offen sc1")
    A("s_waitcnt vmcnt(0)")
    A("v_cmp_ne_u32 vcc, 32, v14")
    A(f"s_cbranch_vccz {dn}")
    A("s_sleep 4")
    A(f"s_sub_u32 s{sCNT}, s{sCNT}, 1")
    A(f"s_cmp_lg_u32 s{sCNT}, 0")
    A(f"s_cbranch_scc1 {lp}")
    A.lab(dn)
    weight_loads()

    A.lab("L_hjoin")
    A(f"v_lshlrev_b32 v12, 2, v{vTH}")
    A(f"s_mul_i32 s{sD}, s{sB}, 896")
    A(f"buffer_load_dword v100, v12, {sr(S_X,4)}, s{sD} offen")
    A("v_lshlrev_b32 v12, 1, v0")
    A(f"s_lshl_b32 s{sD}, s{sI}, 7")
    A(f"buffer_load_ushort v101, v12, {sr(S_B1,4)}, s{sD} offen")
    A("v_and_b32 v12, 7, v0")
    A("v_lshlrev_b32 v12, 2, v12")
    A(f"s_lshl_b32 s{sD}, s{sI}, 5")
    A(f"buffer_load_dword v102, v12, {sr(S_B2,4)}, s{sD} offen")
    A("v_cmp_gt_u32 vcc, 8, v2")
    A("s_nop 1")
    for k in range(4): A(f"v_cndmask_b32 v{104+k}, 0, v{4+k}, vcc")
    A("s_waitcnt vmcnt(0)")
    A("s_barrier")
    stamp(1)

    A.c("T1")
    A(f"v_lshlrev_b32 v12, 3, v{vTH}")
    A(f"v_add_u32 v12, {L_PART}, v12")
    for w in range(4):
        A(f"ds_read_b64 {vr(16+2*w,2)}, v12 offset:{w*2048}")
    A(f"s_lshr_b32 s{sA}, s{sW}, 1")
    A(f"s_lshl_b32 s{sA}, s{sA}, 3")
    A(f"v_mov_b32 v13, s{sA}")
    A(f"v_add_u32 v13, {L_PML}, v13")
    for w in range(4):
        A(f"ds_read_b64 {vr(24+2*w,2)}, v13 offset:{w*16}")
    A("s_waitcnt lgkmcnt(0)")
    A("v_max_f32 v32, v24, v26")
    A("v_max3_f32 v32, v28, v30, v32")
    for w in range(4):
        A(f"v_sub_f32 v{33+w}, v{24+2*w}, v32")
        A(f"v_mul_f32 v{33+w}, s{sC}, v{33+w}")
        A(f"v_exp_f32 v{33+w}, v{33+w}")
    A("s_nop 0")
    A("v_mul_f32 v40, v33, v16")
    A("v_mul_f32 v42, v33, v17")
    A("v_mul_f32 v46, v33, v25")
    for w in range(1, 4):
        A(f"v_fma_f32 v40, v{33+w}, v{16+2*w}, v40")
        A(f"v_fma_f32 v42, v{33+w}, v{17+2*w}, v42")
        A(f"v_fma_f32 v46, v{33+w}, v{25+2*w}, v46")
    A(f"v_mov_b32 v41, s{sTAG}")
    A(f"v_mov_b32 v43, s{sTAG}")
    A("v_mov_b32 v44, v32")
    A(f"v_mov_b32 v45, s{sTAG}")
    A(f"v_mov_b32 v47, s{sTAG}")
    A(f"v_lshlrev_b32 v14, 4, v{vTH}")
    A(f"s_lshl_b32 s{sD}, s{sLID}, 12")
    A(f"s_add_u32 s{sD}, s{sD}, {WS_OB1}")
    A(f"buffer_store_dwordx4 v[40:43], v14, {sr(S_WS,4)}, s{sD} offen sc1")
    A(f"s_lshl_b32 s{sA}, s{sA}, 1")
    A(f"v_mov_b32 v15, s{sA}")
    A(f"s_lshl_b32 s{sD}, s{sLID}, 7")
    A(f"s_add_u32 s{sD}, s{sD}, {WS_ML}")
    A("v_cmp_eq_u32 vcc, 0, v0")
    A(f"s_and_saveexec_b64 s[{sEX}:{sEX+1}], vcc")
    A(f"buffer_store_dwordx4 v[44:47], v15, {sr(S_WS,4)}, s{sD} offen sc1")
    A(f"s_mov_b64 exec, s[{sEX}:{sEX+1}]")
    A.c("T2")
    for p in range(1, 4):
        A(f"s_xor_b32 s{20+p}, s{sLID}, {p}")
        A(f"s_lshl_b32 s{24+p}, s{20+p}, 7")
        A(f"s_add_u32 s{24+p}, s{24+p}, {WS_ML}")
        A(f"s_lshl_b32 s{20+p}, s{20+p}, 12")
        A(f"s_add_u32 s{20+p}, s{20+p}, {WS_OB1}")
    A(f"s_mov_b32 s{sCNT}, {spin}")
    lp = A.newlab("L_p1"); dn = A.newlab("L_p1d")
    A.lab(lp)
    for p in range(1, 4):
        A(f"buffer_load_dwordx4 {vr(48+8*(p-1),4)}, v14, {sr(S_WS,4)}, s{20+p} offen sc1")
        A(f"buffer_load_dwordx4 {vr(52+8*(p-1),4)}, v15, {sr(S_WS,4)}, s{24+p} offen sc1")
    A("s_waitcnt vmcnt(0)")
    A(f"v_xor_b32 v12, s{sTAG}, v49")
    for r in range(51, 72, 2):
        A(f"v_xor_b32 v13, s{sTAG}, v{r}")
        A("v_or_b32 v12, v12, v13")
    A("v_cmp_ne_u32 vcc, 0, v12")
    A(f"s_cbranch_vccz {dn}")
    A(f"s_sub_u32 s{sCNT}, s{sCNT}, 1")
    A(f"s_cmp_lg_u32 s{sCNT}, 0")
    A(f"s_cbranch_scc1 {lp}")
    A.lab(dn)
    stamp(2)
    A("v_max_f32 v32, v44, v52")
    A("v_max3_f32 v32, v60, v68, v32")
    Ms = [44, 52, 60, 68]; Ls = [46, 54, 62, 70]; O0 = [40, 48, 56, 64]; O1 = [42, 50, 58, 66]
    for k in range(4):
        A(f"v_sub_f32 v{33+k}, v{Ms[k]}, v32")
        A(f"v_mul_f32 v{33+k}, s{sC}, v{33+k}")
        A(f"v_exp_f32 v{33+k}, v{33+k}")
    A("s_nop 0")
    A(f"v_mul_f32 v16, v33, v{O0[0]}")
    A(f"v_mul_f32 v17, v33, v{O1[0]}")
    A(f"v_mul_f32 v18, v33, v{Ls[0]}")
    for k in range(1, 4):
        A(f"v_fma_f32 v16, v{33+k}, v{O0[k]}, v16")
        A(f"v_fma_f32 v17, v{33+k}, v{O1[k]}, v17")
        A(f"v_fma_f32 v18, v{33+k}, v{Ls[k]}, v18")
    A("v_rcp_f32 v18, v18")
    A("s_nop 0")
    A("v_mul_f32 v16, v16, v18")
    A("v_mul_f32 v17, v17, v18")
    A("v_cvt_pk_bf16_f32 v16, v16, v16")
    A("v_cvt_pk_bf16_f32 v17, v17, v17")
    A(f"v_lshlrev_b32 v12, 3, v{vTH}")
    A(f"v_add_u32 v12, {L_ODUP}, v12")
    A("ds_write_b64 v12, v[16:17]")
    A("s_waitcnt lgkmcnt(0)")
    A.c("T3")
    A(f"s_lshl_b32 s{sA}, s{sW}, 9")
    A(f"s_add_u32 s{sA}, s{sA}, {L_ODUP}")
    A("v_lshlrev_b32 v12, 7, v3")
    A(f"v_add_u32 v12, s{sA}, v12")
    for q4 in range(8):
        A(f"ds_read_b128 {vr(16+4*q4,4)}, v12 offset:{q4*16}")
    A(f"s_lshl_b32 s{sA}, s{sW}, 15")
    A("v_lshlrev_b32 v13, 4, v0")
    A(f"v_add_u32 v13, s{sA}, v13")
    NB = 6
    def rdB(t):
        A(f"ds_read_b128 {vr(48+4*(t%NB),4)}, v13 offset:{L_WO + t*1024}")
    for t in range(NB): rdB(t)
    for t in range(32):
        a = 72 + 4 * (t & 1)
        out = min(32, t + NB) - t - 1
        A(f"s_waitcnt lgkmcnt({out})")
        for k in range(4): A(f"v_and_b32 v{a+k}, v{104+k}, v{16+t}")
        A("s_nop 1")
        c = "0" if t == 0 else "v[80:83]"
        A(f"v_mfma_f32_16x16x32_bf16 v[80:83], {vr(a,4)}, {vr(48+4*(t%NB),4)}, {c}")
        if t + NB < 32: rdB(t + NB)
    A.c("T4")
    A("v_lshlrev_b32 v12, 5, v2")
    A("v_lshl_add_u32 v12, v3, 4, v12")
    A(f"s_lshl_b32 s{sA}, s{sW}, 9")
    A(f"s_add_u32 s{sA}, s{sA}, {L_RED}")
    A(f"v_add_u32 v12, s{sA}, v12")
    A("s_nop 4")
    A("v_cmp_gt_u32 vcc, 32, v0")
    A(f"s_and_saveexec_b64 s[{sEX}:{sEX+1}], vcc")
    A("ds_write_b128 v12, v[80:83]")
    A(f"s_mov_b64 exec, s[{sEX}:{sEX+1}]")
    A("s_waitcnt lgkmcnt(0)")
    A("s_barrier")
    lab = A.newlab("L_t4")
    A(f"s_cmp_lg_u32 s{sW}, 0")
    A(f"s_cbranch_scc1 {lab}")
    A("v_lshlrev_b32 v12, 3, v0")
    A(f"v_add_u32 v12, {L_RED}, v12")
    for w in range(4): A(f"ds_read_b64 {vr(16+2*w,2)}, v12 offset:{w*512}")
    A("s_waitcnt lgkmcnt(0)")
    A("v_add_f32 v24, v16, v18")
    A("v_add_f32 v26, v17, v19")
    A("v_add_f32 v25, v20, v22")
    A("v_add_f32 v27, v21, v23")
    A("v_add_f32 v24, v24, v25")
    A("v_add_f32 v26, v26, v27")
    A(f"v_mov_b32 v25, s{sTAG}")
    A(f"v_mov_b32 v27, s{sTAG}")
    A("v_lshlrev_b32 v12, 4, v0")
    A(f"s_lshl_b32 s{sD}, s{sLID}, 10")
    A(f"s_add_u32 s{sD}, s{sD}, {WS_OB2}")
    A(f"buffer_store_dwordx4 v[24:27], v12, {sr(S_WS,4)}, s{sD} offen sc1")
    A.lab(lab)
    A(f"s_cmp_ge_u32 s{sI}, 28")
    A("s_cbranch_scc1 L_fin")
    A.c("T5")
    A("v_lshlrev_b32 v12, 4, v0")
    A(f"s_lshl_b32 s{sD}, s{sB}, 5")
    A(f"s_add_u32 s{sD}, s{sD}, s{sW}")
    A(f"s_lshl_b32 s{sD}, s{sD}, 10")
    A(f"s_add_u32 s{sD}, s{sD}, {WS_OB2}")
    for h in range(8): A(f"s_add_u32 s{20+h}, s{sD}, {h*4096}")
    A(f"s_mov_b32 s{sCNT}, {spin}")
    lp = A.newlab("L_p2"); dn = A.newlab("L_p2d")
    A.lab(lp)
    for h in range(8):
        A(f"buffer_load_dwordx4 {vr(16+4*h,4)}, v12, {sr(S_WS,4)}, s{20+h} offen sc1")
    A("s_waitcnt vmcnt(0)")
    A(f"v_xor_b32 v13, s{sTAG}, v17")
    for r in range(19, 48, 2):
        A(f"v_xor_b32 v14, s{sTAG}, v{r}")
        A("v_or_b32 v13, v13, v14")
    A("v_cmp_ne_u32 vcc, 0, v13")
    A(f"s_cbranch_vccz {dn}")
    A(f"s_sub_u32 s{sCNT}, s{sCNT}, 1")
    A(f"s_cmp_lg_u32 s{sCNT}, 0")
    A(f"s_cbranch_scc1 {lp}")
    A.lab(dn)
    stamp(3)
    A("v_add_f32 v48, v16, v20")
    A("v_add_f32 v49, v18, v22")
    for h in range(2, 8):
        A(f"v_add_f32 v48, v48, v{16+4*h}")
        A(f"v_add_f32 v49, v49, v{18+4*h}")
    A("v_cvt_pk_bf16_f32 v48, v48, v49")
    A("v_lshlrev_b32 v49, 16, v48")
    A("v_and_b32 v48, 0xffff0000, v48")
    A("v_lshlrev_b32 v50, 16, v100")
    A("v_and_b32 v51, 0xffff0000, v100")
    A("v_add_f32 v49, v49, v50")
    A("v_add_f32 v48, v48, v51")
    A("v_cvt_pk_bf16_f32 v48, v49, v48")
    A(f"v_lshlrev_b32 v12, 2, v{vTH}")
    A(f"v_add_u32 v12, {L_H}, v12")
    A(f"v_cmp_gt_u32 vcc, 224, v{vTH}")
    A(f"s_and_saveexec_b64 s[{sEX}:{sEX+1}], vcc")
    A("ds_write_b32 v12, v48")
    A(f"s_mov_b64 exec, s[{sEX}:{sEX+1}]")
    A("s_waitcnt lgkmcnt(0)")
    A("s_barrier")
    for k in range(4): A(f"v_mov_b32 v{16+k}, 0")
    A("v_lshlrev_b32 v12, 4, v0")
    A(f"v_add_u32 v12, {L_H}, v12")
    A("v_cmp_gt_u32 vcc, 56, v0")
    A(f"s_and_saveexec_b64 s[{sEX}:{sEX+1}], vcc")
    A("ds_read_b128 v[16:19], v12")
    A(f"s_mov_b64 exec, s[{sEX}:{sEX+1}]")
    A("s_waitcnt lgkmcnt(0)")
    layernorm(16, 32, 40, vVAL)
    for k in range(4):
        A(f"v_and_b32 v{32+2*k}, 0xffff, v{16+k}")
        A(f"v_lshl_or_b32 v{32+2*k}, v{32+2*k}, 16, v{32+2*k}")
        A(f"v_lshrrev_b32 v{33+2*k}, 16, v{16+k}")
        A(f"v_lshl_or_b32 v{33+2*k}, v{33+2*k}, 16, v{33+2*k}")
    A(f"s_mul_i32 s{sA}, s{sW}, 14")
    A(f"v_subrev_u32 v12, s{sA}, v0")
    A("v_cmp_gt_u32 vcc, 14, v12")
    A(f"s_lshl_b32 s{sA}, s{sW}, 9")
    A(f"s_add_u32 s{sA}, s{sA}, {L_XD}")
    A("v_lshlrev_b32 v13, 3, v12")
    A(f"s_and_saveexec_b64 s[{sEX}:{sEX+1}], vcc")
    for k in range(8):
        A(f"v_add_u32 v14, {k}, v13")
        A("v_mul_u32_u24 v15, 4682, v14")
        A("v_lshrrev_b32 v15, 16, v15")
        A("v_lshl_add_u32 v14, v15, 1, v14")
        A("v_lshlrev_b32 v14, 2, v14")
        A(f"v_add_u32 v14, s{sA}, v14")
        A(f"ds_write_b32 v14, v{32+k}")
    A(f"s_mov_b64 exec, s[{sEX}:{sEX+1}]")
    A("s_waitcnt lgkmcnt(0)")
    A.c("T6")
    A("v_lshrrev_b32 v12, 3, v2")
    A("v_lshl_add_u32 v12, v3, 1, v12")
    A("v_lshlrev_b32 v12, 6, v12")
    A(f"v_add_u32 v12, s{sA}, v12")
    for q4 in range(4):
        A(f"ds_read_b128 {vr(16+4*q4,4)}, v12 offset:{q4*16}")
    A("s_waitcnt lgkmcnt(0)")
    for t in range(14):
        a = 72 + 4 * (t & 1)
        for k in range(4): A(f"v_and_b32 v{a+k}, v{4+k}, v{16+t}")
        A("s_nop 1")
        c = "0" if t == 0 else "v[80:83]"
        A(f"v_mfma_f32_16x16x32_bf16 v[80:83], {vr(a,4)}, {vr(vW1+4*t,4)}, {c}")
    A("v_lshrrev_b32 v12, 1, v3")
    A("v_lshrrev_b32 v13, 3, v2")
    A("v_cmp_eq_u32 vcc, v12, v13")
    A("v_lshlrev_b32 v12, 5, v2")
    A("v_and_b32 v13, 1, v3")
    A("v_lshl_add_u32 v12, v13, 4, v12")
    A(f"s_lshl_b32 s{sA}, s{sW}, 9")
    A(f"s_add_u32 s{sA}, s{sA}, {L_RED2}")
    A(f"v_add_u32 v12, s{sA}, v12")
    A("s_nop 2")
    A(f"s_and_saveexec_b64 s[{sEX}:{sEX+1}], vcc")
    A("ds_write_b128 v12, v[80:83]")
    A(f"s_mov_b64 exec, s[{sEX}:{sEX+1}]")
    A("s_waitcnt lgkmcnt(0)")
    A("s_barrier")
    A("v_lshlrev_b32 v12, 2, v0")
    A(f"v_add_u32 v12, {L_RED2}, v12")
    for k in range(8): A(f"ds_read_b32 v{16+k}, v12 offset:{k*256}")
    A("s_waitcnt lgkmcnt(0)")
    for k in range(1, 8): A(f"v_add_f32 v16, v16, v{16+k}")
    rbf(16)
    A("v_lshlrev_b32 v17, 16, v101")
    A("v_add_f32 v16, v16, v17")
    rbf(16)
    A("v_max_f32 v16, 0, v16")
    A("v_mul_f32 v16, v16, v16")
    A("v_cvt_pk_bf16_f32 v16, v16, v16")
    A(f"s_lshl_b32 s{sA}, s{sW}, 8")
    A(f"s_add_u32 s{sA}, s{sA}, {L_R2}")
    A("v_lshlrev_b32 v12, 2, v0")
    A(f"v_add_u32 v12, s{sA}, v12")
    A("ds_write_b32 v12, v16")
    A("s_waitcnt lgkmcnt(0)")
    A.c("T7")
    A("v_lshlrev_b32 v12, 6, v3")
    A(f"v_add_u32 v12, s{sA}, v12")
    for q4 in range(4):
        A(f"ds_read_b128 {vr(16+4*q4,4)}, v12 offset:{q4*16}")
    A("s_waitcnt lgkmcnt(0)")
    for t in range(16):
        a = 72 + 4 * (t & 1)
        for k in range(4): A(f"v_and_b32 v{a+k}, v{104+k}, v{16+t}")
        A("s_nop 1")
        c = "0" if t == 0 else "v[80:83]"
        A(f"v_mfma_f32_16x16x32_bf16 v[80:83], {vr(a,4)}, {vr(vW2+4*t,4)}, {c}")
    A("v_lshlrev_b32 v12, 6, v2")
    A("v_lshl_add_u32 v12, v3, 5, v12")
    A(f"s_lshl_b32 s{sD}, s{sLID}, 12")
    A(f"s_add_u32 s{sD}, s{sD}, {WS_OB3}")
    A(f"s_lshl_b32 s{sA}, s{sW}, 10")
    A(f"s_add_u32 s{sD}, s{sD}, s{sA}")
    A(f"v_mov_b32 v17, s{sTAG}")
    A(f"v_mov_b32 v19, s{sTAG}")
    A(f"v_mov_b32 v21, s{sTAG}")
    A(f"v_mov_b32 v23, s{sTAG}")
    A("s_nop 1")
    A("v_mov_b32 v16, v80")
    A("v_mov_b32 v18, v81")
    A("v_mov_b32 v20, v82")
    A("v_mov_b32 v22, v83")
    A("v_cmp_gt_u32 vcc, 32, v0")
    A(f"s_and_saveexec_b64 s[{sEX}:{sEX+1}], vcc")
    A(f"buffer_store_dwordx4 v[16:19], v12, {sr(S_WS,4)}, s{sD} offen sc1")
    A(f"buffer_store_dwordx4 v[20:23], v12, {sr(S_WS,4)}, s{sD} offen offset:16 sc1")
    A(f"s_mov_b64 exec, s[{sEX}:{sEX+1}]")
    A.c("T8")
    A(f"s_cmp_lg_u32 s{sW}, 0")
    A("s_cbranch_scc1 L_fin")
    A("v_lshrrev_b32 v12, 3, v0")
    A("v_lshlrev_b32 v12, 12, v12")
    A("v_and_b32 v13, 7, v0")
    A("v_lshl_add_u32 v12, v13, 4, v12")
    A(f"s_lshl_b32 s{sD}, s{sB}, 17")
    A(f"s_add_u32 s{sD}, s{sD}, {WS_OB3}")
    A(f"s_lshl_b32 s{sA}, s{sI}, 7")
    A(f"s_add_u32 s{sD}, s{sD}, s{sA}")
    for k in range(4): A(f"s_add_u32 s{20+k}, s{sD}, {k*32768}")
    A("v_mov_b32 v28, 0")
    A(f"v_mov_b32 v29, s{sTAG}")
    A("v_mov_b32 v30, 0")
    A(f"v_mov_b32 v31, s{sTAG}")
    A(f"s_mov_b32 s{sCNT}, {spin}")
    lp = A.newlab("L_p3"); dn = A.newlab("L_p3d")
    A.lab(lp)
    for k in range(3):
        A(f"buffer_load_dwordx4 {vr(16+4*k,4)}, v12, {sr(S_WS,4)}, s{20+k} offen sc1")
    A("s_mov_b32 exec_hi, 0")
    A(f"buffer_load_dwordx4 v[28:31], v12, {sr(S_WS,4)}, s23 offen sc1")
    A("s_mov_b64 exec, -1")
    A("s_waitcnt vmcnt(0)")
    A(f"v_xor_b32 v13, s{sTAG}, v17")
    for r in range(19, 32, 2):
        A(f"v_xor_b32 v14, s{sTAG}, v{r}")
        A("v_or_b32 v13, v13, v14")
    A("v_cmp_ne_u32 vcc, 0, v13")
    A(f"s_cbranch_vccz {dn}")
    A(f"s_sub_u32 s{sCNT}, s{sCNT}, 1")
    A(f"s_cmp_lg_u32 s{sCNT}, 0")
    A(f"s_cbranch_scc1 {lp}")
    A.lab(dn)
    stamp(4)
    A("v_add_f32 v16, v16, v20")
    A("v_add_f32 v18, v18, v22")
    A("v_add_f32 v24, v24, v28")
    A("v_add_f32 v26, v26, v30")
    A("v_add_f32 v16, v16, v24")
    A("v_add_f32 v18, v18, v26")
    A("v_and_b32 v13, 7, v0")
    A("v_lshlrev_b32 v13, 2, v13")
    A(f"s_lshl_b32 s{sA}, s{sI}, 5")
    A(f"s_add_u32 s{sA}, s{sA}, {L_H}")
    A(f"v_add_u32 v14, s{sA}, v13")
    A("ds_read_b32 v40, v14")
    A(f"v_add_f32_dpp v16, v16, v16 row_ror:8 {DPPM}")
    A(f"v_add_f32_dpp v18, v18, v18 row_ror:8 {DPPM}")
    for sw in ("v_permlane16_swap_b32", "v_permlane32_swap_b32"):
        A("v_mov_b32 v17, v16")
        A("v_mov_b32 v19, v18")
        A("s_nop 1")
        A(f"{sw} v16, v17")
        A(f"{sw} v18, v19")
        A("s_nop 1")
        A("v_add_f32 v16, v16, v17")
        A("v_add_f32 v18, v18, v19")
    A("v_cvt_pk_bf16_f32 v16, v16, v18")
    A("v_lshlrev_b32 v17, 16, v16")
    A("v_and_b32 v16, 0xffff0000, v16")
    A("v_lshlrev_b32 v18, 16, v102")
    A("v_and_b32 v19, 0xffff0000, v102")
    A("v_add_f32 v17, v17, v18")
    A("v_add_f32 v16, v16, v19")
    A("v_cvt_pk_bf16_f32 v16, v17, v16")
    A("v_lshlrev_b32 v17, 16, v16")
    A("v_and_b32 v16, 0xffff0000, v16")
    A("s_waitcnt lgkmcnt(0)")
    A("v_lshlrev_b32 v18, 16, v40")
    A("v_and_b32 v19, 0xffff0000, v40")
    A("v_add_f32 v17, v17, v18")
    A("v_add_f32 v16, v16, v19")
    A("v_cvt_pk_bf16_f32 v16, v17, v16")
    A(f"s_mul_i32 s{sD}, s{sB}, 896")
    A(f"s_lshl_b32 s{sA}, s{sI}, 5")
    A(f"s_add_u32 s{sD}, s{sD}, s{sA}")
    A("v_cmp_gt_u32 vcc, 8, v0")
    A(f"s_and_saveexec_b64 s[{sEX}:{sEX+1}], vcc")
    A(f"buffer_store_dword v16, v13, {sr(S_OUT,4)}, s{sD} offen")
    A(f"s_mov_b64 exec, s[{sEX}:{sEX+1}]")
    A.lab("L_fin")
    if stamps:
        A("s_waitcnt vmcnt(0)")
        A("s_memrealtime s[32:33]")
        A("s_waitcnt lgkmcnt(0)")
        A(f"s_lshl_b32 s{sT1}, s2, 3")
        A(f"s_add_u32 s{sT1}, s{sT1}, s{sWAVE}")
        A(f"s_lshl_b32 s{sT1}, s{sT1}, 6")
        A(f"s_add_u32 s{sT1}, s{sT1}, {WS_ST}")
        A("v_mov_b32 v20, 0")
        A("v_cmp_eq_u32 vcc, 0, v0")
        A(f"s_and_saveexec_b64 s[{sEX}:{sEX+1}], vcc")
        for k in range(5):
            A(f"v_mov_b32 v21, s{sST+2*k}")
            A(f"buffer_store_dword v21, v20, {sr(S_WS,4)}, s{sT1} offen offset:{4*k}")
        A("v_mov_b32 v21, s32")
        A(f"buffer_store_dword v21, v20, {sr(S_WS,4)}, s{sT1} offen offset:20")
    A.lab("L_end")
    A("s_endpgm")

    tail = []
    tail.append('.section .rodata,"a"')
    tail.append(".p2align 6")
    tail.append(f".amdhsa_kernel {KN}")
    tail.append("  .amdhsa_next_free_vgpr 256")
    tail.append("  .amdhsa_next_free_sgpr 102")
    tail.append("  .amdhsa_accum_offset 256")
    tail.append("  .amdhsa_group_segment_fixed_size 0")
    tail.append("  .amdhsa_kernarg_size 104")
    tail.append("  .amdhsa_user_sgpr_count 2")
    tail.append("  .amdhsa_user_sgpr_kernarg_segment_ptr 1")
    tail.append("  .amdhsa_system_sgpr_workgroup_id_x 1")
    tail.append("  .amdhsa_float_denorm_mode_32 3")
    tail.append(".end_amdhsa_kernel")
    body = [l for l in A.L if l is not None]
    return "\n".join(hdr + body + tail) + "\n"

if __name__ == "__main__":
    kw = eval("dict(%s)" % (sys.argv[2] if len(sys.argv) > 2 else ""))
    open(sys.argv[1], "w").write(gen(**kw))
```

```python
import sys, struct

KN = "sequential_preLN__gqa_block_cached__dense_activation_squared_relu__decode_kernel"

def f32(x):
    return struct.unpack("<I", struct.pack("<f", x))[0]

TAG = 0x5A17C0DE
LOG2E_16 = 1.4426950408889634 / 16.0

WS_Q = 0x0
WS_OB1 = 0x20000
WS_ML = 0x120000
WS_OB2 = 0x130000
WS_OB3 = 0x170000
WS_ST = 0x600000
WS_SIZE = 0x800000

L_WO = 0
L_W1S = 0
L_W2S = 65536
L_WQ = 0
L_XN = 16384
L_S = 131072
L_QF = L_S
L_PART = L_S + 1024
L_STAT = L_S + 9216
L_F = L_S + 9280
L_FLAG = L_S + 9344
L_OBF = L_S + 9472
L_H = L_S + 10496
L_XN2 = L_S + 11520
L_R2 = L_S + 15616
LDS_SIZE = L_S + 15872

class G:
    def __init__(self):
        self.L = []
        self.nlab = 0
    def __call__(self, s):
        self.L.append("  " + s)
    def lab(self, name):
        self.L.append(name + ":")
    def newlab(self, p="L"):
        self.nlab += 1
        return f"{p}_{self.nlab}"
    def c(self, s):
        self.L.append("  ; " + s)

def vr(a, n=1):
    return f"v{a}" if n == 1 else f"v[{a}:{a+n-1}]"
def sr(a, n=1):
    return f"s{a}" if n == 1 else f"s[{a}:{a+n-1}]"

DPPM = "row_mask:0xf bank_mask:0xf"

def gen(RG0=20, RS=4, stamps=False, spin=1 << 20, dry=False, wpace=4, PP=4, E=8, now=0):
    A = G()
    hdr = []
    hdr.append(f"; @launch grid=(256,1,1) block=(512,1,1) lds={LDS_SIZE}")
    hdr.append('.amdgcn_target "amdgcn-amd-amdhsa--gfx950"')
    hdr.append(".text")
    hdr.append(f".globl {KN}")
    hdr.append(".p2align 8")
    hdr.append(f".type {KN},@function")
    hdr.append(f"{KN}:")

    S_K, S_V, S_X, S_WQ, S_WO, S_W1, S_B1, S_W2, S_B2, S_OUT, S_DBG, S_WS = [44 + 4 * i for i in range(12)]
    sWAVE = 3
    sHKV, sB, sS, sLID, sI = 4, 5, 6, 7, 8
    sSPIN, sT1, sT2, sDRY = 9, 10, 11, 12
    sTAG, sC, sCNT = 13, 14, 15
    sA, sBq, sCq, sD = 16, 17, 18, 19
    sEX = 42
    sST = 92

    def slot(idx):
        return sST + 2 * idx if idx < 5 else 28 + 2 * (idx - 5)
    def stamp(idx, grp=None):
        if stamps and (grp is None or grp == stamps):
            A(f"s_memrealtime s[{slot(idx)}:{slot(idx)+1}]")
    def dump_stamps(n):
        A("s_waitcnt lgkmcnt(0)")
        A(f"s_lshl_b32 s{sT1}, s2, 3")
        A(f"s_add_u32 s{sT1}, s{sT1}, s{sWAVE}")
        A(f"s_lshl_b32 s{sT1}, s{sT1}, 6")
        A(f"s_add_u32 s{sT1}, s{sT1}, {WS_ST}")
        A("v_mov_b32 v20, 0")
        A("v_cmp_eq_u32 vcc, 0, v0")
        A(f"s_and_saveexec_b64 s[{sEX}:{sEX+1}], vcc")
        for k in range(n):
            A(f"v_mov_b32 v21, s{slot(k)}")
            A(f"buffer_store_dword v21, v20, {sr(S_WS,4)}, s{sT1} offen offset:{4*k}")

    def srd(dst, ptr, size):
        A(f"s_mov_b32 s{dst}, s{ptr}")
        A(f"s_mov_b32 s{dst+1}, s{ptr+1}")
        A(f"s_mov_b32 s{dst+2}, {hex(size)}")
        A(f"s_mov_b32 s{dst+3}, 0x20000")

    def rbf(v):
        A(f"v_cvt_pk_bf16_f32 v{v}, v{v}, v{v}")
        A(f"v_and_b32 v{v}, 0xffff0000, v{v}")

    def reduce_lanes(v, t, full, op="add"):
        for m in ("quad_perm:[1,0,3,2]", "quad_perm:[2,3,0,1]", "row_half_mirror", "row_mirror"):
            A("s_nop 1")
            A(f"v_{op}_f32_dpp v{v}, v{v}, v{v} {m} {DPPM}")
        sw = ["v_permlane16_swap_b32"] + (["v_permlane32_swap_b32"] if full else [])
        for s_ in sw:
            A(f"v_mov_b32 v{t}, v{v}")
            A("s_nop 1")
            A(f"{s_} v{v}, v{t}")
            A("s_nop 1")
            A(f"v_{op}_f32 v{v}, v{v}, v{t}")

    def tree_add(dst, regs, tmp):
        cur = list(regs); k = 0
        while len(cur) > 1:
            nxt = []
            for a in range(0, len(cur) - 1, 2):
                d = dst if len(cur) == 2 else tmp + k
                if len(cur) != 2: k += 1
                A(f"v_add_f32 v{d}, v{cur[a]}, v{cur[a+1]}")
                nxt.append(d)
            if len(cur) & 1: nxt.append(cur[-1])
            cur = nxt

    def div448(v, t):
        A(f"v_mul_f32 v{t}, {hex(f32(1.0/448.0))}, v{v}")
        A(f"v_fma_f32 v{v}, v{t}, s{sT2}, v{v}")
        A(f"v_fma_f32 v{v}, v{v}, s{sT1}, v{t}")

    def layernorm(src, E, f, d, t, vvalid, full):
        A(f"s_mov_b32 s{sT1}, {hex(f32(1.0/448.0))}")
        A(f"s_mov_b32 s{sT2}, {hex(f32(-448.0))}")
        for k in range(E // 2):
            A(f"v_lshlrev_b32 v{f+2*k}, 16, v{src+k}")
            A(f"v_and_b32 v{f+2*k+1}, 0xffff0000, v{src+k}")
        tree_add(t, range(f, f + E), d)
        reduce_lanes(t, t + 1, full)
        div448(t, t + 1)
        for k in range(E): A(f"v_sub_f32 v{d+k}, v{f+k}, v{t}")
        for k in range(E // 2): A(f"v_mul_f32 v{d+k}, v{d+k}, v{d+k}")
        for k in range(E // 2): A(f"v_fma_f32 v{d+k}, v{d+E//2+k}, v{d+E//2+k}, v{d+k}")
        tree_add(t + 2, range(d, d + E // 2), d + E // 2)
        A(f"v_cvt_pk_bf16_f32 v{t}, v{t}, v{t}")
        A(f"v_mul_f32 v{t+2}, v{t+2}, v{vvalid}")
        A(f"v_and_b32 v{t}, 0xffff0000, v{t}")
        fill = [f"v_sub_f32 v{f+k}, v{f+k}, v{t}" for k in range(E)]
        fill += [f"v_cvt_pk_bf16_f32 v{src+k}, v{f+2*k}, v{f+2*k+1}" for k in range(E // 2)]
        for k in range(E // 2):
            fill.append(f"v_lshlrev_b32 v{f+2*k}, 16, v{src+k}")
            fill.append(f"v_and_b32 v{f+2*k+1}, 0xffff0000, v{src+k}")
        def F(n):
            for _ in range(n):
                if fill: A(fill.pop(0))
                else: A("s_nop 0")
        v = t + 2
        for m in ("quad_perm:[1,0,3,2]", "quad_perm:[2,3,0,1]", "row_half_mirror", "row_mirror"):
            F(2)
            A(f"v_add_f32_dpp v{v}, v{v}, v{v} {m} {DPPM}")
        sw = ["v_permlane16_swap_b32"] + (["v_permlane32_swap_b32"] if full else [])
        for s_ in sw:
            A(f"v_mov_b32 v{t+1}, v{v}")
            F(2)
            A(f"{s_} v{v}, v{t+1}")
            F(2)
            A(f"v_add_f32 v{v}, v{v}, v{t+1}")
        div448(v, t + 1)
        rbf(v)
        A(f"v_add_f32 v{v}, {hex(f32(1e-5))}, v{v}")
        rbf(v)
        A(f"v_sqrt_f32 v{v}, v{v}")
        F(1)
        rbf(v)
        A(f"v_rcp_f32 v{v}, v{v}")
        while fill: A(fill.pop(0))
        A("s_nop 0")
        for k in range(E): A(f"v_mul_f32 v{f+k}, v{f+k}, v{v}")
        for k in range(E // 2):
            A(f"v_cvt_pk_bf16_f32 v{src+k}, v{f+2*k}, v{f+2*k+1}")

    def lds_wait(addr_v, tmp, target, sleep=2):
        lp = A.newlab("L_lw"); dn = A.newlab("L_lwd")
        A(f"s_mov_b32 s{sCNT}, {spin}")
        A.lab(lp)
        A(f"ds_read_b32 v{tmp}, v{addr_v}")
        A("s_waitcnt lgkmcnt(0)")
        A(f"v_cmp_gt_u32 vcc, {target}, v{tmp}")
        A(f"s_cbranch_vccz {dn}")
        if sleep: A(f"s_sleep {sleep}")
        A(f"s_sub_u32 s{sCNT}, s{sCNT}, 1")
        A(f"s_cmp_lg_u32 s{sCNT}, 0")
        A(f"s_cbranch_scc1 {lp}")
        A.lab(dn)

    def lds_inc(addr_v, tmp):
        A(f"v_mov_b32 v{tmp}, 1")
        A("s_mov_b64 exec, 1")
        A(f"ds_add_u32 v{addr_v}, v{tmp}")
        A("s_mov_b64 exec, -1")

    def poll(loads, tagregs, t0, t1, cnt_src, pre=None, post=None):
        lp = A.newlab("L_p"); dn = A.newlab("L_pd")
        A(f"s_mov_b32 s{sCNT}, {cnt_src}")
        A.lab(lp)
        for x in loads: A(x)
        A("s_waitcnt vmcnt(0)")
        A(f"v_xor_b32 v{t0}, s{sTAG}, v{tagregs[0]}")
        rest = tagregs[1:]
        k = 0
        while k < len(rest):
            if k + 1 < len(rest):
                A(f"v_xor_b32 v{t1}, s{sTAG}, v{rest[k]}")
                A(f"v_xor_b32 v{t1+1}, s{sTAG}, v{rest[k+1]}")
                A(f"v_or3_b32 v{t0}, v{t0}, v{t1}, v{t1+1}")
                k += 2
            else:
                A(f"v_xor_b32 v{t1}, s{sTAG}, v{rest[k]}")
                A(f"v_or_b32 v{t0}, v{t0}, v{t1}")
                k += 1
        A(f"v_cmp_ne_u32 vcc, 0, v{t0}")
        A(f"s_cbranch_vccz {dn}")
        A(f"s_sub_u32 s{sCNT}, s{sCNT}, 1")
        A(f"s_cmp_lg_u32 s{sCNT}, 0")
        A(f"s_cbranch_scc1 {lp}")
        A.lab(dn)

    A("s_cmp_ge_u32 s2, 256")
    A("s_cbranch_scc1 L_end")
    A("s_load_dwordx16 s[16:31], s[0:1], 0")
    A("s_load_dwordx8 s[32:39], s[0:1], 64")
    A("s_load_dwordx2 s[40:41], s[0:1], 96")
    stamp(0)
    A("v_lshrrev_b32 v1, 6, v0")
    A("v_and_b32 v0, 63, v0")
    A(f"v_readfirstlane_b32 s{sWAVE}, v1")
    A(f"s_and_b32 s{sHKV}, s2, 7")
    A(f"s_lshr_b32 s{sT1}, s2, 3")
    A(f"s_lshr_b32 s{sB}, s{sT1}, 2")
    A(f"s_and_b32 s{sS}, s{sT1}, 3")
    A(f"s_lshl_b32 s{sI}, s{sHKV}, 2")
    A(f"s_add_u32 s{sI}, s{sI}, s{sS}")
    A(f"s_lshl_b32 s{sLID}, s{sB}, 5")
    A(f"s_add_u32 s{sLID}, s{sLID}, s{sI}")
    A(f"s_mov_b32 s{sTAG}, {hex(TAG)}")
    A(f"s_mov_b32 s{sC}, {hex(f32(LOG2E_16))}")
    A(f"s_mov_b32 s{sDRY}, 0")
    A("v_and_b32 v2, 15, v0")
    A("v_lshrrev_b32 v3, 4, v0")
    A(f"s_cmp_lt_u32 s{sWAVE}, 4")
    A("s_cbranch_scc1 L_helper")

    vOFF = 1
    vMAX, vL, vNMC = 11, 12, 13
    vT = 14
    vQ = 16
    vO = 32
    vA = 40
    vU = 48
    vSC = 56
    vP = 88
    vRING = 96
    sW = 9
    sBASE, sOFF, sSEL0, sSEL1 = 22, 23, 24, 25
    A.c("stream wave")
    A(f"s_sub_u32 s{sW}, s{sWAVE}, 4")
    A(f"s_lshl_b32 s{sT1}, s{sB}, 3")
    A(f"s_add_u32 s{sT1}, s{sT1}, s{sHKV}")
    A(f"s_lshl_b32 s{sT1}, s{sT1}, 21")
    A(f"s_lshl_b32 s{sT2}, s{sS}, 19")
    A(f"s_add_u32 s{sT1}, s{sT1}, s{sT2}")
    A(f"s_lshl_b32 s{sT2}, s{sW}, 11")
    A(f"s_add_u32 s{sCNT}, s{sT1}, s{sT2}")
    A(f"v_lshlrev_b32 v{vOFF}, 9, v3")
    A(f"v_lshl_add_u32 v{vOFF}, v2, 4, v{vOFF}")
    A("v_and_b32 v8, 31, v0")
    A("v_lshrrev_b32 v9, 5, v0")
    A("v_mul_u32_u24 v9, 896, v9")
    A("v_lshl_add_u32 v9, v8, 5, v9")
    A("v_cmp_gt_u32 vcc, 28, v8")
    A("v_mov_b32 v10, 0x7fffff00")
    A(f"s_mul_i32 s{sT1}, s{sW}, 1792")
    A("v_cndmask_b32 v10, v10, v9, vcc")
    A("v_mov_b32 v15, 1.0")
    A("v_cndmask_b32 v15, 0, v15, vcc")
    A("s_waitcnt lgkmcnt(0)")
    srd(S_X, 16, 7168)
    srd(S_K, 18, 0x8000000)
    A(f"buffer_load_dwordx4 v[16:19], v10, {sr(S_X,4)}, s{sT1} offen")
    A(f"buffer_load_dwordx4 v[20:23], v10, {sr(S_X,4)}, s{sT1} offen offset:16")
    srd(S_V, 20, 0x8000000)
    A(f"s_mov_b32 s{sBASE}, s{sCNT}")

    NG = 64
    issued = [0]
    L_EXT = 131072 - 4 * E * 2048
    sEXT = 21
    def is_ext(j): return RG0 <= j < RG0 + E
    def slot_of(j):
        assert not is_ext(j)
        return vRING + 8 * ((j if j < RG0 else j - E) % RG0)
    def issue(j):
        s = S_K if j < NG else S_V
        off = (j % NG) * 8192
        out = []
        out.append(f"s_add_u32 s{sOFF}, s{sBASE}, {off}")
        if is_ext(j):
            e = j - RG0
            out.append(f"s_add_u32 m0, s{sEXT}, {e*2048}")
            out.append("s_nop 0")
            out.append(f"buffer_load_dwordx4 v{vOFF}, {sr(s,4)}, s{sOFF} offen nt lds")
            out.append(f"s_add_u32 m0, s{sEXT}, {e*2048 + 1024 - 256}")
            out.append("s_nop 0")
            out.append(f"buffer_load_dwordx4 v{vOFF}, {sr(s,4)}, s{sOFF} offen offset:256 nt lds")
        else:
            r = slot_of(j)
            out.append(f"buffer_load_dwordx4 {vr(r,4)}, v{vOFF}, {sr(s,4)}, s{sOFF} offen nt")
            out.append(f"buffer_load_dwordx4 {vr(r+4,4)}, v{vOFF}, {sr(s,4)}, s{sOFF} offen offset:256 nt")
        issued[0] = j + 1
        return out
    A(f"s_mul_i32 s{sEXT}, s{sW}, {E*2048}")
    A(f"s_add_u32 s{sEXT}, s{sEXT}, {L_EXT}")
    for j in range(RS):
        for x in issue(j): A(x)
    srd(S_WS, 40, WS_SIZE)
    A(f"s_add_u32 s{sT1}, s{sT1}, {L_XN}")
    A(f"v_add_u32 v9, s{sT1}, v9")
    A("v_and_b32 v8, 7, v2")
    A("v_and_b32 v11, 1, v8")
    A("v_mov_b32 v12, 0xffff")
    A("v_lshlrev_b32 v11, 4, v11")
    A("v_lshlrev_b32 v12, v11, v12")
    A("v_lshrrev_b32 v11, 1, v8")
    for k in range(4):
        A(f"v_cmp_eq_u32 vcc, {k}, v11")
        A("s_nop 1")
        A(f"v_cndmask_b32 v{4+k}, 0, v12, vcc")
    A(f"s_mov_b32 s{sSEL0}, 0x01000100")
    A(f"s_mov_b32 s{sSEL1}, 0x03020302")
    A("s_barrier")
    A(f"s_waitcnt vmcnt({2*RS})")
    stamp(5)
    layernorm(16, 16, 32, 48, 64, 15, False)
    A("v_cmp_lt_f32 vcc, 0, v15")
    A(f"s_and_saveexec_b64 s[{sEX}:{sEX+1}], vcc")
    A("ds_write_b128 v9, v[16:19]")
    A("ds_write_b128 v9, v[20:23] offset:16")
    A(f"s_mov_b64 exec, s[{sEX}:{sEX+1}]")
    A(f"v_mov_b32 v9, {L_FLAG+16}")
    lds_inc(9, 10)
    stamp(6)
    for j in range(RS, RG0 + E):
        A(f"s_waitcnt vmcnt({2*(RS-1)})")
        for x in issue(j): A(x)
    A("v_lshlrev_b32 v8, 4, v0")
    A(f"v_add_u32 v8, s{sEXT}, v8")
    for k in range(8): A(f"v_mov_b32 v{vO+k}, 0")
    A(f"v_mov_b32 v{vMAX}, 0xff800000")
    A(f"v_mov_b32 v{vL}, 0")
    A(f"v_lshrrev_b32 v{vT}, 3, v2")
    A(f"v_lshlrev_b32 v{vT}, 9, v{vT}")
    A(f"v_lshl_add_u32 v{vT}, v2, 4, v{vT}")
    A(f"v_xor_b32 v{vT+1}, 512, v{vT}")
    A(f"v_add_u32 v{vT}, {L_QF}, v{vT}")
    A(f"v_add_u32 v{vT+1}, {L_QF}, v{vT+1}")
    stamp(4)
    A("s_barrier")
    stamp(1)
    A(f"ds_read_b128 {vr(vQ,4)}, v{vT}")
    A(f"ds_read_b128 {vr(vQ+4,4)}, v{vT} offset:256")
    A(f"ds_read_b128 {vr(vQ+8,4)}, v{vT+1}")
    A(f"ds_read_b128 {vr(vQ+12,4)}, v{vT+1} offset:256")
    A("s_waitcnt lgkmcnt(0)")

    def after_consume(i):
        out = []
        if is_ext(i): return out
        j = (i + RG0 + E) if i < RG0 else i + RG0
        if j < 2 * NG:
            assert j == issued[0], (i, j, issued[0])
            out.append(f"s_waitcnt vmcnt({2*(RS-1)})")
            out += issue(j)
        return out

    def merge(X, Y, every=3):
        out = []; yi = 0
        for k, x in enumerate(X):
            out.append(x)
            if (k + 1) % every == 0 and yi < len(Y):
                out.append(Y[yi]); yi += 1
        assert yi == len(Y)
        return out

    Yprev = []
    regp = [p for p in range(NG // 2) if not is_ext(2 * p)]
    extp = [p for p in range(NG // 2) if is_ext(2 * p)]
    order = []
    for k, p in enumerate(regp):
        order.append(p)
        if k >= 1 and extp: order.append(extp.pop(0))
    next_ext = [p for p in order if is_ext(2 * p)]
    def ext_read(p):
        e = 2 * p - RG0
        return [f"ds_read_b128 {vr(vA,4)}, v8 offset:{e*2048}",
                f"ds_read_b128 {vr(vA+4,4)}, v8 offset:{e*2048+1024}",
                f"ds_read_b128 {vr(vP,4)}, v8 offset:{e*2048+2048}",
                f"ds_read_b128 {vr(vP+4,4)}, v8 offset:{e*2048+3072}"]
    for oi, p in enumerate(order):
        ga, gb = 2 * p, 2 * p + 1
        ub = vU + 4 * (oi & 1)
        ua_, wa_, ub_, wb_ = ub, ub + 1, ub + 2, ub + 3
        if is_ext(ga):
            ra, rb = vA, vP
            A("s_waitcnt lgkmcnt(0)")
        else:
            ra, rb = slot_of(ga), slot_of(gb)
            n_after = 2 * (issued[0] - (gb + 1))
            nxt = order[oi + 1] if oi + 1 < len(order) else None
            if nxt is not None and is_ext(2 * nxt):
                n_after = min(n_after, 2 * (issued[0] - (2 * nxt + 2)))
                A(f"s_waitcnt vmcnt({n_after})")
                for x in ext_read(nxt): A(x)
            else:
                A(f"s_waitcnt vmcnt({n_after})")
        X = []
        for e in range(8):
            for (acc, r, q) in ((ua_, ra, vQ + e), (wa_, ra, vQ + 8 + e), (ub_, rb, vQ + e), (wb_, rb, vQ + 8 + e)):
                src2 = "0" if e == 0 else f"v{acc}"
                X.append(f"v_dot2_f32_bf16 v{acc}, v{r+e}, v{q}, {src2}")
        for x in merge(X, Yprev): A(x)
        for x in after_consume(ga): A(x)
        for x in after_consume(gb): A(x)
        if E and p == next_ext[-1]:
            A(f"v_mov_b32 v8, {L_FLAG+20}")
            lds_inc(8, 9)
        Y = []
        Y.append(f"v_add_f32_dpp v{ua_}, v{wa_}, v{ua_} row_ror:8 {DPPM}")
        Y.append(f"v_add_f32_dpp v{ub_}, v{wb_}, v{ub_} row_ror:8 {DPPM}")
        for m in ("quad_perm:[1,0,3,2]", "quad_perm:[2,3,0,1]", "row_half_mirror"):
            Y.append(f"v_add_f32_dpp v{ua_}, v{ua_}, v{ua_} {m} {DPPM}")
            Y.append(f"v_add_f32_dpp v{ub_}, v{ub_}, v{ub_} {m} {DPPM}")
        Y.append(f"v_cvt_pk_bf16_f32 v{vSC+p}, v{ua_}, v{ub_}")
        Y.append(f"v_max3_f32 v{vMAX}, v{ua_}, v{ub_}, v{vMAX}")
        Yprev = Y
    A("s_nop 2")
    for y in Yprev:
        A(y); A("s_nop 1")
    for s_ in ("v_permlane16_swap_b32", "v_permlane32_swap_b32"):
        A(f"v_mov_b32 v{vT}, v{vMAX}")
        A("s_nop 1")
        A(f"{s_} v{vMAX}, v{vT}")
        A("s_nop 1")
        A(f"v_max_f32 v{vMAX}, v{vMAX}, v{vT}")
    rbf(vMAX)
    A(f"v_mul_f32 v{vNMC}, s{sC}, v{vMAX}")
    A(f"v_sub_f32 v{vNMC}, 0, v{vNMC}")
    stamp(2)

    def ppair(pi):
        sc = vSC + pi
        a, b = vP + 2, vP + 3
        return [f"v_lshlrev_b32 v{a}, 16, v{sc}",
                f"v_and_b32 v{b}, 0xffff0000, v{sc}",
                f"v_fma_f32 v{a}, v{a}, s{sC}, v{vNMC}",
                f"v_fma_f32 v{b}, v{b}, s{sC}, v{vNMC}",
                f"v_exp_f32 v{a}, v{a}",
                f"v_exp_f32 v{b}, v{b}",
                f"v_add_f32 v{vL}, v{vL}, v{a}",
                f"v_cvt_pk_bf16_f32 v{sc}, v{a}, v{b}",
                f"v_add_f32 v{vL}, v{vL}, v{b}"]
    def abuild(i):
        a = vA + 4 * (i & 1)
        t = vP + (i & 1)
        sc = vSC + (i >> 1)
        out = [f"v_perm_b32 v{t}, v{sc}, v{sc}, s{sSEL1 if i & 1 else sSEL0}"]
        for k in range(4): out.append(f"v_and_b32 v{a+k}, v{4+k}, v{t}")
        return out
    for x in ppair(0): A(x)
    for x in abuild(0): A(x)
    nextp = [1]
    LDONE = (31 + PP - 1) // PP - 1
    for i in range(NG):
        gi = NG + i
        r = slot_of(gi)
        a = vA + 4 * (i & 1)
        n_after = 2 * (issued[0] - (gi + 1))
        if nextp[0] < 32:
            for _ in range(PP):
                if nextp[0] < 32:
                    for x in ppair(nextp[0]): A(x)
                    nextp[0] += 1
        else:
            A("s_nop 0")
        A(f"s_waitcnt vmcnt({n_after})")
        A(f"v_mfma_f32_16x16x32_bf16 {vr(vO,4)}, {vr(a,4)}, {vr(r,4)}, {vr(vO,4)}")
        A(f"v_mfma_f32_16x16x32_bf16 {vr(vO+4,4)}, {vr(a,4)}, {vr(r+4,4)}, {vr(vO+4,4)}")
        for x in after_consume(gi): A(x)
        if i + 1 < NG:
            for x in abuild(i + 1): A(x)
        if i == LDONE:
            assert nextp[0] == 32
            for s_ in ("v_permlane16_swap_b32", "v_permlane32_swap_b32"):
                A(f"v_mov_b32 v{vT}, v{vL}")
                A("s_nop 1")
                A(f"{s_} v{vL}, v{vT}")
                A("s_nop 1")
                A(f"v_add_f32 v{vL}, v{vL}, v{vT}")
            A(f"v_and_b32 v{vT}, 8, v2")
            A(f"s_lshl_b32 s{sT1}, s{sW}, 4")
            A(f"s_add_u32 s{sT1}, s{sT1}, {L_STAT}")
            A(f"v_add_u32 v{vT}, s{sT1}, v{vT}")
            A(f"v_mov_b32 v{vP+4}, v{vMAX}")
            A(f"v_mov_b32 v{vP+5}, v{vL}")
            A(f"ds_write_b64 v{vT}, {vr(vP+4,2)}")
            A(f"v_mov_b32 v{vT}, {L_FLAG}")
            lds_inc(vT, vT + 1)
            A("v_lshrrev_b32 v16, 1, v3")
            A("v_lshlrev_b32 v17, 2, v16")
            A("v_lshlrev_b32 v16, 10, v16")
            A("v_lshl_add_u32 v16, v2, 5, v16")
            A("v_and_b32 v18, 1, v3")
            A("v_lshl_add_u32 v16, v18, 4, v16")
            A(f"s_lshl_b32 s{sT1}, s{sW}, 11")
            A(f"s_add_u32 s{sT1}, s{sT1}, {L_PART}")
            A(f"v_add_u32 v16, s{sT1}, v16")
            A(f"s_lshl_b32 s{sT1}, s{sW}, 3")
            A(f"s_add_u32 s{sT1}, s{sT1}, {L_F}")
            A(f"v_add_u32 v17, s{sT1}, v17")
            A(f"v_mov_b32 v18, {L_FLAG+4}")
        if i == NG - 6:
            lds_wait(18, 19, 1)
            A("ds_read_b32 v19, v17")
            A("s_waitcnt lgkmcnt(0)")
    A("s_nop 7")
    for k in range(8): A(f"v_mul_f32 v{vO+k}, v{vO+k}, v19")
    A(f"ds_write_b128 v16, {vr(vO,4)}")
    A(f"ds_write_b128 v16, {vr(vO+4,4)} offset:512")
    A("s_waitcnt lgkmcnt(0)")
    stamp(3)
    A("s_barrier")
    A("s_branch L_t3pre")

    A.lab("L_helper")
    sW = sWAVE
    vTH = 1
    vX = 32
    vY = 80
    vW1 = 144
    vW2 = 200
    A(f"s_lshl_b32 s{sT1}, s{sW}, 6")
    A(f"v_add_u32 v{vTH}, s{sT1}, v0")
    A(f"s_lshr_b32 s{sT1}, s2, 3")
    A(f"s_lshl_b32 s{sT2}, s{sHKV}, 5")
    A(f"s_add_u32 s{sT2}, s{sT2}, s{sT1}")
    A("s_waitcnt lgkmcnt(0)")
    srd(S_WS, 40, WS_SIZE)
    srd(S_WQ, 22, 448 * 8192)
    srd(S_DBG, 38, 256)
    A(f"s_cmp_eq_u32 s{sW}, 0")
    A("s_cbranch_scc1 L_h0")
    A(f"s_cmp_eq_u32 s{sW}, 3")
    A("s_cbranch_scc1 L_h3")
    A("v_mov_b32 v12, 0")
    A(f"v_lshlrev_b32 v13, 2, v2")
    A(f"v_add_u32 v13, {L_FLAG}, v13")
    A("ds_write_b32 v13, v12")
    A("s_waitcnt lgkmcnt(0)")
    A("s_barrier")
    A("s_branch L_hb2")

    A.lab("L_h0")
    A("v_lshrrev_b32 v13, 1, v0")
    A("v_lshlrev_b32 v13, 13, v13")
    A("v_and_b32 v14, 1, v0")
    A("v_lshl_add_u32 v13, v14, 4, v13")
    A(f"s_lshl_b32 s{sT1}, s{sT2}, 5")
    for i in range(14):
        A(f"s_mov_b32 m0, {L_WQ + i*1024}")
        A(f"s_add_u32 s{sCNT}, s{sT1}, {i*32*8192}")
        A(f"buffer_load_dwordx4 v13, {sr(S_WQ,4)}, s{sCNT} offen nt lds")
    A("s_barrier")
    A("v_lshrrev_b32 v12, 2, v2")
    A("v_lshl_add_u32 v12, v3, 3, v12")
    A("v_lshlrev_b32 v12, 5, v12")
    A("v_and_b32 v13, 3, v2")
    A("v_lshl_add_u32 v12, v13, 3, v12")
    A("v_and_b32 v13, 7, v2")
    A("v_mul_u32_u24 v13, 896, v13")
    A("v_lshl_add_u32 v13, v3, 4, v13")
    A("v_lshlrev_b32 v14, 14, v2")
    A("v_lshl_add_u32 v14, v3, 4, v14")
    A(f"s_lshl_b32 s{sT1}, s{sT2}, 6")
    A(f"v_mov_b32 v29, s{sTAG}")
    A(f"v_mov_b32 v31, s{sTAG}")
    A("s_waitcnt vmcnt(0)")
    stamp(5, 'q')
    for kk in range(14):
        r = 80 + 4 * kk
        A(f"ds_read_b64_tr_b16 {vr(r,2)}, v12 offset:{L_WQ + kk*1024}")
        A(f"ds_read_b64_tr_b16 {vr(r+2,2)}, v12 offset:{L_WQ + kk*1024+128}")
        if kk == 6: A("s_waitcnt lgkmcnt(0)")
    A("s_waitcnt lgkmcnt(0)")
    A(f"v_mov_b32 v15, {L_FLAG+16}")
    lds_wait(15, 16, 5, sleep=0)
    stamp(6, 'q')
    for kk in range(14):
        A(f"ds_read_b128 {vr(144+4*kk,4)}, v13 offset:{L_XN + kk*64}")
    for kk in range(14):
        A(f"s_waitcnt lgkmcnt({13-kk})")
        c = "0" if kk == 0 else "v[24:27]"
        A(f"v_mfma_f32_16x16x32_bf16 v[24:27], {vr(80+4*kk,4)}, {vr(144+4*kk,4)}, {c}")
    A("v_cmp_gt_u32 vcc, 8, v2")
    A("s_nop 6")
    A("v_cvt_pk_bf16_f32 v28, v24, v25")
    A("v_cvt_pk_bf16_f32 v30, v26, v27")
    A(f"s_and_saveexec_b64 s[{sEX}:{sEX+1}], vcc")
    A(f"buffer_store_dwordx4 v[28:31], v14, {sr(S_WS,4)}, s{sT1} offen sc1")
    A(f"s_mov_b64 exec, s[{sEX}:{sEX+1}]")
    stamp(7, 'q')
    A("s_branch L_hb2")

    A.lab("L_h3")
    for k in range(4): A(f"v_mov_b32 v{24+k}, 0")
    A("v_lshlrev_b32 v14, 14, v2")
    A("v_lshl_add_u32 v14, v3, 4, v14")
    A(f"s_lshl_b32 s{sT1}, s{sT2}, 6")
    A("v_cmp_gt_u32 vcc, 8, v2")
    A(f"s_and_saveexec_b64 s[{sEX}:{sEX+1}], vcc")
    A(f"buffer_store_dwordx4 v[24:27], v14, {sr(S_WS,4)}, s{sT1} offen sc1")
    A(f"s_mov_b64 exec, s[{sEX}:{sEX+1}]")
    A("v_lshlrev_b32 v14, 4, v0")
    A(f"s_lshl_b32 s{sA}, s{sLID}, 7")
    A(f"s_add_u32 s{sA}, s{sA}, {WS_ML}")
    A("s_mov_b64 exec, 0xff")
    A(f"buffer_store_dwordx4 v[24:27], v14, {sr(S_WS,4)}, s{sA} offen sc1")
    A("s_mov_b64 exec, -1")
    A(f"s_lshl_b32 s{sT1}, s{sLID}, 12")
    A(f"s_add_u32 s{sT1}, s{sT1}, {WS_OB1}")
    for k in range(4):
        A(f"buffer_store_dwordx4 v[24:27], v14, {sr(S_WS,4)}, s{sT1} offen offset:{k*1024} sc1")
    A(f"s_add_u32 s{sT1}, s{sT1}, {WS_OB3-WS_OB1}")
    for k in range(4):
        A(f"buffer_store_dwordx4 v[24:27], v14, {sr(S_WS,4)}, s{sT1} offen offset:{k*1024} sc1")
    A(f"s_lshl_b32 s{sT1}, s{sLID}, 10")
    A(f"s_add_u32 s{sT1}, s{sT1}, {WS_OB2}")
    A(f"buffer_store_dwordx4 v[24:27], v14, {sr(S_WS,4)}, s{sT1} offen sc1")
    A("s_barrier")
    A("v_mov_b32 v12, 1")
    A("v_mov_b32 v13, 0")
    A(f"v_mov_b32 v15, s{sTAG}")
    A(f"s_lshl_b32 s{sD}, s{sHKV}, 5")
    A("v_lshrrev_b32 v16, 2, v0")
    A("v_lshlrev_b32 v16, 5, v16")
    A("v_and_b32 v17, 3, v0")
    A("v_add_u32 v16, v16, v17")
    A("v_lshlrev_b32 v16, 7, v16")
    A("v_lshlrev_b32 v17, 7, v0")
    A("s_waitcnt vmcnt(0)")
    stamp(5, 'q')
    A("s_mov_b64 exec, 1")
    A(f"buffer_atomic_add v12, v13, {sr(S_DBG,4)}, s{sD} offen sc0 sc1")
    A("s_mov_b64 exec, -1")
    A(f"v_mov_b32 v18, {L_FLAG+16}")
    lds_inc(18, 19)
    A("s_waitcnt vmcnt(0)")
    A(f"v_readfirstlane_b32 s{sBq}, v12")
    A("s_nop 3")
    A(f"s_and_b32 s{sBq}, s{sBq}, 31")
    A(f"s_cmp_lg_u32 s{sBq}, 31")
    A("s_cbranch_scc1 L_notlast")
    A(f"s_lshl_b32 s{sD}, s{sHKV}, 9")
    A(f"s_add_u32 s{sD}, s{sD}, {WS_ML+64}")
    A("s_mov_b32 exec_hi, 0")
    A(f"buffer_store_dword v15, v16, {sr(S_WS,4)}, s{sD} offen sc1")
    A("v_mov_b32 v12, 1")
    A("s_mov_b64 exec, 1")
    A(f"buffer_atomic_add v12, v13, {sr(S_DBG,4)}, 0 offen offset:16 sc0 sc1")
    A("s_mov_b64 exec, -1")
    A("s_waitcnt vmcnt(0)")
    A(f"v_readfirstlane_b32 s{sBq}, v12")
    A("s_nop 3")
    A(f"s_and_b32 s{sBq}, s{sBq}, 7")
    A(f"s_cmp_lg_u32 s{sBq}, 7")
    A("s_cbranch_scc1 L_notlast")
    for k in range(4):
        A(f"s_mov_b32 s{sD}, {WS_ML + 96 + k*8192}")
        A(f"buffer_store_dword v15, v17, {sr(S_WS,4)}, s{sD} offen sc1")
    A.lab("L_notlast")
    stamp(6, 'q')
    poll([f"buffer_load_dword v18, v13, {sr(S_WS,4)}, s{sA} offen offset:64 sc1"], [18], 19, 20, spin)
    stamp(7, 'q')
    A("v_lshlrev_b32 v12, 5, v0")
    A(f"s_lshl_b32 s{sD}, s{sB}, 14")
    A(f"s_lshl_b32 s{sBq}, s{sHKV}, 11")
    A(f"s_add_u32 s{sD}, s{sD}, s{sBq}")
    A(f"v_add_u32 v14, {L_QF}, v14")
    poll([f"buffer_load_dwordx4 v[16:19], v12, {sr(S_WS,4)}, s{sD} offen sc1",
          f"buffer_load_dwordx4 v[20:23], v12, {sr(S_WS,4)}, s{sD} offen offset:16 sc1"], [17, 19, 21, 23], 24, 25, spin)
    A("v_mov_b32 v17, v18")
    A("v_mov_b32 v18, v20")
    A("v_mov_b32 v19, v22")
    A("ds_write_b128 v14, v[16:19]")
    A("s_waitcnt lgkmcnt(0)")
    stamp(8, 'q')
    A("s_barrier")
    poll([f"buffer_load_dword v18, v13, {sr(S_WS,4)}, s{sA} offen offset:96 sc1"], [18], 19, 20, spin)
    A("s_branch L_hw")

    A.lab("L_hb2")
    A("s_barrier")
    A.lab("L_hw")
    srd(S_X, 16, 7168) if False else None
    A("s_load_dwordx16 s[16:31], s[0:1], 0") if not stamps else None
    if stamps:
        A("s_load_dwordx2 s[16:17], s[0:1], 0")
        A("s_load_dwordx2 s[24:25], s[0:1], 32")
        A("s_load_dwordx4 s[20:23], s[0:1], 48")
        A("s_load_dwordx2 s[18:19], s[0:1], 64")
        A("s_load_dwordx4 s[64:67], s[0:1], 72")
        A("s_waitcnt lgkmcnt(0)")
        srd(S_X, 16, 7168)
        srd(S_WO, 24, 4096 * 896)
        srd(S_B2, 64, 896)
        srd(S_OUT, 66, 7168)
        srd(S_W1, 20, 448 * 3584)
        srd(S_B1, 22, 3584)
        srd(S_W2, 18, 1792 * 896)
    else:
        A("s_waitcnt lgkmcnt(0)")
        srd(S_X, 16, 7168)
        srd(S_WO, 24, 4096 * 896)
        srd(S_W1, 28, 448 * 3584)
        srd(S_B1, 30, 3584)
        srd(S_W2, 32, 1792 * 896)
        srd(S_B2, 34, 896)
        srd(S_OUT, 36, 7168)

    def pace():
        A(f"s_waitcnt vmcnt({wpace-1})")
    A(f"v_lshlrev_b32 v12, 2, v{vTH}")
    A(f"s_mul_i32 s{sD}, s{sB}, 896")
    A(f"buffer_load_dword v64, v12, {sr(S_X,4)}, s{sD} offen")
    A("v_lshlrev_b32 v12, 3, v3")
    A(f"s_lshl_b32 s{sD}, s{sI}, 7")
    A(f"s_lshl_b32 s{sA}, s{sW}, 5")
    A(f"s_add_u32 s{sD}, s{sD}, s{sA}")
    A(f"buffer_load_dwordx2 v[66:67], v12, {sr(S_B1,4)}, s{sD} offen")
    A("v_and_b32 v12, 7, v0")
    A("v_lshlrev_b32 v12, 2, v12")
    A(f"s_lshl_b32 s{sD}, s{sI}, 5")
    A(f"buffer_load_dword v65, v12, {sr(S_B2,4)}, s{sD} offen")
    A("v_lshrrev_b32 v68, 2, v2")
    A("v_lshl_add_u32 v68, v3, 3, v68")
    A("v_and_b32 v69, 3, v2")
    A(f"s_cmp_ge_u32 s{sI}, 28")
    A("s_cbranch_scc1 L_noffn")
    if E > 8:
        A(f"v_mov_b32 v13, {L_FLAG+20}")
        lds_wait(13, 14, 4)
    A("v_lshrrev_b32 v12, 3, v0")
    A("v_mul_u32_u24 v12, 3584, v12")
    A("v_and_b32 v13, 7, v0")
    A("v_lshl_add_u32 v12, v13, 4, v12")
    A(f"s_mul_i32 s{sA}, s{sW}, {14*8*3584}")
    A(f"s_lshl_b32 s{sD}, s{sI}, 7")
    A(f"s_add_u32 s{sA}, s{sA}, s{sD}")
    A(f"s_mul_i32 s{sBq}, s{sW}, {14*1024}")
    for u in range(14):
        pace()
        A(f"s_add_u32 m0, s{sBq}, {L_W1S + u*1024}")
        A(f"s_add_u32 s{sD}, s{sA}, {u*8*3584}")
        if not now: A(f"buffer_load_dwordx4 v12, {sr(S_W1,4)}, s{sD} offen nt lds")
    if E:
        A(f"v_mov_b32 v13, {L_FLAG+20}")
        lds_wait(13, 14, 4)
    A("v_lshlrev_b32 v12, 4, v0")
    A(f"s_mul_i32 s{sA}, s{sI}, 57344")
    A(f"s_add_u32 s{sA}, s{sA}, s{sBq}")
    for u in range(14):
        pace()
        A(f"s_add_u32 m0, s{sBq}, {L_W2S + u*1024}")
        A(f"s_add_u32 s{sD}, s{sA}, {u*1024}")
        if not now: A(f"buffer_load_dwordx4 v12, {sr(S_W2,4)}, s{sD} offen nt lds")
    A("s_waitcnt vmcnt(0)")
    A(f"v_mov_b32 v12, {L_FLAG+8}")
    lds_inc(12, 13)
    lds_wait(12, 13, 4)
    A("v_lshlrev_b32 v12, 7, v68")
    A("v_lshl_add_u32 v12, v69, 3, v12")
    A(f"s_lshl_b32 s{sA}, s{sW}, 5")
    A(f"v_add_u32 v12, s{sA}, v12")
    for ks in range(14):
        A(f"ds_read_b64_tr_b16 {vr(vW1+4*ks,2)}, v12 offset:{L_W1S + ks*4096}")
        A(f"ds_read_b64_tr_b16 {vr(vW1+4*ks+2,2)}, v12 offset:{L_W1S + ks*4096 + 512}")
        if ks % 6 == 5: A("s_waitcnt lgkmcnt(0)")
    A("s_waitcnt lgkmcnt(0)")
    A("v_mul_u32_u24 v12, 896, v68")
    A("v_lshl_add_u32 v12, v69, 3, v12")
    A(f"s_mul_i32 s{sA}, s{sW}, 224")
    A(f"s_add_u32 s{sA}, s{sA}, {L_W2S}")
    A(f"v_add_u32 v12, s{sA}, v12")
    for j in range(7):
        for ks in range(2):
            r = vW2 + 4 * (2 * j + ks)
            A(f"ds_read_b64_tr_b16 {vr(r,2)}, v12 offset:{ks*28672 + j*32}")
            A(f"ds_read_b64_tr_b16 {vr(r+2,2)}, v12 offset:{ks*28672 + 3584 + j*32}")
        if j % 3 == 2: A("s_waitcnt lgkmcnt(0)")
    A("s_waitcnt lgkmcnt(0)")
    A(f"v_mov_b32 v12, {L_FLAG+12}")
    lds_inc(12, 13)
    lds_wait(12, 13, 4)
    A.lab("L_noffn")
    if E:
        A(f"v_mov_b32 v13, {L_FLAG+20}")
        lds_wait(13, 14, 4)
    A("v_lshlrev_b32 v12, 1, v3")
    A("v_xor_b32 v12, v12, v2")
    A("v_xor_b32 v13, 8, v12")
    A("v_mul_u32_u24 v14, 896, v3")
    A("v_lshl_add_u32 v12, v12, 4, v14")
    A("v_lshl_add_u32 v13, v13, 4, v14")
    A(f"s_lshl_b32 s{sA}, s{sHKV}, 9")
    A(f"s_lshl_b32 s{sD}, s{sW}, 7")
    A(f"s_add_u32 s{sA}, s{sA}, s{sD}")
    A(f"s_mul_i32 s{sA}, s{sA}, 896")
    A(f"s_lshl_b32 s{sD}, s{sS}, 8")
    A(f"s_add_u32 s{sA}, s{sA}, s{sD}")
    A(f"s_lshl_b32 s{sBq}, s{sW}, 15")
    for tt in range(32):
        pace()
        A(f"s_add_u32 m0, s{sBq}, {L_WO + tt*1024}")
        A(f"s_add_u32 s{sD}, s{sA}, {tt*4*896}")
        if not now: A(f"buffer_load_dwordx4 v{13 if (tt>>1)&1 else 12}, {sr(S_WO,4)}, s{sD} offen nt lds")
    A("s_waitcnt vmcnt(0)")
    stamp(9)
    A(f"s_cmp_lg_u32 s{sW}, 0")
    A("s_cbranch_scc1 L_nostat")
    A(f"v_mov_b32 v12, {L_FLAG}")
    lds_wait(12, 13, 4, sleep=8)
    A("v_and_b32 v14, 1, v0")
    A("v_lshlrev_b32 v12, 3, v14")
    A(f"v_add_u32 v12, {L_STAT}, v12")
    for w in range(4): A(f"ds_read_b64 {vr(16+2*w,2)}, v12 offset:{w*16}")
    A("s_waitcnt lgkmcnt(0)")
    A("v_max_f32 v24, v16, v18")
    A("v_max3_f32 v24, v20, v22, v24")
    for w in range(4):
        A(f"v_sub_f32 v{28+w}, v{16+2*w}, v24")
        A(f"v_mul_f32 v{28+w}, s{sC}, v{28+w}")
        A(f"v_exp_f32 v{28+w}, v{28+w}")
    A("s_nop 0")
    A("v_mul_f32 v26, v28, v17")
    for w in range(1, 4): A(f"v_fma_f32 v26, v{28+w}, v{17+2*w}, v26")
    A(f"v_mov_b32 v25, s{sTAG}")
    A(f"v_mov_b32 v27, s{sTAG}")
    A("v_lshlrev_b32 v15, 4, v14")
    A(f"s_lshl_b32 s{sD}, s{sLID}, 7")
    A(f"s_add_u32 s{sD}, s{sD}, {WS_ML}")
    A("s_mov_b64 exec, 3")
    A(f"buffer_store_dwordx4 v[24:27], v15, {sr(S_WS,4)}, s{sD} offen sc1")
    A("s_mov_b64 exec, -1")
    for p in range(1, 4): A(f"s_xor_b32 s{20+p}, s{sD}, {p*128}")
    poll([f"buffer_load_dwordx4 {vr(32+4*(p-1),4)}, v15, {sr(S_WS,4)}, s{20+p} offen sc1" for p in range(1, 4)],
         [33, 35, 37, 39, 41, 43], 12, 44, spin)
    A("v_max_f32 v46, v24, v32")
    A("v_max3_f32 v46, v36, v40, v46")
    Ms = [24, 32, 36, 40]; Ls = [26, 34, 38, 42]
    for k in range(4):
        A(f"v_sub_f32 v{48+k}, v{Ms[k]}, v46")
        A(f"v_mul_f32 v{48+k}, s{sC}, v{48+k}")
        A(f"v_exp_f32 v{48+k}, v{48+k}")
    A("s_nop 0")
    A(f"v_mul_f32 v47, v48, v{Ls[0]}")
    for k in range(1, 4): A(f"v_fma_f32 v47, v{48+k}, v{Ls[k]}, v47")
    A("v_rcp_f32 v52, v47")
    A("s_nop 0")
    A("v_fma_f32 v53, -v47, v52, 1.0")
    A("v_fma_f32 v52, v53, v52, v52")
    for w in range(4):
        A(f"v_sub_f32 v{28+w}, v{16+2*w}, v46")
        A(f"v_mul_f32 v{28+w}, s{sC}, v{28+w}")
        A(f"v_exp_f32 v{28+w}, v{28+w}")
    A("s_nop 0")
    for w in range(4): A(f"v_mul_f32 v{28+w}, v{28+w}, v52")
    A("v_lshlrev_b32 v12, 2, v14")
    A(f"v_add_u32 v12, {L_F}, v12")
    for w in range(4): A(f"ds_write_b32 v12, v{28+w} offset:{w*8}")
    A(f"v_mov_b32 v12, {L_FLAG+4}")
    lds_inc(12, 13)
    A("s_waitcnt lgkmcnt(0)")
    A.lab("L_nostat")
    stamp(10)
    A("v_cmp_gt_u32 vcc, 56, v0")
    A("v_mov_b32 v11, 1.0")
    A("v_lshlrev_b32 v70, 16, v64")
    A("v_cndmask_b32 v11, 0, v11, vcc")
    A("v_and_b32 v71, 0xffff0000, v64")
    A("v_lshlrev_b32 v72, 16, v66")
    A("v_and_b32 v73, 0xffff0000, v66")
    A("v_lshlrev_b32 v74, 16, v67")
    A("v_and_b32 v75, 0xffff0000, v67")
    A("v_lshlrev_b32 v76, 16, v65")
    A("v_and_b32 v77, 0xffff0000, v65")
    A(f"s_mov_b32 s{sDRY}, {1 if dry else 0}")

    def tbar():
        lab = A.newlab("L_nb")
        A(f"s_cmp_lg_u32 s{sDRY}, 0")
        A(f"s_cbranch_scc1 {lab}")
        A("s_barrier")
        A.lab(lab)
    class skipdry:
        def __enter__(self):
            self.lab = A.newlab("L_sk")
            A(f"s_cmp_lg_u32 s{sDRY}, 0")
            A(f"s_cbranch_scc1 {self.lab}")
        def __exit__(self, *a):
            A.lab(self.lab)

    A.lab("L_tail")
    A(f"v_lshlrev_b32 v12, 3, v{vTH}")
    A(f"v_add_u32 v12, {L_PART}, v12")
    A(f"v_lshlrev_b32 v14, 4, v{vTH}")
    A(f"s_lshl_b32 s{sD}, s{sLID}, 12")
    A(f"s_add_u32 s{sD}, s{sD}, {WS_OB1}")
    for p in range(1, 4): A(f"s_xor_b32 s{20+p}, s{sD}, {p*4096}")
    A(f"v_mov_b32 v25, s{sTAG}")
    A(f"v_mov_b32 v27, s{sTAG}")
    A(f"v_lshlrev_b32 v15, 2, v{vTH}")
    A(f"v_add_u32 v15, {L_OBF}, v15")
    tbar()
    stamp(1)
    for w in range(4): A(f"ds_read_b64 {vr(16+2*w,2)}, v12 offset:{w*2048}")
    A("s_waitcnt lgkmcnt(0)")
    A("v_add_f32 v24, v16, v18")
    A("v_add_f32 v26, v17, v19")
    A("v_add_f32 v16, v20, v22")
    A("v_add_f32 v17, v21, v23")
    A("v_add_f32 v24, v24, v16")
    A("v_add_f32 v26, v26, v17")
    with skipdry():
        A(f"buffer_store_dwordx4 v[24:27], v14, {sr(S_WS,4)}, s{sD} offen sc1")

    A.lab("L_t3pre")
    A("v_lshrrev_b32 v4, 2, v2")
    A("v_and_b32 v5, 1, v3")
    A("v_lshl_or_b32 v5, v5, 2, v4")
    A(f"v_xor_b32 v5, s{sWAVE}, v5")
    A("v_lshlrev_b32 v5, 5, v5")
    A("v_and_b32 v6, 3, v2")
    A("v_lshl_add_u32 v5, v6, 3, v5")
    A("v_lshl_add_u32 v4, v3, 3, v4")
    A("v_lshl_add_u32 v5, v4, 8, v5")
    A("v_add_u32 v6, 0x10000, v5")
    for ks in range(16):
        b = 5 if ks < 8 else 6
        A(f"ds_read_b64_tr_b16 {vr(vY+4*ks,2)}, v{b} offset:{(ks%8)*8192}")
        A(f"ds_read_b64_tr_b16 {vr(vY+4*ks+2,2)}, v{b} offset:{(ks%8)*8192 + 1024}")
        if ks % 6 == 5: A("s_waitcnt lgkmcnt(2)")
    A("v_lshlrev_b32 v4, 4, v3")
    A(f"v_add_u32 v4, {L_OBF}, v4")
    A("v_lshlrev_b32 v7, 5, v3")
    A("v_lshl_add_u32 v7, v2, 4, v7")
    A(f"s_lshl_b32 s{sT1}, s{sLID}, 10")
    A(f"s_add_u32 s{sT1}, s{sT1}, {WS_OB2}")
    A(f"s_lshl_b32 s{sT2}, s{sWAVE}, 7")
    A(f"s_add_u32 s{sT1}, s{sT1}, s{sT2}")
    A("s_mov_b32 s26, 0x00030003")
    A("s_mov_b32 s27, 0x00030003")
    A("v_and_b32 v6, 1, v2")
    A(f"v_mov_b32 v9, s{sTAG}")
    A(f"s_cmp_ge_u32 s{sWAVE}, 4")
    A("s_cbranch_scc1 L_t3")
    with skipdry():
        poll([f"buffer_load_dwordx4 {vr(vX+4*(p-1),4)}, v14, {sr(S_WS,4)}, s{20+p} offen sc1" for p in range(1, 4)],
             [vX+1, vX+3, vX+5, vX+7, vX+9, vX+11], 12, 16, spin)
    stamp(2)
    A(f"v_add_f32 v24, v24, v{vX}")
    A(f"v_add_f32 v26, v26, v{vX+2}")
    A(f"v_add_f32 v16, v{vX+4}, v{vX+8}")
    A(f"v_add_f32 v17, v{vX+6}, v{vX+10}")
    A("v_add_f32 v24, v24, v16")
    A("v_add_f32 v26, v26, v17")
    A("v_cvt_pk_bf16_f32 v24, v24, v26")
    A("ds_write_b32 v15, v24")
    A.lab("L_t3")
    A("s_waitcnt lgkmcnt(0)")
    tbar()
    for ks in range(8): A(f"ds_read_b128 {vr(vX+4*ks,4)}, v4 offset:{ks*64}")
    for ks in range(16):
        A(f"s_waitcnt lgkmcnt({min(7, 15-ks)})")
        c = "0" if ks == 0 else "v[16:19]"
        A(f"v_mfma_f32_16x16x32_bf16 v[16:19], {vr(vY+4*ks,4)}, {vr(vX+4*(ks%8),4)}, {c}")
        if ks < 8: A(f"ds_read_b128 {vr(vX+4*ks,4)}, v4 offset:{(ks+8)*64}")
    A("v_cmp_eq_u32 vcc, 1, v6")
    A("v_mov_b32 v21, v9")
    A("v_mov_b32 v23, v9")
    A("s_nop 4")
    A("v_cndmask_b32 v20, v16, v18, vcc")
    A("v_cndmask_b32 v22, v17, v19, vcc")
    with skipdry():
        A("s_mov_b64 exec, s[26:27]")
        A(f"buffer_store_dwordx4 v[20:23], v7, {sr(S_WS,4)}, s{sT1} offen sc1")
        A("s_mov_b64 exec, -1")
    stamp(8, 't')
    A(f"s_cmp_ge_u32 s{sWAVE}, 4")
    A("s_cbranch_scc1 L_send")
    A(f"s_cmp_ge_u32 s{sI}, 28")
    A("s_cbranch_scc1 L_fin")
    A("v_lshlrev_b32 v12, 4, v0")
    A(f"s_lshl_b32 s{sD}, s{sB}, 5")
    A(f"s_add_u32 s{sD}, s{sD}, s{sW}")
    A(f"s_lshl_b32 s{sD}, s{sD}, 10")
    A(f"s_add_u32 s{sD}, s{sD}, {WS_OB2}")
    A(f"v_lshlrev_b32 v14, 2, v{vTH}")
    A(f"v_add_u32 v14, {L_H}, v14")
    A(f"v_add_u32 v15, {L_H}, v12")
    A(f"s_lshl_b32 s{sA}, s{sW}, 10")
    A(f"s_add_u32 s{sA}, s{sA}, {L_XN2}")
    A(f"v_add_u32 v4, s{sA}, v12")
    A("v_lshlrev_b32 v5, 4, v3")
    A(f"v_add_u32 v6, {L_R2}, v5")
    A(f"v_add_u32 v5, s{sA}, v5")
    A("v_lshlrev_b32 v7, 3, v3")
    A(f"s_lshl_b32 s{sA}, s{sW}, 5")
    A(f"s_add_u32 s{sA}, s{sA}, {L_R2}")
    A(f"v_add_u32 v7, s{sA}, v7")
    for k in range(56): A(f"v_mov_b32 v{vY+k}, 0")
    with skipdry():
        loads = []
        for h in range(8):
            loads.append(f"s_add_u32 s{sA}, s{sD}, {h*4096}")
            loads.append(f"buffer_load_dwordx4 {vr(vX+4*h,4)}, v12, {sr(S_WS,4)}, s{sA} offen sc1")
        poll(loads, [vX + 1 + 2 * k for k in range(16)], 13, 16, spin)
    stamp(3)
    tree_add(24, [vX + 4 * h for h in range(8)], 16)
    tree_add(25, [vX + 2 + 4 * h for h in range(8)], 26)
    A("v_cvt_pk_bf16_f32 v24, v24, v25")
    A("v_lshlrev_b32 v25, 16, v24")
    A("v_and_b32 v24, 0xffff0000, v24")
    A("v_add_f32 v25, v25, v70")
    A("v_add_f32 v24, v24, v71")
    A("v_cvt_pk_bf16_f32 v24, v25, v24")
    A("ds_write_b32 v14, v24")
    for k in range(4): A(f"v_mov_b32 v{16+k}, 0")
    A("s_waitcnt lgkmcnt(0)")
    tbar()
    A("s_mov_b32 exec_hi, 0x00ffffff")
    A("ds_read_b128 v[16:19], v15")
    A("s_mov_b64 exec, -1")
    A("s_waitcnt lgkmcnt(0)")
    layernorm(16, 8, 20, 32, 28, 11, True)
    A("ds_write_b128 v4, v[16:19]")
    A("s_waitcnt lgkmcnt(0)")
    stamp(5, 't')
    for ks in range(8): A(f"ds_read_b128 {vr(vX+4*ks,4)}, v5 offset:{ks*64}")
    for ks in range(14):
        nout = min(14, ks + 8) - ks - 1
        A(f"s_waitcnt lgkmcnt({nout})")
        c = "0" if ks == 0 else "v[16:19]"
        A(f"v_mfma_f32_16x16x32_bf16 v[16:19], {vr(vW1+4*ks,4)}, {vr(vX+4*(ks%8),4)}, {c}")
        if ks + 8 < 14: A(f"ds_read_b128 {vr(vX+4*ks,4)}, v5 offset:{(ks+8)*64}")
    A("v_lshrrev_b32 v8, 1, v2")
    A("v_lshlrev_b32 v8, 7, v8")
    A("v_and_b32 v10, 1, v2")
    A("v_lshl_add_u32 v8, v10, 4, v8")
    A("v_lshl_add_u32 v8, v3, 5, v8")
    A(f"s_lshl_b32 s{sD}, s{sLID}, 12")
    A(f"s_add_u32 s{sD}, s{sD}, {WS_OB3}")
    A(f"s_mul_i32 s{sA}, s{sW}, 896")
    A(f"s_add_u32 s{sD}, s{sD}, s{sA}")
    A("v_cvt_pk_bf16_f32 v20, v16, v17")
    A("v_cvt_pk_bf16_f32 v21, v18, v19")
    A("v_lshlrev_b32 v16, 16, v20")
    A("v_and_b32 v17, 0xffff0000, v20")
    A("v_lshlrev_b32 v18, 16, v21")
    A("v_and_b32 v19, 0xffff0000, v21")
    for k in range(4): A(f"v_add_f32 v{16+k}, v{16+k}, v{72+k}")
    A("v_cvt_pk_bf16_f32 v20, v16, v17")
    A("v_cvt_pk_bf16_f32 v21, v18, v19")
    A("v_lshlrev_b32 v16, 16, v20")
    A("v_and_b32 v17, 0xffff0000, v20")
    A("v_lshlrev_b32 v18, 16, v21")
    A("v_and_b32 v19, 0xffff0000, v21")
    for k in range(4): A(f"v_max_f32 v{16+k}, 0, v{16+k}")
    for k in range(4): A(f"v_mul_f32 v{16+k}, v{16+k}, v{16+k}")
    A("v_cvt_pk_bf16_f32 v20, v16, v17")
    A("v_cvt_pk_bf16_f32 v21, v18, v19")
    A("ds_write_b64 v7, v[20:21]")
    A("s_waitcnt lgkmcnt(0)")
    tbar()
    stamp(6, 't')
    for j in range(7):
        A(f"s_lshl_b64 exec, s[26:27], {2*j}")
        for ks in range(2):
            A(f"ds_read_b128 {vr(vY+4*(2*j+ks),4)}, v6 offset:{ks*64}")
    A("s_mov_b64 exec, -1")
    for q in range(14):
        A(f"s_waitcnt lgkmcnt({13-q})")
        c = "0" if q == 0 else "v[16:19]"
        A(f"v_mfma_f32_16x16x32_bf16 v[16:19], {vr(vW2+4*q,4)}, {vr(vY+4*q,4)}, {c}")
    A("v_cmp_eq_u32 vcc, 1, v10")
    A("v_mov_b32 v21, v9")
    A("v_mov_b32 v23, v9")
    A("s_mov_b32 s24, 0x3fff3fff")
    A("s_mov_b32 s25, 0x3fff3fff")
    A("s_nop 3")
    A("v_cndmask_b32 v20, v16, v18, vcc")
    A("v_cndmask_b32 v22, v17, v19, vcc")
    with skipdry():
        A("s_mov_b64 exec, s[24:25]")
        A(f"buffer_store_dwordx4 v[20:23], v8, {sr(S_WS,4)}, s{sD} offen sc1")
        A("s_mov_b64 exec, -1")
    stamp(7, 't')
    A(f"s_cmp_lg_u32 s{sW}, 0")
    A("s_cbranch_scc1 L_fin")
    A("v_lshrrev_b32 v12, 3, v0")
    A("v_lshlrev_b32 v12, 12, v12")
    A("v_and_b32 v13, 7, v0")
    A("v_lshl_add_u32 v12, v13, 4, v12")
    A(f"s_lshl_b32 s{sD}, s{sB}, 17")
    A(f"s_add_u32 s{sD}, s{sD}, {WS_OB3}")
    A(f"s_lshl_b32 s{sA}, s{sI}, 7")
    A(f"s_add_u32 s{sD}, s{sD}, s{sA}")
    for k in range(4): A(f"s_add_u32 s{20+k}, s{sD}, {k*32768}")
    A(f"v_mov_b32 v{vX+12}, 0")
    A(f"v_mov_b32 v{vX+13}, s{sTAG}")
    A(f"v_mov_b32 v{vX+14}, 0")
    A(f"v_mov_b32 v{vX+15}, s{sTAG}")
    A("v_lshlrev_b32 v13, 2, v13")
    A(f"s_lshl_b32 s{sA}, s{sI}, 5")
    A(f"s_add_u32 s{sBq}, s{sA}, {L_H}")
    A(f"v_add_u32 v14, s{sBq}, v13")
    A("ds_read_b32 v28, v14")
    A(f"s_mul_i32 s{sD}, s{sB}, 896")
    A(f"s_add_u32 s{sD}, s{sD}, s{sA}")
    A("s_waitcnt lgkmcnt(0)")
    A("v_lshlrev_b32 v29, 16, v28")
    A("v_and_b32 v28, 0xffff0000, v28")
    with skipdry():
        loads = [f"buffer_load_dwordx4 {vr(vX+4*k,4)}, v12, {sr(S_WS,4)}, s{20+k} offen sc1" for k in range(3)]
        loads += ["s_mov_b32 exec_hi, 0",
                  f"buffer_load_dwordx4 {vr(vX+12,4)}, v12, {sr(S_WS,4)}, s23 offen sc1",
                  "s_mov_b64 exec, -1"]
        poll(loads, [vX + 1 + 2 * k for k in range(8)], 15, 16, spin)
    stamp(4)
    A(f"v_add_f32 v16, v{vX}, v{vX+4}")
    A(f"v_add_f32 v18, v{vX+2}, v{vX+6}")
    A(f"v_add_f32 v17, v{vX+8}, v{vX+12}")
    A(f"v_add_f32 v19, v{vX+10}, v{vX+14}")
    A("v_add_f32 v16, v16, v17")
    A("v_add_f32 v18, v18, v19")
    A("s_nop 0")
    A(f"v_add_f32_dpp v16, v16, v16 row_ror:8 {DPPM}")
    A(f"v_add_f32_dpp v18, v18, v18 row_ror:8 {DPPM}")
    for sw in ("v_permlane16_swap_b32", "v_permlane32_swap_b32"):
        A("v_mov_b32 v17, v16")
        A("v_mov_b32 v19, v18")
        A("s_nop 1")
        A(f"{sw} v16, v17")
        A(f"{sw} v18, v19")
        A("s_nop 1")
        A("v_add_f32 v16, v16, v17")
        A("v_add_f32 v18, v18, v19")
    A("v_cvt_pk_bf16_f32 v16, v16, v18")
    A("v_lshlrev_b32 v17, 16, v16")
    A("v_and_b32 v16, 0xffff0000, v16")
    A("v_add_f32 v17, v17, v76")
    A("v_add_f32 v16, v16, v77")
    A("v_cvt_pk_bf16_f32 v16, v17, v16")
    A("v_lshlrev_b32 v17, 16, v16")
    A("v_and_b32 v16, 0xffff0000, v16")
    A("v_add_f32 v17, v17, v29")
    A("v_add_f32 v16, v16, v28")
    A("v_cvt_pk_bf16_f32 v16, v17, v16")
    with skipdry():
        A("s_mov_b64 exec, 0xff")
        A(f"buffer_store_dword v16, v13, {sr(S_OUT,4)}, s{sD} offen")
        A("s_mov_b64 exec, -1")
    A.lab("L_fin")
    A(f"s_cmp_eq_u32 s{sDRY}, 0")
    A("s_cbranch_scc1 L_fin2")
    A(f"s_mov_b32 s{sDRY}, 0")
    A("s_waitcnt vmcnt(0) lgkmcnt(0)")
    A("s_branch L_tail")
    A.lab("L_fin2")
    if stamps:
        A("s_waitcnt vmcnt(0)")
        stamp(11)
        dump_stamps(12)
        A("s_endpgm")
    A.lab("L_send")
    if stamps:
        dump_stamps(9)
    A.lab("L_end")
    A("s_endpgm")

    tail = []
    tail.append('.section .rodata,"a"')
    tail.append(".p2align 6")
    tail.append(f".amdhsa_kernel {KN}")
    tail.append("  .amdhsa_next_free_vgpr 256")
    tail.append("  .amdhsa_next_free_sgpr 102")
    tail.append("  .amdhsa_accum_offset 256")
    tail.append("  .amdhsa_group_segment_fixed_size 0")
    tail.append("  .amdhsa_kernarg_size 104")
    tail.append("  .amdhsa_user_sgpr_count 2")
    tail.append("  .amdhsa_user_sgpr_kernarg_segment_ptr 1")
    tail.append("  .amdhsa_system_sgpr_workgroup_id_x 1")
    tail.append("  .amdhsa_float_denorm_mode_32 3")
    tail.append(".end_amdhsa_kernel")
    return "\n".join(hdr + A.L + tail) + "\n"

if __name__ == "__main__":
    kw = eval("dict(%s)" % (sys.argv[2] if len(sys.argv) > 2 else ""))
    open(sys.argv[1], "w").write(gen(**kw))
```

```python
import sys, struct

KN = "sequential_preLN__gqa_block_cached__dense_activation_squared_relu__decode_kernel"

def f32(x):
    return struct.unpack("<I", struct.pack("<f", x))[0]

TAG = 0x5A17C0DE
LOG2E_16 = 1.4426950408889634 / 16.0

WS_Q = 0x0
WS_OB1 = 0x20000
WS_ML = 0x120000
WS_OB2 = 0x130000
WS_OB3 = 0x170000
WS_ST = 0x600000
WS_SIZE = 0x800000

L_WO = 0
L_W1S = 0
L_W2S = 65536
L_WQ = 0
L_XN = 16384
L_S = 131072
L_QF = L_S
L_PART = L_S + 1024
L_STAT = L_S + 9216
L_F = L_S + 9280
L_FLAG = L_S + 9344
L_OBF = L_S + 9472
L_H = L_S + 10496
L_XN2 = L_S + 11520
L_R2 = L_S + 15616
LDS_SIZE = L_S + 15872

class G:
    def __init__(self):
        self.L = []
        self.nlab = 0
    def __call__(self, s):
        self.L.append("  " + s)
    def lab(self, name):
        self.L.append(name + ":")
    def newlab(self, p="L"):
        self.nlab += 1
        return f"{p}_{self.nlab}"
    def c(self, s):
        self.L.append("  ; " + s)

def vr(a, n=1):
    return f"v{a}" if n == 1 else f"v[{a}:{a+n-1}]"
def sr(a, n=1):
    return f"s{a}" if n == 1 else f"s[{a}:{a+n-1}]"

DPPM = "row_mask:0xf bank_mask:0xf"

def gen(RG0=20, RS=4, stamps=False, spin=1 << 20, dry=False, wpace=4, PP=4, E=8, now=0, kf='nt', vf='nt', wf='nt'):
    A = G()
    hdr = []
    hdr.append(f"; @launch grid=(256,1,1) block=(512,1,1) lds={LDS_SIZE}")
    hdr.append('.amdgcn_target "amdgcn-amd-amdhsa--gfx950"')
    hdr.append(".text")
    hdr.append(f".globl {KN}")
    hdr.append(".p2align 8")
    hdr.append(f".type {KN},@function")
    hdr.append(f"{KN}:")

    S_K, S_V, S_X, S_WQ, S_WO, S_W1, S_B1, S_W2, S_B2, S_OUT, S_DBG, S_WS = [44 + 4 * i for i in range(12)]
    sWAVE = 3
    sHKV, sB, sS, sLID, sI = 4, 5, 6, 7, 8
    sSPIN, sT1, sT2, sDRY = 9, 10, 11, 12
    sTAG, sC, sCNT = 13, 14, 15
    sA, sBq, sCq, sD = 16, 17, 18, 19
    sEX = 42
    sST = 92

    def slot(idx):
        return sST + 2 * idx if idx < 5 else 28 + 2 * (idx - 5)
    def stamp(idx, grp=None):
        if stamps and (grp is None or grp == stamps):
            A(f"s_memrealtime s[{slot(idx)}:{slot(idx)+1}]")
    def dump_stamps(n):
        A("s_waitcnt lgkmcnt(0)")
        A(f"s_lshl_b32 s{sT1}, s2, 3")
        A(f"s_add_u32 s{sT1}, s{sT1}, s{sWAVE}")
        A(f"s_lshl_b32 s{sT1}, s{sT1}, 6")
        A(f"s_add_u32 s{sT1}, s{sT1}, {WS_ST}")
        A("v_mov_b32 v20, 0")
        A("v_cmp_eq_u32 vcc, 0, v0")
        A(f"s_and_saveexec_b64 s[{sEX}:{sEX+1}], vcc")
        for k in range(n):
            A(f"v_mov_b32 v21, s{slot(k)}")
            A(f"buffer_store_dword v21, v20, {sr(S_WS,4)}, s{sT1} offen offset:{4*k}")

    def srd(dst, ptr, size):
        A(f"s_mov_b32 s{dst}, s{ptr}")
        A(f"s_mov_b32 s{dst+1}, s{ptr+1}")
        A(f"s_mov_b32 s{dst+2}, {hex(size)}")
        A(f"s_mov_b32 s{dst+3}, 0x20000")

    def rbf(v):
        A(f"v_cvt_pk_bf16_f32 v{v}, v{v}, v{v}")
        A(f"v_and_b32 v{v}, 0xffff0000, v{v}")

    def reduce_lanes(v, t, full, op="add"):
        for m in ("quad_perm:[1,0,3,2]", "quad_perm:[2,3,0,1]", "row_half_mirror", "row_mirror"):
            A("s_nop 1")
            A(f"v_{op}_f32_dpp v{v}, v{v}, v{v} {m} {DPPM}")
        sw = ["v_permlane16_swap_b32"] + (["v_permlane32_swap_b32"] if full else [])
        for s_ in sw:
            A(f"v_mov_b32 v{t}, v{v}")
            A("s_nop 1")
            A(f"{s_} v{v}, v{t}")
            A("s_nop 1")
            A(f"v_{op}_f32 v{v}, v{v}, v{t}")

    def tree_add(dst, regs, tmp):
        cur = list(regs); k = 0
        while len(cur) > 1:
            nxt = []
            for a in range(0, len(cur) - 1, 2):
                d = dst if len(cur) == 2 else tmp + k
                if len(cur) != 2: k += 1
                A(f"v_add_f32 v{d}, v{cur[a]}, v{cur[a+1]}")
                nxt.append(d)
            if len(cur) & 1: nxt.append(cur[-1])
            cur = nxt

    def div448(v, t):
        A(f"v_mul_f32 v{t}, {hex(f32(1.0/448.0))}, v{v}")
        A(f"v_fma_f32 v{v}, v{t}, s{sT2}, v{v}")
        A(f"v_fma_f32 v{v}, v{v}, s{sT1}, v{t}")

    def layernorm(src, E, f, d, t, vvalid, full):
        A(f"s_mov_b32 s{sT1}, {hex(f32(1.0/448.0))}")
        A(f"s_mov_b32 s{sT2}, {hex(f32(-448.0))}")
        for k in range(E // 2):
            A(f"v_lshlrev_b32 v{f+2*k}, 16, v{src+k}")
            A(f"v_and_b32 v{f+2*k+1}, 0xffff0000, v{src+k}")
        tree_add(t, range(f, f + E), d)
        reduce_lanes(t, t + 1, full)
        div448(t, t + 1)
        for k in range(E): A(f"v_sub_f32 v{d+k}, v{f+k}, v{t}")
        for k in range(E // 2): A(f"v_mul_f32 v{d+k}, v{d+k}, v{d+k}")
        for k in range(E // 2): A(f"v_fma_f32 v{d+k}, v{d+E//2+k}, v{d+E//2+k}, v{d+k}")
        tree_add(t + 2, range(d, d + E // 2), d + E // 2)
        A(f"v_cvt_pk_bf16_f32 v{t}, v{t}, v{t}")
        A(f"v_mul_f32 v{t+2}, v{t+2}, v{vvalid}")
        A(f"v_and_b32 v{t}, 0xffff0000, v{t}")
        fill = [f"v_sub_f32 v{f+k}, v{f+k}, v{t}" for k in range(E)]
        fill += [f"v_cvt_pk_bf16_f32 v{src+k}, v{f+2*k}, v{f+2*k+1}" for k in range(E // 2)]
        for k in range(E // 2):
            fill.append(f"v_lshlrev_b32 v{f+2*k}, 16, v{src+k}")
            fill.append(f"v_and_b32 v{f+2*k+1}, 0xffff0000, v{src+k}")
        def F(n):
            for _ in range(n):
                if fill: A(fill.pop(0))
                else: A("s_nop 0")
        v = t + 2
        for m in ("quad_perm:[1,0,3,2]", "quad_perm:[2,3,0,1]", "row_half_mirror", "row_mirror"):
            F(2)
            A(f"v_add_f32_dpp v{v}, v{v}, v{v} {m} {DPPM}")
        sw = ["v_permlane16_swap_b32"] + (["v_permlane32_swap_b32"] if full else [])
        for s_ in sw:
            A(f"v_mov_b32 v{t+1}, v{v}")
            F(2)
            A(f"{s_} v{v}, v{t+1}")
            F(2)
            A(f"v_add_f32 v{v}, v{v}, v{t+1}")
        div448(v, t + 1)
        rbf(v)
        A(f"v_add_f32 v{v}, {hex(f32(1e-5))}, v{v}")
        rbf(v)
        A(f"v_sqrt_f32 v{v}, v{v}")
        F(1)
        rbf(v)
        A(f"v_rcp_f32 v{v}, v{v}")
        while fill: A(fill.pop(0))
        A("s_nop 0")
        for k in range(E): A(f"v_mul_f32 v{f+k}, v{f+k}, v{v}")
        for k in range(E // 2):
            A(f"v_cvt_pk_bf16_f32 v{src+k}, v{f+2*k}, v{f+2*k+1}")

    def lds_wait(addr_v, tmp, target, sleep=2):
        lp = A.newlab("L_lw"); dn = A.newlab("L_lwd")
        A(f"s_mov_b32 s{sCNT}, {spin}")
        A.lab(lp)
        A(f"ds_read_b32 v{tmp}, v{addr_v}")
        A("s_waitcnt lgkmcnt(0)")
        A(f"v_cmp_gt_u32 vcc, {target}, v{tmp}")
        A(f"s_cbranch_vccz {dn}")
        if sleep: A(f"s_sleep {sleep}")
        A(f"s_sub_u32 s{sCNT}, s{sCNT}, 1")
        A(f"s_cmp_lg_u32 s{sCNT}, 0")
        A(f"s_cbranch_scc1 {lp}")
        A.lab(dn)

    def lds_inc(addr_v, tmp):
        A(f"v_mov_b32 v{tmp}, 1")
        A("s_mov_b64 exec, 1")
        A(f"ds_add_u32 v{addr_v}, v{tmp}")
        A("s_mov_b64 exec, -1")

    def poll(loads, tagregs, t0, t1, cnt_src, pre=None, post=None):
        lp = A.newlab("L_p"); dn = A.newlab("L_pd")
        A(f"s_mov_b32 s{sCNT}, {cnt_src}")
        A.lab(lp)
        for x in loads: A(x)
        A("s_waitcnt vmcnt(0)")
        A(f"v_xor_b32 v{t0}, s{sTAG}, v{tagregs[0]}")
        rest = tagregs[1:]
        k = 0
        while k < len(rest):
            if k + 1 < len(rest):
                A(f"v_xor_b32 v{t1}, s{sTAG}, v{rest[k]}")
                A(f"v_xor_b32 v{t1+1}, s{sTAG}, v{rest[k+1]}")
                A(f"v_or3_b32 v{t0}, v{t0}, v{t1}, v{t1+1}")
                k += 2
            else:
                A(f"v_xor_b32 v{t1}, s{sTAG}, v{rest[k]}")
                A(f"v_or_b32 v{t0}, v{t0}, v{t1}")
                k += 1
        A(f"v_cmp_ne_u32 vcc, 0, v{t0}")
        A(f"s_cbranch_vccz {dn}")
        A(f"s_sub_u32 s{sCNT}, s{sCNT}, 1")
        A(f"s_cmp_lg_u32 s{sCNT}, 0")
        A(f"s_cbranch_scc1 {lp}")
        A.lab(dn)

    A("s_cmp_ge_u32 s2, 256")
    A("s_cbranch_scc1 L_end")
    A("s_load_dwordx16 s[16:31], s[0:1], 0")
    A("s_load_dwordx8 s[32:39], s[0:1], 64")
    A("s_load_dwordx2 s[40:41], s[0:1], 96")
    stamp(0)
    A("v_lshrrev_b32 v1, 6, v0")
    A("v_and_b32 v0, 63, v0")
    A(f"v_readfirstlane_b32 s{sWAVE}, v1")
    A(f"s_and_b32 s{sHKV}, s2, 7")
    A(f"s_lshr_b32 s{sT1}, s2, 3")
    A(f"s_lshr_b32 s{sB}, s{sT1}, 2")
    A(f"s_and_b32 s{sS}, s{sT1}, 3")
    A(f"s_lshl_b32 s{sI}, s{sHKV}, 2")
    A(f"s_add_u32 s{sI}, s{sI}, s{sS}")
    A(f"s_lshl_b32 s{sLID}, s{sB}, 5")
    A(f"s_add_u32 s{sLID}, s{sLID}, s{sI}")
    A(f"s_mov_b32 s{sTAG}, {hex(TAG)}")
    A(f"s_mov_b32 s{sC}, {hex(f32(LOG2E_16))}")
    A(f"s_mov_b32 s{sDRY}, 0")
    A("v_and_b32 v2, 15, v0")
    A("v_lshrrev_b32 v3, 4, v0")
    A(f"s_cmp_lt_u32 s{sWAVE}, 4")
    A("s_cbranch_scc1 L_helper")

    vOFF = 1
    vMAX, vL, vNMC = 11, 12, 13
    vT = 14
    vQ = 16
    vO = 32
    vA = 40
    vU = 48
    vSC = 56
    vP = 88
    vRING = 96
    sW = 9
    sBASE, sOFF, sSEL0, sSEL1 = 22, 23, 24, 25
    A.c("stream wave")
    A(f"s_sub_u32 s{sW}, s{sWAVE}, 4")
    A(f"s_lshl_b32 s{sT1}, s{sB}, 3")
    A(f"s_add_u32 s{sT1}, s{sT1}, s{sHKV}")
    A(f"s_lshl_b32 s{sT1}, s{sT1}, 21")
    A(f"s_lshl_b32 s{sT2}, s{sS}, 19")
    A(f"s_add_u32 s{sT1}, s{sT1}, s{sT2}")
    A(f"s_lshl_b32 s{sT2}, s{sW}, 11")
    A(f"s_add_u32 s{sCNT}, s{sT1}, s{sT2}")
    A(f"v_lshlrev_b32 v{vOFF}, 9, v3")
    A(f"v_lshl_add_u32 v{vOFF}, v2, 4, v{vOFF}")
    A("v_and_b32 v8, 31, v0")
    A("v_lshrrev_b32 v9, 5, v0")
    A("v_mul_u32_u24 v9, 896, v9")
    A("v_lshl_add_u32 v9, v8, 5, v9")
    A("v_cmp_gt_u32 vcc, 28, v8")
    A("v_mov_b32 v10, 0x7fffff00")
    A(f"s_mul_i32 s{sT1}, s{sW}, 1792")
    A("v_cndmask_b32 v10, v10, v9, vcc")
    A("v_mov_b32 v15, 1.0")
    A("v_cndmask_b32 v15, 0, v15, vcc")
    A("s_waitcnt lgkmcnt(0)")
    srd(S_X, 16, 7168)
    srd(S_K, 18, 0x8000000)
    A(f"buffer_load_dwordx4 v[16:19], v10, {sr(S_X,4)}, s{sT1} offen")
    A(f"buffer_load_dwordx4 v[20:23], v10, {sr(S_X,4)}, s{sT1} offen offset:16")
    srd(S_V, 20, 0x8000000)
    A(f"s_mov_b32 s{sBASE}, s{sCNT}")

    NG = 64
    issued = [0]
    L_EXT = 131072 - 4 * E * 2048
    sEXT = 21
    def is_ext(j): return RG0 <= j < RG0 + E
    def slot_of(j):
        assert not is_ext(j)
        return vRING + 8 * ((j if j < RG0 else j - E) % RG0)
    def issue(j):
        s = S_K if j < NG else S_V
        off = (j % NG) * 8192
        out = []
        fl = kf if j < NG else vf
        out.append(f"s_add_u32 s{sOFF}, s{sBASE}, {off}")
        if is_ext(j):
            e = j - RG0
            out.append(f"s_add_u32 m0, s{sEXT}, {e*2048}")
            out.append("s_nop 0")
            out.append(f"buffer_load_dwordx4 v{vOFF}, {sr(s,4)}, s{sOFF} offen {fl} lds")
            out.append(f"s_add_u32 m0, s{sEXT}, {e*2048 + 1024 - 256}")
            out.append("s_nop 0")
            out.append(f"buffer_load_dwordx4 v{vOFF}, {sr(s,4)}, s{sOFF} offen offset:256 {fl} lds")
        else:
            r = slot_of(j)
            out.append(f"buffer_load_dwordx4 {vr(r,4)}, v{vOFF}, {sr(s,4)}, s{sOFF} offen {fl}")
            out.append(f"buffer_load_dwordx4 {vr(r+4,4)}, v{vOFF}, {sr(s,4)}, s{sOFF} offen offset:256 {fl}")
        issued[0] = j + 1
        return out
    A(f"s_mul_i32 s{sEXT}, s{sW}, {E*2048}")
    A(f"s_add_u32 s{sEXT}, s{sEXT}, {L_EXT}")
    for j in range(RS):
        for x in issue(j): A(x)
    srd(S_WS, 40, WS_SIZE)
    A(f"s_add_u32 s{sT1}, s{sT1}, {L_XN}")
    A(f"v_add_u32 v9, s{sT1}, v9")
    A("v_and_b32 v8, 7, v2")
    A("v_and_b32 v11, 1, v8")
    A("v_mov_b32 v12, 0xffff")
    A("v_lshlrev_b32 v11, 4, v11")
    A("v_lshlrev_b32 v12, v11, v12")
    A("v_lshrrev_b32 v11, 1, v8")
    for k in range(4):
        A(f"v_cmp_eq_u32 vcc, {k}, v11")
        A("s_nop 1")
        A(f"v_cndmask_b32 v{4+k}, 0, v12, vcc")
    A(f"s_mov_b32 s{sSEL0}, 0x01000100")
    A(f"s_mov_b32 s{sSEL1}, 0x03020302")
    A("s_barrier")
    A(f"s_waitcnt vmcnt({2*RS})")
    stamp(5)
    layernorm(16, 16, 32, 48, 64, 15, False)
    A("v_cmp_lt_f32 vcc, 0, v15")
    A(f"s_and_saveexec_b64 s[{sEX}:{sEX+1}], vcc")
    A("ds_write_b128 v9, v[16:19]")
    A("ds_write_b128 v9, v[20:23] offset:16")
    A(f"s_mov_b64 exec, s[{sEX}:{sEX+1}]")
    A(f"v_mov_b32 v9, {L_FLAG+16}")
    lds_inc(9, 10)
    stamp(6)
    for j in range(RS, RG0 + E):
        A(f"s_waitcnt vmcnt({2*(RS-1)})")
        for x in issue(j): A(x)
    A("v_lshlrev_b32 v8, 4, v0")
    A(f"v_add_u32 v8, s{sEXT}, v8")
    for k in range(8): A(f"v_mov_b32 v{vO+k}, 0")
    A(f"v_mov_b32 v{vMAX}, 0xff800000")
    A(f"v_mov_b32 v{vL}, 0")
    A(f"v_lshrrev_b32 v{vT}, 3, v2")
    A(f"v_lshlrev_b32 v{vT}, 9, v{vT}")
    A(f"v_lshl_add_u32 v{vT}, v2, 4, v{vT}")
    A(f"v_xor_b32 v{vT+1}, 512, v{vT}")
    A(f"v_add_u32 v{vT}, {L_QF}, v{vT}")
    A(f"v_add_u32 v{vT+1}, {L_QF}, v{vT+1}")
    stamp(4)
    A("s_barrier")
    stamp(1)
    A(f"ds_read_b128 {vr(vQ,4)}, v{vT}")
    A(f"ds_read_b128 {vr(vQ+4,4)}, v{vT} offset:256")
    A(f"ds_read_b128 {vr(vQ+8,4)}, v{vT+1}")
    A(f"ds_read_b128 {vr(vQ+12,4)}, v{vT+1} offset:256")
    A("s_waitcnt lgkmcnt(0)")

    def after_consume(i):
        out = []
        if is_ext(i): return out
        j = (i + RG0 + E) if i < RG0 else i + RG0
        if j < 2 * NG:
            assert j == issued[0], (i, j, issued[0])
            out.append(f"s_waitcnt vmcnt({2*(RS-1)})")
            out += issue(j)
        return out

    def merge(X, Y, every=3):
        out = []; yi = 0
        for k, x in enumerate(X):
            out.append(x)
            if (k + 1) % every == 0 and yi < len(Y):
                out.append(Y[yi]); yi += 1
        assert yi == len(Y)
        return out

    Yprev = []
    regp = [p for p in range(NG // 2) if not is_ext(2 * p)]
    extp = [p for p in range(NG // 2) if is_ext(2 * p)]
    order = []
    for k, p in enumerate(regp):
        order.append(p)
        if k >= 1 and extp: order.append(extp.pop(0))
    next_ext = [p for p in order if is_ext(2 * p)]
    def ext_read(p):
        e = 2 * p - RG0
        return [f"ds_read_b128 {vr(vA,4)}, v8 offset:{e*2048}",
                f"ds_read_b128 {vr(vA+4,4)}, v8 offset:{e*2048+1024}",
                f"ds_read_b128 {vr(vP,4)}, v8 offset:{e*2048+2048}",
                f"ds_read_b128 {vr(vP+4,4)}, v8 offset:{e*2048+3072}"]
    for oi, p in enumerate(order):
        ga, gb = 2 * p, 2 * p + 1
        ub = vU + 4 * (oi & 1)
        ua_, wa_, ub_, wb_ = ub, ub + 1, ub + 2, ub + 3
        if is_ext(ga):
            ra, rb = vA, vP
            A("s_waitcnt lgkmcnt(0)")
        else:
            ra, rb = slot_of(ga), slot_of(gb)
            n_after = 2 * (issued[0] - (gb + 1))
            nxt = order[oi + 1] if oi + 1 < len(order) else None
            if nxt is not None and is_ext(2 * nxt):
                n_after = min(n_after, 2 * (issued[0] - (2 * nxt + 2)))
                A(f"s_waitcnt vmcnt({n_after})")
                for x in ext_read(nxt): A(x)
            else:
                A(f"s_waitcnt vmcnt({n_after})")
        X = []
        for e in range(8):
            for (acc, r, q) in ((ua_, ra, vQ + e), (wa_, ra, vQ + 8 + e), (ub_, rb, vQ + e), (wb_, rb, vQ + 8 + e)):
                src2 = "0" if e == 0 else f"v{acc}"
                X.append(f"v_dot2_f32_bf16 v{acc}, v{r+e}, v{q}, {src2}")
        for x in merge(X, Yprev): A(x)
        for x in after_consume(ga): A(x)
        for x in after_consume(gb): A(x)
        if E and p == next_ext[-1]:
            A(f"v_mov_b32 v8, {L_FLAG+20}")
            lds_inc(8, 9)
        Y = []
        Y.append(f"v_add_f32_dpp v{ua_}, v{wa_}, v{ua_} row_ror:8 {DPPM}")
        Y.append(f"v_add_f32_dpp v{ub_}, v{wb_}, v{ub_} row_ror:8 {DPPM}")
        for m in ("quad_perm:[1,0,3,2]", "quad_perm:[2,3,0,1]", "row_half_mirror"):
            Y.append(f"v_add_f32_dpp v{ua_}, v{ua_}, v{ua_} {m} {DPPM}")
            Y.append(f"v_add_f32_dpp v{ub_}, v{ub_}, v{ub_} {m} {DPPM}")
        Y.append(f"v_cvt_pk_bf16_f32 v{vSC+p}, v{ua_}, v{ub_}")
        Y.append(f"v_max3_f32 v{vMAX}, v{ua_}, v{ub_}, v{vMAX}")
        Yprev = Y
    A("s_nop 2")
    for y in Yprev:
        A(y); A("s_nop 1")
    for s_ in ("v_permlane16_swap_b32", "v_permlane32_swap_b32"):
        A(f"v_mov_b32 v{vT}, v{vMAX}")
        A("s_nop 1")
        A(f"{s_} v{vMAX}, v{vT}")
        A("s_nop 1")
        A(f"v_max_f32 v{vMAX}, v{vMAX}, v{vT}")
    rbf(vMAX)
    A(f"v_mul_f32 v{vNMC}, s{sC}, v{vMAX}")
    A(f"v_sub_f32 v{vNMC}, 0, v{vNMC}")
    stamp(2)

    def ppair(pi):
        sc = vSC + pi
        a, b = vP + 2, vP + 3
        return [f"v_lshlrev_b32 v{a}, 16, v{sc}",
                f"v_and_b32 v{b}, 0xffff0000, v{sc}",
                f"v_fma_f32 v{a}, v{a}, s{sC}, v{vNMC}",
                f"v_fma_f32 v{b}, v{b}, s{sC}, v{vNMC}",
                f"v_exp_f32 v{a}, v{a}",
                f"v_exp_f32 v{b}, v{b}",
                f"v_add_f32 v{vL}, v{vL}, v{a}",
                f"v_cvt_pk_bf16_f32 v{sc}, v{a}, v{b}",
                f"v_add_f32 v{vL}, v{vL}, v{b}"]
    def abuild(i):
        a = vA + 4 * (i & 1)
        t = vP + (i & 1)
        sc = vSC + (i >> 1)
        out = [f"v_perm_b32 v{t}, v{sc}, v{sc}, s{sSEL1 if i & 1 else sSEL0}"]
        for k in range(4): out.append(f"v_and_b32 v{a+k}, v{4+k}, v{t}")
        return out
    for x in ppair(0): A(x)
    for x in abuild(0): A(x)
    nextp = [1]
    LDONE = (31 + PP - 1) // PP - 1
    for i in range(NG):
        gi = NG + i
        r = slot_of(gi)
        a = vA + 4 * (i & 1)
        n_after = 2 * (issued[0] - (gi + 1))
        if nextp[0] < 32:
            for _ in range(PP):
                if nextp[0] < 32:
                    for x in ppair(nextp[0]): A(x)
                    nextp[0] += 1
        else:
            A("s_nop 0")
        A(f"s_waitcnt vmcnt({n_after})")
        A(f"v_mfma_f32_16x16x32_bf16 {vr(vO,4)}, {vr(a,4)}, {vr(r,4)}, {vr(vO,4)}")
        A(f"v_mfma_f32_16x16x32_bf16 {vr(vO+4,4)}, {vr(a,4)}, {vr(r+4,4)}, {vr(vO+4,4)}")
        for x in after_consume(gi): A(x)
        if i + 1 < NG:
            for x in abuild(i + 1): A(x)
        if i == LDONE:
            assert nextp[0] == 32
            for s_ in ("v_permlane16_swap_b32", "v_permlane32_swap_b32"):
                A(f"v_mov_b32 v{vT}, v{vL}")
                A("s_nop 1")
                A(f"{s_} v{vL}, v{vT}")
                A("s_nop 1")
                A(f"v_add_f32 v{vL}, v{vL}, v{vT}")
            A(f"v_and_b32 v{vT}, 8, v2")
            A(f"s_lshl_b32 s{sT1}, s{sW}, 4")
            A(f"s_add_u32 s{sT1}, s{sT1}, {L_STAT}")
            A(f"v_add_u32 v{vT}, s{sT1}, v{vT}")
            A(f"v_mov_b32 v{vP+4}, v{vMAX}")
            A(f"v_mov_b32 v{vP+5}, v{vL}")
            A(f"ds_write_b64 v{vT}, {vr(vP+4,2)}")
            A(f"v_mov_b32 v{vT}, {L_FLAG}")
            lds_inc(vT, vT + 1)
            A("v_lshrrev_b32 v16, 1, v3")
            A("v_lshlrev_b32 v17, 2, v16")
            A("v_lshlrev_b32 v16, 10, v16")
            A("v_lshl_add_u32 v16, v2, 5, v16")
            A("v_and_b32 v18, 1, v3")
            A("v_lshl_add_u32 v16, v18, 4, v16")
            A(f"s_lshl_b32 s{sT1}, s{sW}, 11")
            A(f"s_add_u32 s{sT1}, s{sT1}, {L_PART}")
            A(f"v_add_u32 v16, s{sT1}, v16")
            A(f"s_lshl_b32 s{sT1}, s{sW}, 3")
            A(f"s_add_u32 s{sT1}, s{sT1}, {L_F}")
            A(f"v_add_u32 v17, s{sT1}, v17")
            A(f"v_mov_b32 v18, {L_FLAG+4}")
        if i == NG - 6:
            lds_wait(18, 19, 1)
            A("ds_read_b32 v19, v17")
            A("s_waitcnt lgkmcnt(0)")
    A("s_nop 7")
    for k in range(8): A(f"v_mul_f32 v{vO+k}, v{vO+k}, v19")
    A(f"ds_write_b128 v16, {vr(vO,4)}")
    A(f"ds_write_b128 v16, {vr(vO+4,4)} offset:512")
    A("s_waitcnt lgkmcnt(0)")
    stamp(3)
    A("s_barrier")
    A("s_branch L_t3pre")

    A.lab("L_helper")
    sW = sWAVE
    vTH = 1
    vX = 32
    vY = 80
    vW1 = 144
    vW2 = 200
    A(f"s_lshl_b32 s{sT1}, s{sW}, 6")
    A(f"v_add_u32 v{vTH}, s{sT1}, v0")
    A(f"s_lshr_b32 s{sT1}, s2, 3")
    A(f"s_lshl_b32 s{sT2}, s{sHKV}, 5")
    A(f"s_add_u32 s{sT2}, s{sT2}, s{sT1}")
    A("s_waitcnt lgkmcnt(0)")
    srd(S_WS, 40, WS_SIZE)
    srd(S_WQ, 22, 448 * 8192)
    srd(S_DBG, 38, 256)
    A(f"s_cmp_eq_u32 s{sW}, 0")
    A("s_cbranch_scc1 L_h0")
    A(f"s_cmp_eq_u32 s{sW}, 3")
    A("s_cbranch_scc1 L_h3")
    A("v_mov_b32 v12, 0")
    A(f"v_lshlrev_b32 v13, 2, v2")
    A(f"v_add_u32 v13, {L_FLAG}, v13")
    A("ds_write_b32 v13, v12")
    A("s_waitcnt lgkmcnt(0)")
    A("s_barrier")
    A("s_branch L_hb2")

    A.lab("L_h0")
    A("v_lshrrev_b32 v13, 1, v0")
    A("v_lshlrev_b32 v13, 13, v13")
    A("v_and_b32 v14, 1, v0")
    A("v_lshl_add_u32 v13, v14, 4, v13")
    A(f"s_lshl_b32 s{sT1}, s{sT2}, 5")
    for i in range(14):
        A(f"s_mov_b32 m0, {L_WQ + i*1024}")
        A(f"s_add_u32 s{sCNT}, s{sT1}, {i*32*8192}")
        A(f"buffer_load_dwordx4 v13, {sr(S_WQ,4)}, s{sCNT} offen {wf} lds")
    A("s_barrier")
    A("v_lshrrev_b32 v12, 2, v2")
    A("v_lshl_add_u32 v12, v3, 3, v12")
    A("v_lshlrev_b32 v12, 5, v12")
    A("v_and_b32 v13, 3, v2")
    A("v_lshl_add_u32 v12, v13, 3, v12")
    A("v_and_b32 v13, 7, v2")
    A("v_mul_u32_u24 v13, 896, v13")
    A("v_lshl_add_u32 v13, v3, 4, v13")
    A("v_lshlrev_b32 v14, 14, v2")
    A("v_lshl_add_u32 v14, v3, 4, v14")
    A(f"s_lshl_b32 s{sT1}, s{sT2}, 6")
    A(f"v_mov_b32 v29, s{sTAG}")
    A(f"v_mov_b32 v31, s{sTAG}")
    A("s_waitcnt vmcnt(0)")
    stamp(5, 'q')
    for kk in range(14):
        r = 80 + 4 * kk
        A(f"ds_read_b64_tr_b16 {vr(r,2)}, v12 offset:{L_WQ + kk*1024}")
        A(f"ds_read_b64_tr_b16 {vr(r+2,2)}, v12 offset:{L_WQ + kk*1024+128}")
        if kk == 6: A("s_waitcnt lgkmcnt(0)")
    A("s_waitcnt lgkmcnt(0)")
    A(f"v_mov_b32 v15, {L_FLAG+16}")
    lds_wait(15, 16, 5, sleep=0)
    stamp(6, 'q')
    for kk in range(14):
        A(f"ds_read_b128 {vr(144+4*kk,4)}, v13 offset:{L_XN + kk*64}")
    for kk in range(14):
        A(f"s_waitcnt lgkmcnt({13-kk})")
        c = "0" if kk == 0 else "v[24:27]"
        A(f"v_mfma_f32_16x16x32_bf16 v[24:27], {vr(80+4*kk,4)}, {vr(144+4*kk,4)}, {c}")
    A("v_cmp_gt_u32 vcc, 8, v2")
    A("s_nop 6")
    A("v_cvt_pk_bf16_f32 v28, v24, v25")
    A("v_cvt_pk_bf16_f32 v30, v26, v27")
    A(f"s_and_saveexec_b64 s[{sEX}:{sEX+1}], vcc")
    A(f"buffer_store_dwordx4 v[28:31], v14, {sr(S_WS,4)}, s{sT1} offen sc1")
    A(f"s_mov_b64 exec, s[{sEX}:{sEX+1}]")
    stamp(7, 'q')
    A("s_branch L_hb2")

    A.lab("L_h3")
    for k in range(4): A(f"v_mov_b32 v{24+k}, 0")
    A("v_lshlrev_b32 v14, 14, v2")
    A("v_lshl_add_u32 v14, v3, 4, v14")
    A(f"s_lshl_b32 s{sT1}, s{sT2}, 6")
    A("v_cmp_gt_u32 vcc, 8, v2")
    A(f"s_and_saveexec_b64 s[{sEX}:{sEX+1}], vcc")
    A(f"buffer_store_dwordx4 v[24:27], v14, {sr(S_WS,4)}, s{sT1} offen sc1")
    A(f"s_mov_b64 exec, s[{sEX}:{sEX+1}]")
    A("v_lshlrev_b32 v14, 4, v0")
    A(f"s_lshl_b32 s{sA}, s{sLID}, 7")
    A(f"s_add_u32 s{sA}, s{sA}, {WS_ML}")
    A("s_mov_b64 exec, 0xff")
    A(f"buffer_store_dwordx4 v[24:27], v14, {sr(S_WS,4)}, s{sA} offen sc1")
    A("s_mov_b64 exec, -1")
    A(f"s_lshl_b32 s{sT1}, s{sLID}, 12")
    A(f"s_add_u32 s{sT1}, s{sT1}, {WS_OB1}")
    for k in range(4):
        A(f"buffer_store_dwordx4 v[24:27], v14, {sr(S_WS,4)}, s{sT1} offen offset:{k*1024} sc1")
    A(f"s_add_u32 s{sT1}, s{sT1}, {WS_OB3-WS_OB1}")
    for k in range(4):
        A(f"buffer_store_dwordx4 v[24:27], v14, {sr(S_WS,4)}, s{sT1} offen offset:{k*1024} sc1")
    A(f"s_lshl_b32 s{sT1}, s{sLID}, 10")
    A(f"s_add_u32 s{sT1}, s{sT1}, {WS_OB2}")
    A(f"buffer_store_dwordx4 v[24:27], v14, {sr(S_WS,4)}, s{sT1} offen sc1")
    A("s_barrier")
    A("v_mov_b32 v12, 1")
    A("v_mov_b32 v13, 0")
    A(f"v_mov_b32 v15, s{sTAG}")
    A(f"s_lshl_b32 s{sD}, s{sHKV}, 5")
    A("v_lshrrev_b32 v16, 2, v0")
    A("v_lshlrev_b32 v16, 5, v16")
    A("v_and_b32 v17, 3, v0")
    A("v_add_u32 v16, v16, v17")
    A("v_lshlrev_b32 v16, 7, v16")
    A("v_lshlrev_b32 v17, 7, v0")
    A("s_waitcnt vmcnt(0)")
    stamp(5, 'q')
    A("s_mov_b64 exec, 1")
    A(f"buffer_atomic_add v12, v13, {sr(S_DBG,4)}, s{sD} offen sc0 sc1")
    A("s_mov_b64 exec, -1")
    A(f"v_mov_b32 v18, {L_FLAG+16}")
    lds_inc(18, 19)
    A("s_waitcnt vmcnt(0)")
    A(f"v_readfirstlane_b32 s{sBq}, v12")
    A("s_nop 3")
    A(f"s_and_b32 s{sBq}, s{sBq}, 31")
    A(f"s_cmp_lg_u32 s{sBq}, 31")
    A("s_cbranch_scc1 L_notlast")
    A(f"s_lshl_b32 s{sD}, s{sHKV}, 9")
    A(f"s_add_u32 s{sD}, s{sD}, {WS_ML+64}")
    A("s_mov_b32 exec_hi, 0")
    A(f"buffer_store_dword v15, v16, {sr(S_WS,4)}, s{sD} offen sc1")
    A("v_mov_b32 v12, 1")
    A("s_mov_b64 exec, 1")
    A(f"buffer_atomic_add v12, v13, {sr(S_DBG,4)}, 0 offen offset:16 sc0 sc1")
    A("s_mov_b64 exec, -1")
    A("s_waitcnt vmcnt(0)")
    A(f"v_readfirstlane_b32 s{sBq}, v12")
    A("s_nop 3")
    A(f"s_and_b32 s{sBq}, s{sBq}, 7")
    A(f"s_cmp_lg_u32 s{sBq}, 7")
    A("s_cbranch_scc1 L_notlast")
    for k in range(4):
        A(f"s_mov_b32 s{sD}, {WS_ML + 96 + k*8192}")
        A(f"buffer_store_dword v15, v17, {sr(S_WS,4)}, s{sD} offen sc1")
    A.lab("L_notlast")
    stamp(6, 'q')
    poll([f"buffer_load_dword v18, v13, {sr(S_WS,4)}, s{sA} offen offset:64 sc1"], [18], 19, 20, spin)
    stamp(7, 'q')
    A("v_lshlrev_b32 v12, 5, v0")
    A(f"s_lshl_b32 s{sD}, s{sB}, 14")
    A(f"s_lshl_b32 s{sBq}, s{sHKV}, 11")
    A(f"s_add_u32 s{sD}, s{sD}, s{sBq}")
    A(f"v_add_u32 v14, {L_QF}, v14")
    poll([f"buffer_load_dwordx4 v[16:19], v12, {sr(S_WS,4)}, s{sD} offen sc1",
          f"buffer_load_dwordx4 v[20:23], v12, {sr(S_WS,4)}, s{sD} offen offset:16 sc1"], [17, 19, 21, 23], 24, 25, spin)
    A("v_mov_b32 v17, v18")
    A("v_mov_b32 v18, v20")
    A("v_mov_b32 v19, v22")
    A("ds_write_b128 v14, v[16:19]")
    A("s_waitcnt lgkmcnt(0)")
    stamp(8, 'q')
    A("s_barrier")
    poll([f"buffer_load_dword v18, v13, {sr(S_WS,4)}, s{sA} offen offset:96 sc1"], [18], 19, 20, spin)
    A("s_branch L_hw")

    A.lab("L_hb2")
    A("s_barrier")
    A.lab("L_hw")
    srd(S_X, 16, 7168) if False else None
    A("s_load_dwordx16 s[16:31], s[0:1], 0") if not stamps else None
    if stamps:
        A("s_load_dwordx2 s[16:17], s[0:1], 0")
        A("s_load_dwordx2 s[24:25], s[0:1], 32")
        A("s_load_dwordx4 s[20:23], s[0:1], 48")
        A("s_load_dwordx2 s[18:19], s[0:1], 64")
        A("s_load_dwordx4 s[64:67], s[0:1], 72")
        A("s_waitcnt lgkmcnt(0)")
        srd(S_X, 16, 7168)
        srd(S_WO, 24, 4096 * 896)
        srd(S_B2, 64, 896)
        srd(S_OUT, 66, 7168)
        srd(S_W1, 20, 448 * 3584)
        srd(S_B1, 22, 3584)
        srd(S_W2, 18, 1792 * 896)
    else:
        A("s_waitcnt lgkmcnt(0)")
        srd(S_X, 16, 7168)
        srd(S_WO, 24, 4096 * 896)
        srd(S_W1, 28, 448 * 3584)
        srd(S_B1, 30, 3584)
        srd(S_W2, 32, 1792 * 896)
        srd(S_B2, 34, 896)
        srd(S_OUT, 36, 7168)

    def pace():
        A(f"s_waitcnt vmcnt({wpace-1})")
    A(f"v_lshlrev_b32 v12, 2, v{vTH}")
    A(f"s_mul_i32 s{sD}, s{sB}, 896")
    A(f"buffer_load_dword v64, v12, {sr(S_X,4)}, s{sD} offen")
    A("v_lshlrev_b32 v12, 3, v3")
    A(f"s_lshl_b32 s{sD}, s{sI}, 7")
    A(f"s_lshl_b32 s{sA}, s{sW}, 5")
    A(f"s_add_u32 s{sD}, s{sD}, s{sA}")
    A(f"buffer_load_dwordx2 v[66:67], v12, {sr(S_B1,4)}, s{sD} offen")
    A("v_and_b32 v12, 7, v0")
    A("v_lshlrev_b32 v12, 2, v12")
    A(f"s_lshl_b32 s{sD}, s{sI}, 5")
    A(f"buffer_load_dword v65, v12, {sr(S_B2,4)}, s{sD} offen")
    A("v_lshrrev_b32 v68, 2, v2")
    A("v_lshl_add_u32 v68, v3, 3, v68")
    A("v_and_b32 v69, 3, v2")
    A(f"s_cmp_ge_u32 s{sI}, 28")
    A("s_cbranch_scc1 L_noffn")
    if E > 8:
        A(f"v_mov_b32 v13, {L_FLAG+20}")
        lds_wait(13, 14, 4)
    A("v_lshrrev_b32 v12, 3, v0")
    A("v_mul_u32_u24 v12, 3584, v12")
    A("v_and_b32 v13, 7, v0")
    A("v_lshl_add_u32 v12, v13, 4, v12")
    A(f"s_mul_i32 s{sA}, s{sW}, {14*8*3584}")
    A(f"s_lshl_b32 s{sD}, s{sI}, 7")
    A(f"s_add_u32 s{sA}, s{sA}, s{sD}")
    A(f"s_mul_i32 s{sBq}, s{sW}, {14*1024}")
    for u in range(14):
        pace()
        A(f"s_add_u32 m0, s{sBq}, {L_W1S + u*1024}")
        A(f"s_add_u32 s{sD}, s{sA}, {u*8*3584}")
        if not now: A(f"buffer_load_dwordx4 v12, {sr(S_W1,4)}, s{sD} offen {wf} lds")
    if E:
        A(f"v_mov_b32 v13, {L_FLAG+20}")
        lds_wait(13, 14, 4)
    A("v_lshlrev_b32 v12, 4, v0")
    A(f"s_mul_i32 s{sA}, s{sI}, 57344")
    A(f"s_add_u32 s{sA}, s{sA}, s{sBq}")
    for u in range(14):
        pace()
        A(f"s_add_u32 m0, s{sBq}, {L_W2S + u*1024}")
        A(f"s_add_u32 s{sD}, s{sA}, {u*1024}")
        if not now: A(f"buffer_load_dwordx4 v12, {sr(S_W2,4)}, s{sD} offen {wf} lds")
    A("s_waitcnt vmcnt(0)")
    A(f"v_mov_b32 v12, {L_FLAG+8}")
    lds_inc(12, 13)
    lds_wait(12, 13, 4)
    A("v_lshlrev_b32 v12, 7, v68")
    A("v_lshl_add_u32 v12, v69, 3, v12")
    A(f"s_lshl_b32 s{sA}, s{sW}, 5")
    A(f"v_add_u32 v12, s{sA}, v12")
    for ks in range(14):
        A(f"ds_read_b64_tr_b16 {vr(vW1+4*ks,2)}, v12 offset:{L_W1S + ks*4096}")
        A(f"ds_read_b64_tr_b16 {vr(vW1+4*ks+2,2)}, v12 offset:{L_W1S + ks*4096 + 512}")
        if ks % 6 == 5: A("s_waitcnt lgkmcnt(0)")
    A("s_waitcnt lgkmcnt(0)")
    A("v_mul_u32_u24 v12, 896, v68")
    A("v_lshl_add_u32 v12, v69, 3, v12")
    A(f"s_mul_i32 s{sA}, s{sW}, 224")
    A(f"s_add_u32 s{sA}, s{sA}, {L_W2S}")
    A(f"v_add_u32 v12, s{sA}, v12")
    for j in range(7):
        for ks in range(2):
            r = vW2 + 4 * (2 * j + ks)
            A(f"ds_read_b64_tr_b16 {vr(r,2)}, v12 offset:{ks*28672 + j*32}")
            A(f"ds_read_b64_tr_b16 {vr(r+2,2)}, v12 offset:{ks*28672 + 3584 + j*32}")
        if j % 3 == 2: A("s_waitcnt lgkmcnt(0)")
    A("s_waitcnt lgkmcnt(0)")
    A(f"v_mov_b32 v12, {L_FLAG+12}")
    lds_inc(12, 13)
    lds_wait(12, 13, 4)
    A.lab("L_noffn")
    if E:
        A(f"v_mov_b32 v13, {L_FLAG+20}")
        lds_wait(13, 14, 4)
    A("v_lshlrev_b32 v12, 1, v3")
    A("v_xor_b32 v12, v12, v2")
    A("v_xor_b32 v13, 8, v12")
    A("v_mul_u32_u24 v14, 896, v3")
    A("v_lshl_add_u32 v12, v12, 4, v14")
    A("v_lshl_add_u32 v13, v13, 4, v14")
    A(f"s_lshl_b32 s{sA}, s{sHKV}, 9")
    A(f"s_lshl_b32 s{sD}, s{sW}, 7")
    A(f"s_add_u32 s{sA}, s{sA}, s{sD}")
    A(f"s_mul_i32 s{sA}, s{sA}, 896")
    A(f"s_lshl_b32 s{sD}, s{sS}, 8")
    A(f"s_add_u32 s{sA}, s{sA}, s{sD}")
    A(f"s_lshl_b32 s{sBq}, s{sW}, 15")
    for tt in range(32):
        pace()
        A(f"s_add_u32 m0, s{sBq}, {L_WO + tt*1024}")
        A(f"s_add_u32 s{sD}, s{sA}, {tt*4*896}")
        if not now: A(f"buffer_load_dwordx4 v{13 if (tt>>1)&1 else 12}, {sr(S_WO,4)}, s{sD} offen {wf} lds")
    A("s_waitcnt vmcnt(0)")
    stamp(9)
    A(f"s_cmp_lg_u32 s{sW}, 0")
    A("s_cbranch_scc1 L_nostat")
    A(f"v_mov_b32 v12, {L_FLAG}")
    lds_wait(12, 13, 4, sleep=8)
    A("v_and_b32 v14, 1, v0")
    A("v_lshlrev_b32 v12, 3, v14")
    A(f"v_add_u32 v12, {L_STAT}, v12")
    for w in range(4): A(f"ds_read_b64 {vr(16+2*w,2)}, v12 offset:{w*16}")
    A("s_waitcnt lgkmcnt(0)")
    A("v_max_f32 v24, v16, v18")
    A("v_max3_f32 v24, v20, v22, v24")
    for w in range(4):
        A(f"v_sub_f32 v{28+w}, v{16+2*w}, v24")
        A(f"v_mul_f32 v{28+w}, s{sC}, v{28+w}")
        A(f"v_exp_f32 v{28+w}, v{28+w}")
    A("s_nop 0")
    A("v_mul_f32 v26, v28, v17")
    for w in range(1, 4): A(f"v_fma_f32 v26, v{28+w}, v{17+2*w}, v26")
    A(f"v_mov_b32 v25, s{sTAG}")
    A(f"v_mov_b32 v27, s{sTAG}")
    A("v_lshlrev_b32 v15, 4, v14")
    A(f"s_lshl_b32 s{sD}, s{sLID}, 7")
    A(f"s_add_u32 s{sD}, s{sD}, {WS_ML}")
    A("s_mov_b64 exec, 3")
    A(f"buffer_store_dwordx4 v[24:27], v15, {sr(S_WS,4)}, s{sD} offen sc1")
    A("s_mov_b64 exec, -1")
    for p in range(1, 4): A(f"s_xor_b32 s{20+p}, s{sD}, {p*128}")
    poll([f"buffer_load_dwordx4 {vr(32+4*(p-1),4)}, v15, {sr(S_WS,4)}, s{20+p} offen sc1" for p in range(1, 4)],
         [33, 35, 37, 39, 41, 43], 12, 44, spin)
    A("v_max_f32 v46, v24, v32")
    A("v_max3_f32 v46, v36, v40, v46")
    Ms = [24, 32, 36, 40]; Ls = [26, 34, 38, 42]
    for k in range(4):
        A(f"v_sub_f32 v{48+k}, v{Ms[k]}, v46")
        A(f"v_mul_f32 v{48+k}, s{sC}, v{48+k}")
        A(f"v_exp_f32 v{48+k}, v{48+k}")
    A("s_nop 0")
    A(f"v_mul_f32 v47, v48, v{Ls[0]}")
    for k in range(1, 4): A(f"v_fma_f32 v47, v{48+k}, v{Ls[k]}, v47")
    A("v_rcp_f32 v52, v47")
    A("s_nop 0")
    A("v_fma_f32 v53, -v47, v52, 1.0")
    A("v_fma_f32 v52, v53, v52, v52")
    for w in range(4):
        A(f"v_sub_f32 v{28+w}, v{16+2*w}, v46")
        A(f"v_mul_f32 v{28+w}, s{sC}, v{28+w}")
        A(f"v_exp_f32 v{28+w}, v{28+w}")
    A("s_nop 0")
    for w in range(4): A(f"v_mul_f32 v{28+w}, v{28+w}, v52")
    A("v_lshlrev_b32 v12, 2, v14")
    A(f"v_add_u32 v12, {L_F}, v12")
    for w in range(4): A(f"ds_write_b32 v12, v{28+w} offset:{w*8}")
    A(f"v_mov_b32 v12, {L_FLAG+4}")
    lds_inc(12, 13)
    A("s_waitcnt lgkmcnt(0)")
    A.lab("L_nostat")
    stamp(10)
    A("v_cmp_gt_u32 vcc, 56, v0")
    A("v_mov_b32 v11, 1.0")
    A("v_lshlrev_b32 v70, 16, v64")
    A("v_cndmask_b32 v11, 0, v11, vcc")
    A("v_and_b32 v71, 0xffff0000, v64")
    A("v_lshlrev_b32 v72, 16, v66")
    A("v_and_b32 v73, 0xffff0000, v66")
    A("v_lshlrev_b32 v74, 16, v67")
    A("v_and_b32 v75, 0xffff0000, v67")
    A("v_lshlrev_b32 v76, 16, v65")
    A("v_and_b32 v77, 0xffff0000, v65")
    A(f"s_mov_b32 s{sDRY}, {1 if dry else 0}")

    def tbar():
        lab = A.newlab("L_nb")
        A(f"s_cmp_lg_u32 s{sDRY}, 0")
        A(f"s_cbranch_scc1 {lab}")
        A("s_barrier")
        A.lab(lab)
    class skipdry:
        def __enter__(self):
            self.lab = A.newlab("L_sk")
            A(f"s_cmp_lg_u32 s{sDRY}, 0")
            A(f"s_cbranch_scc1 {self.lab}")
        def __exit__(self, *a):
            A.lab(self.lab)

    A.lab("L_tail")
    A(f"v_lshlrev_b32 v12, 3, v{vTH}")
    A(f"v_add_u32 v12, {L_PART}, v12")
    A(f"v_lshlrev_b32 v14, 4, v{vTH}")
    A(f"s_lshl_b32 s{sD}, s{sLID}, 12")
    A(f"s_add_u32 s{sD}, s{sD}, {WS_OB1}")
    for p in range(1, 4): A(f"s_xor_b32 s{20+p}, s{sD}, {p*4096}")
    A(f"v_mov_b32 v25, s{sTAG}")
    A(f"v_mov_b32 v27, s{sTAG}")
    A(f"v_lshlrev_b32 v15, 2, v{vTH}")
    A(f"v_add_u32 v15, {L_OBF}, v15")
    tbar()
    stamp(1)
    for w in range(4): A(f"ds_read_b64 {vr(16+2*w,2)}, v12 offset:{w*2048}")
    A("s_waitcnt lgkmcnt(0)")
    A("v_add_f32 v24, v16, v18")
    A("v_add_f32 v26, v17, v19")
    A("v_add_f32 v16, v20, v22")
    A("v_add_f32 v17, v21, v23")
    A("v_add_f32 v24, v24, v16")
    A("v_add_f32 v26, v26, v17")
    with skipdry():
        A(f"buffer_store_dwordx4 v[24:27], v14, {sr(S_WS,4)}, s{sD} offen sc1")

    A.lab("L_t3pre")
    A("v_lshrrev_b32 v4, 2, v2")
    A("v_and_b32 v5, 1, v3")
    A("v_lshl_or_b32 v5, v5, 2, v4")
    A(f"v_xor_b32 v5, s{sWAVE}, v5")
    A("v_lshlrev_b32 v5, 5, v5")
    A("v_and_b32 v6, 3, v2")
    A("v_lshl_add_u32 v5, v6, 3, v5")
    A("v_lshl_add_u32 v4, v3, 3, v4")
    A("v_lshl_add_u32 v5, v4, 8, v5")
    A("v_add_u32 v6, 0x10000, v5")
    for ks in range(16):
        b = 5 if ks < 8 else 6
        A(f"ds_read_b64_tr_b16 {vr(vY+4*ks,2)}, v{b} offset:{(ks%8)*8192}")
        A(f"ds_read_b64_tr_b16 {vr(vY+4*ks+2,2)}, v{b} offset:{(ks%8)*8192 + 1024}")
        if ks % 6 == 5: A("s_waitcnt lgkmcnt(2)")
    A("v_lshlrev_b32 v4, 4, v3")
    A(f"v_add_u32 v4, {L_OBF}, v4")
    A("v_lshlrev_b32 v7, 5, v3")
    A("v_lshl_add_u32 v7, v2, 4, v7")
    A(f"s_lshl_b32 s{sT1}, s{sLID}, 10")
    A(f"s_add_u32 s{sT1}, s{sT1}, {WS_OB2}")
    A(f"s_lshl_b32 s{sT2}, s{sWAVE}, 7")
    A(f"s_add_u32 s{sT1}, s{sT1}, s{sT2}")
    A("s_mov_b32 s26, 0x00030003")
    A("s_mov_b32 s27, 0x00030003")
    A("v_and_b32 v6, 1, v2")
    A(f"v_mov_b32 v9, s{sTAG}")
    A(f"s_cmp_ge_u32 s{sWAVE}, 4")
    A("s_cbranch_scc1 L_t3")
    with skipdry():
        poll([f"buffer_load_dwordx4 {vr(vX+4*(p-1),4)}, v14, {sr(S_WS,4)}, s{20+p} offen sc1" for p in range(1, 4)],
             [vX+1, vX+3, vX+5, vX+7, vX+9, vX+11], 12, 16, spin)
    stamp(2)
    A(f"v_add_f32 v24, v24, v{vX}")
    A(f"v_add_f32 v26, v26, v{vX+2}")
    A(f"v_add_f32 v16, v{vX+4}, v{vX+8}")
    A(f"v_add_f32 v17, v{vX+6}, v{vX+10}")
    A("v_add_f32 v24, v24, v16")
    A("v_add_f32 v26, v26, v17")
    A("v_cvt_pk_bf16_f32 v24, v24, v26")
    A("ds_write_b32 v15, v24")
    A.lab("L_t3")
    A("s_waitcnt lgkmcnt(0)")
    tbar()
    for ks in range(8): A(f"ds_read_b128 {vr(vX+4*ks,4)}, v4 offset:{ks*64}")
    for ks in range(16):
        A(f"s_waitcnt lgkmcnt({min(7, 15-ks)})")
        c = "0" if ks == 0 else "v[16:19]"
        A(f"v_mfma_f32_16x16x32_bf16 v[16:19], {vr(vY+4*ks,4)}, {vr(vX+4*(ks%8),4)}, {c}")
        if ks < 8: A(f"ds_read_b128 {vr(vX+4*ks,4)}, v4 offset:{(ks+8)*64}")
    A("v_cmp_eq_u32 vcc, 1, v6")
    A("v_mov_b32 v21, v9")
    A("v_mov_b32 v23, v9")
    A("s_nop 4")
    A("v_cndmask_b32 v20, v16, v18, vcc")
    A("v_cndmask_b32 v22, v17, v19, vcc")
    with skipdry():
        A("s_mov_b64 exec, s[26:27]")
        A(f"buffer_store_dwordx4 v[20:23], v7, {sr(S_WS,4)}, s{sT1} offen sc1")
        A("s_mov_b64 exec, -1")
    stamp(8, 't')
    A(f"s_cmp_ge_u32 s{sWAVE}, 4")
    A("s_cbranch_scc1 L_send")
    A(f"s_cmp_ge_u32 s{sI}, 28")
    A("s_cbranch_scc1 L_fin")
    A("v_lshlrev_b32 v12, 4, v0")
    A(f"s_lshl_b32 s{sD}, s{sB}, 5")
    A(f"s_add_u32 s{sD}, s{sD}, s{sW}")
    A(f"s_lshl_b32 s{sD}, s{sD}, 10")
    A(f"s_add_u32 s{sD}, s{sD}, {WS_OB2}")
    A(f"v_lshlrev_b32 v14, 2, v{vTH}")
    A(f"v_add_u32 v14, {L_H}, v14")
    A(f"v_add_u32 v15, {L_H}, v12")
    A(f"s_lshl_b32 s{sA}, s{sW}, 10")
    A(f"s_add_u32 s{sA}, s{sA}, {L_XN2}")
    A(f"v_add_u32 v4, s{sA}, v12")
    A("v_lshlrev_b32 v5, 4, v3")
    A(f"v_add_u32 v6, {L_R2}, v5")
    A(f"v_add_u32 v5, s{sA}, v5")
    A("v_lshlrev_b32 v7, 3, v3")
    A(f"s_lshl_b32 s{sA}, s{sW}, 5")
    A(f"s_add_u32 s{sA}, s{sA}, {L_R2}")
    A(f"v_add_u32 v7, s{sA}, v7")
    for k in range(56): A(f"v_mov_b32 v{vY+k}, 0")
    with skipdry():
        loads = []
        for h in range(8):
            loads.append(f"s_add_u32 s{sA}, s{sD}, {h*4096}")
            loads.append(f"buffer_load_dwordx4 {vr(vX+4*h,4)}, v12, {sr(S_WS,4)}, s{sA} offen sc1")
        poll(loads, [vX + 1 + 2 * k for k in range(16)], 13, 16, spin)
    stamp(3)
    tree_add(24, [vX + 4 * h for h in range(8)], 16)
    tree_add(25, [vX + 2 + 4 * h for h in range(8)], 26)
    A("v_cvt_pk_bf16_f32 v24, v24, v25")
    A("v_lshlrev_b32 v25, 16, v24")
    A("v_and_b32 v24, 0xffff0000, v24")
    A("v_add_f32 v25, v25, v70")
    A("v_add_f32 v24, v24, v71")
    A("v_cvt_pk_bf16_f32 v24, v25, v24")
    A("ds_write_b32 v14, v24")
    for k in range(4): A(f"v_mov_b32 v{16+k}, 0")
    A("s_waitcnt lgkmcnt(0)")
    tbar()
    A("s_mov_b32 exec_hi, 0x00ffffff")
    A("ds_read_b128 v[16:19], v15")
    A("s_mov_b64 exec, -1")
    A("s_waitcnt lgkmcnt(0)")
    layernorm(16, 8, 20, 32, 28, 11, True)
    A("ds_write_b128 v4, v[16:19]")
    A("s_waitcnt lgkmcnt(0)")
    stamp(5, 't')
    for ks in range(8): A(f"ds_read_b128 {vr(vX+4*ks,4)}, v5 offset:{ks*64}")
    for ks in range(14):
        nout = min(14, ks + 8) - ks - 1
        A(f"s_waitcnt lgkmcnt({nout})")
        c = "0" if ks == 0 else "v[16:19]"
        A(f"v_mfma_f32_16x16x32_bf16 v[16:19], {vr(vW1+4*ks,4)}, {vr(vX+4*(ks%8),4)}, {c}")
        if ks + 8 < 14: A(f"ds_read_b128 {vr(vX+4*ks,4)}, v5 offset:{(ks+8)*64}")
    A("v_lshrrev_b32 v8, 1, v2")
    A("v_lshlrev_b32 v8, 7, v8")
    A("v_and_b32 v10, 1, v2")
    A("v_lshl_add_u32 v8, v10, 4, v8")
    A("v_lshl_add_u32 v8, v3, 5, v8")
    A(f"s_lshl_b32 s{sD}, s{sLID}, 12")
    A(f"s_add_u32 s{sD}, s{sD}, {WS_OB3}")
    A(f"s_mul_i32 s{sA}, s{sW}, 896")
    A(f"s_add_u32 s{sD}, s{sD}, s{sA}")
    A("v_cvt_pk_bf16_f32 v20, v16, v17")
    A("v_cvt_pk_bf16_f32 v21, v18, v19")
    A("v_lshlrev_b32 v16, 16, v20")
    A("v_and_b32 v17, 0xffff0000, v20")
    A("v_lshlrev_b32 v18, 16, v21")
    A("v_and_b32 v19, 0xffff0000, v21")
    for k in range(4): A(f"v_add_f32 v{16+k}, v{16+k}, v{72+k}")
    A("v_cvt_pk_bf16_f32 v20, v16, v17")
    A("v_cvt_pk_bf16_f32 v21, v18, v19")
    A("v_lshlrev_b32 v16, 16, v20")
    A("v_and_b32 v17, 0xffff0000, v20")
    A("v_lshlrev_b32 v18, 16, v21")
    A("v_and_b32 v19, 0xffff0000, v21")
    for k in range(4): A(f"v_max_f32 v{16+k}, 0, v{16+k}")
    for k in range(4): A(f"v_mul_f32 v{16+k}, v{16+k}, v{16+k}")
    A("v_cvt_pk_bf16_f32 v20, v16, v17")
    A("v_cvt_pk_bf16_f32 v21, v18, v19")
    A("ds_write_b64 v7, v[20:21]")
    A("s_waitcnt lgkmcnt(0)")
    tbar()
    stamp(6, 't')
    for j in range(7):
        A(f"s_lshl_b64 exec, s[26:27], {2*j}")
        for ks in range(2):
            A(f"ds_read_b128 {vr(vY+4*(2*j+ks),4)}, v6 offset:{ks*64}")
    A("s_mov_b64 exec, -1")
    for q in range(14):
        A(f"s_waitcnt lgkmcnt({13-q})")
        c = "0" if q == 0 else "v[16:19]"
        A(f"v_mfma_f32_16x16x32_bf16 v[16:19], {vr(vW2+4*q,4)}, {vr(vY+4*q,4)}, {c}")
    A("v_cmp_eq_u32 vcc, 1, v10")
    A("v_mov_b32 v21, v9")
    A("v_mov_b32 v23, v9")
    A("s_mov_b32 s24, 0x3fff3fff")
    A("s_mov_b32 s25, 0x3fff3fff")
    A("s_nop 3")
    A("v_cndmask_b32 v20, v16, v18, vcc")
    A("v_cndmask_b32 v22, v17, v19, vcc")
    with skipdry():
        A("s_mov_b64 exec, s[24:25]")
        A(f"buffer_store_dwordx4 v[20:23], v8, {sr(S_WS,4)}, s{sD} offen sc1")
        A("s_mov_b64 exec, -1")
    stamp(7, 't')
    A(f"s_cmp_lg_u32 s{sW}, 0")
    A("s_cbranch_scc1 L_fin")
    A("v_lshrrev_b32 v12, 3, v0")
    A("v_lshlrev_b32 v12, 12, v12")
    A("v_and_b32 v13, 7, v0")
    A("v_lshl_add_u32 v12, v13, 4, v12")
    A(f"s_lshl_b32 s{sD}, s{sB}, 17")
    A(f"s_add_u32 s{sD}, s{sD}, {WS_OB3}")
    A(f"s_lshl_b32 s{sA}, s{sI}, 7")
    A(f"s_add_u32 s{sD}, s{sD}, s{sA}")
    for k in range(4): A(f"s_add_u32 s{20+k}, s{sD}, {k*32768}")
    A(f"v_mov_b32 v{vX+12}, 0")
    A(f"v_mov_b32 v{vX+13}, s{sTAG}")
    A(f"v_mov_b32 v{vX+14}, 0")
    A(f"v_mov_b32 v{vX+15}, s{sTAG}")
    A("v_lshlrev_b32 v13, 2, v13")
    A(f"s_lshl_b32 s{sA}, s{sI}, 5")
    A(f"s_add_u32 s{sBq}, s{sA}, {L_H}")
    A(f"v_add_u32 v14, s{sBq}, v13")
    A("ds_read_b32 v28, v14")
    A(f"s_mul_i32 s{sD}, s{sB}, 896")
    A(f"s_add_u32 s{sD}, s{sD}, s{sA}")
    A("s_waitcnt lgkmcnt(0)")
    A("v_lshlrev_b32 v29, 16, v28")
    A("v_and_b32 v28, 0xffff0000, v28")
    with skipdry():
        loads = [f"buffer_load_dwordx4 {vr(vX+4*k,4)}, v12, {sr(S_WS,4)}, s{20+k} offen sc1" for k in range(3)]
        loads += ["s_mov_b32 exec_hi, 0",
                  f"buffer_load_dwordx4 {vr(vX+12,4)}, v12, {sr(S_WS,4)}, s23 offen sc1",
                  "s_mov_b64 exec, -1"]
        poll(loads, [vX + 1 + 2 * k for k in range(8)], 15, 16, spin)
    stamp(4)
    A(f"v_add_f32 v16, v{vX}, v{vX+4}")
    A(f"v_add_f32 v18, v{vX+2}, v{vX+6}")
    A(f"v_add_f32 v17, v{vX+8}, v{vX+12}")
    A(f"v_add_f32 v19, v{vX+10}, v{vX+14}")
    A("v_add_f32 v16, v16, v17")
    A("v_add_f32 v18, v18, v19")
    A("s_nop 0")
    A(f"v_add_f32_dpp v16, v16, v16 row_ror:8 {DPPM}")
    A(f"v_add_f32_dpp v18, v18, v18 row_ror:8 {DPPM}")
    for sw in ("v_permlane16_swap_b32", "v_permlane32_swap_b32"):
        A("v_mov_b32 v17, v16")
        A("v_mov_b32 v19, v18")
        A("s_nop 1")
        A(f"{sw} v16, v17")
        A(f"{sw} v18, v19")
        A("s_nop 1")
        A("v_add_f32 v16, v16, v17")
        A("v_add_f32 v18, v18, v19")
    A("v_cvt_pk_bf16_f32 v16, v16, v18")
    A("v_lshlrev_b32 v17, 16, v16")
    A("v_and_b32 v16, 0xffff0000, v16")
    A("v_add_f32 v17, v17, v76")
    A("v_add_f32 v16, v16, v77")
    A("v_cvt_pk_bf16_f32 v16, v17, v16")
    A("v_lshlrev_b32 v17, 16, v16")
    A("v_and_b32 v16, 0xffff0000, v16")
    A("v_add_f32 v17, v17, v29")
    A("v_add_f32 v16, v16, v28")
    A("v_cvt_pk_bf16_f32 v16, v17, v16")
    with skipdry():
        A("s_mov_b64 exec, 0xff")
        A(f"buffer_store_dword v16, v13, {sr(S_OUT,4)}, s{sD} offen")
        A("s_mov_b64 exec, -1")
    A.lab("L_fin")
    A(f"s_cmp_eq_u32 s{sDRY}, 0")
    A("s_cbranch_scc1 L_fin2")
    A(f"s_mov_b32 s{sDRY}, 0")
    A("s_waitcnt vmcnt(0) lgkmcnt(0)")
    A("s_branch L_tail")
    A.lab("L_fin2")
    if stamps:
        A("s_waitcnt vmcnt(0)")
        stamp(11)
        dump_stamps(12)
        A("s_endpgm")
    A.lab("L_send")
    if stamps:
        dump_stamps(9)
    A.lab("L_end")
    A("s_endpgm")

    tail = []
    tail.append('.section .rodata,"a"')
    tail.append(".p2align 6")
    tail.append(f".amdhsa_kernel {KN}")
    tail.append("  .amdhsa_next_free_vgpr 256")
    tail.append("  .amdhsa_next_free_sgpr 102")
    tail.append("  .amdhsa_accum_offset 256")
    tail.append("  .amdhsa_group_segment_fixed_size 0")
    tail.append("  .amdhsa_kernarg_size 104")
    tail.append("  .amdhsa_user_sgpr_count 2")
    tail.append("  .amdhsa_user_sgpr_kernarg_segment_ptr 1")
    tail.append("  .amdhsa_system_sgpr_workgroup_id_x 1")
    tail.append("  .amdhsa_float_denorm_mode_32 3")
    tail.append(".end_amdhsa_kernel")
    return "\n".join(hdr + A.L + tail) + "\n"

if __name__ == "__main__":
    kw = eval("dict(%s)" % (sys.argv[2] if len(sys.argv) > 2 else ""))
    open(sys.argv[1], "w").write(gen(**kw))
```

```python
import sys, struct

KN = "sequential_preLN__gqa_block_cached__dense_activation_squared_relu__decode_kernel"

def f32(x):
    return struct.unpack("<I", struct.pack("<f", x))[0]

TAG = 0x5A17C0DE
LOG2E_16 = 1.4426950408889634 / 16.0

WS_Q = 0x0
WS_OB1 = 0x10000
WS_ML = 0x90000
WS_OB2 = 0xA0000
WS_OB3 = 0xC0000
WS_SC = 0x140000
WS_ST = 0x600000
WS_SIZE = 0x800000

L_WO = 0
L_W1S = 0
L_W2S = 65536
L_WQ = 0
L_XN = 16384
L_S = 131072
L_QF = L_S
L_PART = L_S + 1024
L_STAT = L_S + 9216
L_F = L_S + 9280
L_FLAG = L_S + 9344
L_OBF = L_S + 9472
L_H = L_S + 10496
L_XN2 = L_S + 11520
L_R2 = L_S + 15616
LDS_SIZE = L_S + 15872

class G:
    def __init__(self):
        self.L = []
        self.nlab = 0
    def __call__(self, s):
        self.L.append("  " + s)
    def lab(self, name):
        self.L.append(name + ":")
    def newlab(self, p="L"):
        self.nlab += 1
        return f"{p}_{self.nlab}"
    def c(self, s):
        self.L.append("  ; " + s)

def vr(a, n=1):
    return f"v{a}" if n == 1 else f"v[{a}:{a+n-1}]"
def sr(a, n=1):
    return f"s{a}" if n == 1 else f"s[{a}:{a+n-1}]"

DPPM = "row_mask:0xf bank_mask:0xf"

def gen(RG0=20, RS=6, stamps=False, spin=1 << 20, dry=False, wpace=6, PP=4, E=8, now=0, kf='nt', vf='nt', wf='', LAG=None, D=3, NPOOL=8, mix=1, ack=1, RSP=4, nowq=0, noext=0):
    A = G()
    hdr = []
    hdr.append(f"; @launch grid=(256,1,1) block=(512,1,1) lds={LDS_SIZE}")
    hdr.append('.amdgcn_target "amdgcn-amd-amdhsa--gfx950"')
    hdr.append(".text")
    hdr.append(f".globl {KN}")
    hdr.append(".p2align 8")
    hdr.append(f".type {KN},@function")
    hdr.append(f"{KN}:")

    S_K, S_V, S_X, S_WQ, S_WO, S_W1, S_B1, S_W2, S_B2, S_OUT, S_DBG, S_WS = [44 + 4 * i for i in range(12)]
    sWAVE = 3
    sHKV, sB, sS, sLID, sI = 4, 5, 6, 7, 8
    sSPIN, sT1, sT2, sDRY = 9, 10, 11, 12
    sF, sC, sCNT = 13, 14, 15
    sA, sBq, sCq, sD = 16, 17, 18, 19
    sEX = 42
    sST = 92

    def slot(idx):
        return sST + 2 * idx if idx < 5 else 28 + 2 * (idx - 5)
    def stamp(idx, grp=None):
        if stamps and (grp is None or grp == stamps):
            A(f"s_memrealtime s[{slot(idx)}:{slot(idx)+1}]")
    def dump_stamps(n):
        A("s_waitcnt lgkmcnt(0)")
        A(f"s_lshl_b32 s{sT1}, s2, 3")
        A(f"s_add_u32 s{sT1}, s{sT1}, s{sWAVE}")
        A(f"s_lshl_b32 s{sT1}, s{sT1}, 6")
        A(f"s_add_u32 s{sT1}, s{sT1}, {WS_ST}")
        A("v_mov_b32 v20, 0")
        A("v_cmp_eq_u32 vcc, 0, v0")
        A(f"s_and_saveexec_b64 s[{sEX}:{sEX+1}], vcc")
        for k in range(n):
            A(f"v_mov_b32 v21, s{slot(k)}")
            A(f"buffer_store_dword v21, v20, {sr(S_WS,4)}, s{sT1} offen offset:{4*k}")

    def srd(dst, ptr, size):
        A(f"s_mov_b32 s{dst}, s{ptr}")
        A(f"s_mov_b32 s{dst+1}, s{ptr+1}")
        A(f"s_mov_b32 s{dst+2}, {hex(size)}")
        A(f"s_mov_b32 s{dst+3}, 0x20000")

    def rbf(v):
        A(f"v_cvt_pk_bf16_f32 v{v}, v{v}, v{v}")
        A(f"v_and_b32 v{v}, 0xffff0000, v{v}")

    def reduce_lanes(v, t, full, op="add"):
        for m in ("quad_perm:[1,0,3,2]", "quad_perm:[2,3,0,1]", "row_half_mirror", "row_mirror"):
            A("s_nop 1")
            A(f"v_{op}_f32_dpp v{v}, v{v}, v{v} {m} {DPPM}")
        sw = ["v_permlane16_swap_b32"] + (["v_permlane32_swap_b32"] if full else [])
        for s_ in sw:
            A(f"v_mov_b32 v{t}, v{v}")
            A("s_nop 1")
            A(f"{s_} v{v}, v{t}")
            A("s_nop 1")
            A(f"v_{op}_f32 v{v}, v{v}, v{t}")

    def tree_add(dst, regs, tmp):
        cur = list(regs); k = 0
        while len(cur) > 1:
            nxt = []
            for a in range(0, len(cur) - 1, 2):
                d = dst if len(cur) == 2 else tmp + k
                if len(cur) != 2: k += 1
                A(f"v_add_f32 v{d}, v{cur[a]}, v{cur[a+1]}")
                nxt.append(d)
            if len(cur) & 1: nxt.append(cur[-1])
            cur = nxt

    def div448(v, t):
        A(f"v_mul_f32 v{t}, {hex(f32(1.0/448.0))}, v{v}")
        A(f"v_fma_f32 v{v}, v{t}, s{sT2}, v{v}")
        A(f"v_fma_f32 v{v}, v{v}, s{sT1}, v{t}")

    def layernorm(src, E, f, d, t, vvalid, full):
        A(f"s_mov_b32 s{sT1}, {hex(f32(1.0/448.0))}")
        A(f"s_mov_b32 s{sT2}, {hex(f32(-448.0))}")
        for k in range(E // 2):
            A(f"v_lshlrev_b32 v{f+2*k}, 16, v{src+k}")
            A(f"v_and_b32 v{f+2*k+1}, 0xffff0000, v{src+k}")
        tree_add(t, range(f, f + E), d)
        reduce_lanes(t, t + 1, full)
        div448(t, t + 1)
        for k in range(E): A(f"v_sub_f32 v{d+k}, v{f+k}, v{t}")
        for k in range(E // 2): A(f"v_mul_f32 v{d+k}, v{d+k}, v{d+k}")
        for k in range(E // 2): A(f"v_fma_f32 v{d+k}, v{d+E//2+k}, v{d+E//2+k}, v{d+k}")
        tree_add(t + 2, range(d, d + E // 2), d + E // 2)
        A(f"v_cvt_pk_bf16_f32 v{t}, v{t}, v{t}")
        A(f"v_mul_f32 v{t+2}, v{t+2}, v{vvalid}")
        A(f"v_and_b32 v{t}, 0xffff0000, v{t}")
        fill = [f"v_sub_f32 v{f+k}, v{f+k}, v{t}" for k in range(E)]
        fill += [f"v_cvt_pk_bf16_f32 v{src+k}, v{f+2*k}, v{f+2*k+1}" for k in range(E // 2)]
        for k in range(E // 2):
            fill.append(f"v_lshlrev_b32 v{f+2*k}, 16, v{src+k}")
            fill.append(f"v_and_b32 v{f+2*k+1}, 0xffff0000, v{src+k}")
        def F(n):
            for _ in range(n):
                if fill: A(fill.pop(0))
                else: A("s_nop 0")
        v = t + 2
        for m in ("quad_perm:[1,0,3,2]", "quad_perm:[2,3,0,1]", "row_half_mirror", "row_mirror"):
            F(2)
            A(f"v_add_f32_dpp v{v}, v{v}, v{v} {m} {DPPM}")
        sw = ["v_permlane16_swap_b32"] + (["v_permlane32_swap_b32"] if full else [])
        for s_ in sw:
            A(f"v_mov_b32 v{t+1}, v{v}")
            F(2)
            A(f"{s_} v{v}, v{t+1}")
            F(2)
            A(f"v_add_f32 v{v}, v{v}, v{t+1}")
        div448(v, t + 1)
        rbf(v)
        A(f"v_add_f32 v{v}, {hex(f32(1e-5))}, v{v}")
        rbf(v)
        A(f"v_sqrt_f32 v{v}, v{v}")
        F(1)
        rbf(v)
        A(f"v_rcp_f32 v{v}, v{v}")
        while fill: A(fill.pop(0))
        A("s_nop 0")
        for k in range(E): A(f"v_mul_f32 v{f+k}, v{f+k}, v{v}")
        for k in range(E // 2):
            A(f"v_cvt_pk_bf16_f32 v{src+k}, v{f+2*k}, v{f+2*k+1}")

    def lds_wait(addr_v, tmp, target, sleep=2):
        lp = A.newlab("L_lw"); dn = A.newlab("L_lwd")
        A(f"s_mov_b32 s{sCNT}, {spin}")
        A.lab(lp)
        A(f"ds_read_b32 v{tmp}, v{addr_v}")
        A("s_waitcnt lgkmcnt(0)")
        A(f"v_cmp_gt_u32 vcc, {target}, v{tmp}")
        A(f"s_cbranch_vccz {dn}")
        if sleep: A(f"s_sleep {sleep}")
        A(f"s_sub_u32 s{sCNT}, s{sCNT}, 1")
        A(f"s_cmp_lg_u32 s{sCNT}, 0")
        A(f"s_cbranch_scc1 {lp}")
        A.lab(dn)

    def lds_inc(addr_v, tmp):
        A(f"v_mov_b32 v{tmp}, 1")
        A("s_mov_b64 exec, 1")
        A(f"ds_add_u32 v{addr_v}, v{tmp}")
        A("s_mov_b64 exec, -1")

    def poll(loads, regs, t0, cnt_src):
        lp = A.newlab("L_p"); dn = A.newlab("L_pd")
        A(f"s_mov_b32 s{sCNT}, {cnt_src}")
        A.lab(lp)
        for x in loads: A(x)
        A("s_waitcnt vmcnt(0)")
        regs = list(regs)
        if len(regs) == 1:
            A(f"v_cmp_eq_u32 vcc, -1, v{regs[0]}")
        else:
            if len(regs) == 2:
                A(f"v_max_u32 v{t0}, v{regs[0]}, v{regs[1]}"); rest = []
            else:
                A(f"v_max3_u32 v{t0}, v{regs[0]}, v{regs[1]}, v{regs[2]}"); rest = regs[3:]
            while rest:
                if len(rest) >= 2:
                    A(f"v_max3_u32 v{t0}, v{t0}, v{rest[0]}, v{rest[1]}"); rest = rest[2:]
                else:
                    A(f"v_max_u32 v{t0}, v{t0}, v{rest[0]}"); rest = rest[1:]
            A(f"v_cmp_eq_u32 vcc, -1, v{t0}")
        A(f"s_cbranch_vccz {dn}")
        A(f"s_sub_u32 s{sCNT}, s{sCNT}, 1")
        A(f"s_cmp_lg_u32 s{sCNT}, 0")
        A(f"s_cbranch_scc1 {lp}")
        A.lab(dn)
    def guard(regs):
        for r in regs: A(f"v_min_u32 v{r}, -2, v{r}")

    A("s_cmp_ge_u32 s2, 256")
    A("s_cbranch_scc1 L_end")
    A("s_load_dwordx16 s[16:31], s[0:1], 0")
    A("s_load_dwordx8 s[32:39], s[0:1], 64")
    A("s_load_dwordx2 s[40:41], s[0:1], 96")
    stamp(0)
    A("v_lshrrev_b32 v1, 6, v0")
    A("v_and_b32 v0, 63, v0")
    A(f"v_readfirstlane_b32 s{sWAVE}, v1")
    A(f"s_lshr_b32 s{sT1}, s2, 3")
    A(f"s_lshr_b32 s{sB}, s{sT1}, 2")
    A(f"s_and_b32 s{sS}, s{sT1}, 3")
    if mix:
        A(f"s_add_u32 s{sT2}, s{sS}, 1")
        A(f"s_mul_i32 s{sT2}, s{sT2}, s{sS}")
        A(f"s_lshr_b32 s{sT2}, s{sT2}, 1")
        A(f"s_sub_u32 s{sHKV}, s2, s{sT2}")
        A(f"s_and_b32 s{sHKV}, s{sHKV}, 7")
    else:
        A(f"s_and_b32 s{sHKV}, s2, 7")
    A(f"s_lshl_b32 s{sI}, s{sHKV}, 2")
    A(f"s_add_u32 s{sI}, s{sI}, s{sS}")
    A(f"s_lshl_b32 s{sLID}, s{sB}, 5")
    A(f"s_add_u32 s{sLID}, s{sLID}, s{sI}")
    A(f"s_add_u32 s{sF}, s{sI}, 3")
    A(f"s_lshr_b32 s{sF}, s{sF}, 3")
    A(f"s_sub_u32 s{sF}, s{sI}, s{sF}")
    A(f"s_and_b32 s{sT2}, s{sI}, 7")
    A(f"s_cmp_eq_u32 s{sT2}, 4")
    A(f"s_cselect_b32 s{sF}, 99, s{sF}")
    A(f"s_mov_b32 s{sC}, {hex(f32(LOG2E_16))}")
    A("v_and_b32 v2, 15, v0")
    A("v_lshrrev_b32 v3, 4, v0")
    A(f"s_cmp_lt_u32 s{sWAVE}, 4")
    A("s_cbranch_scc1 L_helper")

    vOFF = 1
    vMAX, vL, vNMC = 11, 12, 13
    vT = 14
    vQ = 16
    vO = 32
    vA = 40
    vU = 48
    vSC = 56
    vP = 88
    vRING = 96
    sW = 9
    sBASE, sOFF, sSEL0, sSEL1 = 22, 23, 24, 25
    A.c("stream wave")
    A(f"s_sub_u32 s{sW}, s{sWAVE}, 4")
    A(f"s_lshl_b32 s{sT1}, s{sB}, 3")
    A(f"s_add_u32 s{sT1}, s{sT1}, s{sHKV}")
    A(f"s_lshl_b32 s{sT1}, s{sT1}, 21")
    A(f"s_lshl_b32 s{sT2}, s{sS}, 19")
    A(f"s_add_u32 s{sT1}, s{sT1}, s{sT2}")
    A(f"s_lshl_b32 s{sT2}, s{sW}, 11")
    A(f"s_add_u32 s{sCNT}, s{sT1}, s{sT2}")
    A(f"v_lshlrev_b32 v{vOFF}, 9, v3")
    A(f"v_lshl_add_u32 v{vOFF}, v2, 4, v{vOFF}")
    A("s_waitcnt lgkmcnt(0)")
    srd(S_K, 18, 0x8000000)
    srd(S_V, 20, 0x8000000)
    A(f"s_mov_b32 s{sBASE}, s{sCNT}")

    NG = 64
    NST = 2 * NG - 2 * NPOOL
    vmlog = []
    def after_n(key):
        idx = max(k for k, v in enumerate(vmlog) if v == key)
        return min(63, len(vmlog) - 1 - idx)
    issued = [0]
    L_EXT = 131072 - 4 * E * 2048
    sEXT = 21
    def is_ext(j): return RG0 <= j < RG0 + E
    def slot_of(j):
        assert not is_ext(j)
        return vRING + 8 * ((j if j < RG0 else j - E) % RG0)
    def issue(j):
        s = S_K if j < NG else S_V
        off = (j % NG) * 8192
        out = []
        fl = kf if j < NG else vf
        out.append(f"s_add_u32 s{sOFF}, s{sBASE}, {off}")
        if is_ext(j):
            e = j - RG0
            out.append(f"s_add_u32 m0, s{sEXT}, {e*2048}")
            out.append("s_nop 0")
            out.append(f"buffer_load_dwordx4 v{vOFF}, {sr(s,4)}, s{sOFF} offen {fl} lds")
            out.append(f"s_add_u32 m0, s{sEXT}, {e*2048 + 1024 - 256}")
            out.append("s_nop 0")
            out.append(f"buffer_load_dwordx4 v{vOFF}, {sr(s,4)}, s{sOFF} offen offset:256 {fl} lds")
        else:
            r = slot_of(j)
            out.append(f"buffer_load_dwordx4 {vr(r,4)}, v{vOFF}, {sr(s,4)}, s{sOFF} offen {fl}")
            out.append(f"buffer_load_dwordx4 {vr(r+4,4)}, v{vOFF}, {sr(s,4)}, s{sOFF} offen offset:256 {fl}")
        issued[0] = j + 1
        vmlog.append(("g", j)); vmlog.append(("g", j))
        return out
    A(f"s_mul_i32 s{sEXT}, s{sW}, {E*2048}")
    A(f"s_add_u32 s{sEXT}, s{sEXT}, {L_EXT}")
    for j in range(RSP):
        for x in issue(j): A(x)
    srd(S_WS, 40, WS_SIZE)
    A("v_and_b32 v8, 7, v2")
    A("v_and_b32 v11, 1, v8")
    A("v_mov_b32 v12, 0xffff")
    A("v_lshlrev_b32 v11, 4, v11")
    A("v_lshlrev_b32 v12, v11, v12")
    A("v_lshrrev_b32 v11, 1, v8")
    for k in range(4):
        A(f"v_cmp_eq_u32 vcc, {k}, v11")
        A("s_nop 1")
        A(f"v_cndmask_b32 v{4+k}, 0, v12, vcc")
    A(f"s_mov_b32 s{sSEL0}, 0x01000100")
    A(f"s_mov_b32 s{sSEL1}, 0x03020302")
    A("s_barrier")
    for j in range(RSP, RG0 + E):
        A(f"s_waitcnt vmcnt({2*(RSP-1)})")
        if j == RSP: stamp(5)
        if j == 16: stamp(6)
        for x in issue(j): A(x)
    A("v_lshlrev_b32 v8, 4, v0")
    A(f"v_add_u32 v8, s{sEXT}, v8")
    for k in range(8): A(f"v_mov_b32 v{vO+k}, 0")
    A(f"v_mov_b32 v{vMAX}, 0xff800000")
    A(f"v_mov_b32 v{vL}, 0")
    A(f"v_lshrrev_b32 v{vT}, 3, v2")
    A(f"v_lshlrev_b32 v{vT}, 9, v{vT}")
    A(f"v_lshl_add_u32 v{vT}, v2, 4, v{vT}")
    A(f"v_xor_b32 v{vT+1}, 512, v{vT}")
    A(f"v_add_u32 v{vT}, {L_QF}, v{vT}")
    A(f"v_add_u32 v{vT+1}, {L_QF}, v{vT+1}")
    stamp(4)
    A("s_barrier")
    stamp(1)
    A(f"ds_read_b128 {vr(vQ,4)}, v{vT}")
    A(f"ds_read_b128 {vr(vQ+4,4)}, v{vT} offset:256")
    A(f"ds_read_b128 {vr(vQ+8,4)}, v{vT+1}")
    A(f"ds_read_b128 {vr(vQ+12,4)}, v{vT+1} offset:256")
    A("s_waitcnt lgkmcnt(0)")

    if LAG is None: LAG = RS + 2
    consumed = set()
    nstep = [0]
    def prev_occupant(j):
        if j < RG0: return None
        return j - RG0 - E if j - RG0 - E < RG0 and j < 2 * RG0 + E else j - RG0
    def after_step(groups):
        out = []
        for g_ in groups: consumed.add(g_)
        nstep[0] += 1
        lag = issued[0] - len(consumed)
        if lag >= LAG:
            want = len(groups) if nstep[0] * len(groups) <= RS else max(1, len(groups) // 2) if len(groups) > 1 else (nstep[0] & 1)
        else:
            want = LAG - lag
        for _ in range(want):
            j = issued[0]
            if j >= NST: break
            if prev_occupant(j) not in consumed: break
            assert slot_of(prev_occupant(j)) == slot_of(j)
            out.append(f"s_waitcnt vmcnt({2*(RS-1)})")
            out += issue(j)
        return out

    def merge(X, Y, every=3):
        out = []; yi = 0
        for k, x in enumerate(X):
            out.append(x)
            if (k + 1) % every == 0 and yi < len(Y):
                out.append(Y[yi]); yi += 1
        assert yi == len(Y)
        return out

    Yprev = []
    regp = [p for p in range(NG // 2) if not is_ext(2 * p)]
    extp = [p for p in range(NG // 2) if is_ext(2 * p)]
    order = []
    for k, p in enumerate(regp):
        order.append(p)
        if k >= 1 and extp: order.append(extp.pop(0))
    next_ext = [p for p in order if is_ext(2 * p)]
    def ext_read(p):
        e = 2 * p - RG0
        return [f"ds_read_b128 {vr(vA,4)}, v8 offset:{e*2048}",
                f"ds_read_b128 {vr(vA+4,4)}, v8 offset:{e*2048+1024}",
                f"ds_read_b128 {vr(vP,4)}, v8 offset:{e*2048+2048}",
                f"ds_read_b128 {vr(vP+4,4)}, v8 offset:{e*2048+3072}"]
    for oi, p in enumerate(order):
        ga, gb = 2 * p, 2 * p + 1
        ub = vU + 4 * (oi & 1)
        ua_, wa_, ub_, wb_ = ub, ub + 1, ub + 2, ub + 3
        if is_ext(ga):
            ra, rb = vA, vP
            A("s_waitcnt lgkmcnt(0)")
        else:
            ra, rb = slot_of(ga), slot_of(gb)
            assert issued[0] > gb
            n_after = after_n(("g", gb))
            nxt = order[oi + 1] if oi + 1 < len(order) else None
            if nxt is not None and is_ext(2 * nxt):
                n_after = min(n_after, after_n(("g", 2 * nxt + 1)))
                A(f"s_waitcnt vmcnt({n_after})")
                for x in ext_read(nxt): A(x)
            else:
                A(f"s_waitcnt vmcnt({n_after})")
        X = []
        for e in range(8):
            for (acc, r, q) in ((ua_, ra, vQ + e), (wa_, ra, vQ + 8 + e), (ub_, rb, vQ + e), (wb_, rb, vQ + 8 + e)):
                src2 = "0" if e == 0 else f"v{acc}"
                X.append(f"v_dot2_f32_bf16 v{acc}, v{r+e}, v{q}, {src2}")
        for x in merge(X, Yprev): A(x)
        for x in after_step([ga, gb]): A(x)
        if E and p == next_ext[-1]:
            A(f"v_mov_b32 v8, {L_FLAG+20}")
            lds_inc(8, 9)
        Y = []
        Y.append(f"v_add_f32_dpp v{ua_}, v{wa_}, v{ua_} row_ror:8 {DPPM}")
        Y.append(f"v_add_f32_dpp v{ub_}, v{wb_}, v{ub_} row_ror:8 {DPPM}")
        for m in ("quad_perm:[1,0,3,2]", "quad_perm:[2,3,0,1]", "row_half_mirror"):
            Y.append(f"v_add_f32_dpp v{ua_}, v{ua_}, v{ua_} {m} {DPPM}")
            Y.append(f"v_add_f32_dpp v{ub_}, v{ub_}, v{ub_} {m} {DPPM}")
        Y.append(f"v_cvt_pk_bf16_f32 v{vSC+p}, v{ua_}, v{ub_}")
        Y.append(f"v_max3_f32 v{vMAX}, v{ua_}, v{ub_}, v{vMAX}")
        Yprev = Y
    A("s_nop 2")
    for y in Yprev:
        A(y); A("s_nop 1")
    for s_ in ("v_permlane16_swap_b32", "v_permlane32_swap_b32"):
        A(f"v_mov_b32 v{vT}, v{vMAX}")
        A("s_nop 1")
        A(f"{s_} v{vMAX}, v{vT}")
        A("s_nop 1")
        A(f"v_max_f32 v{vMAX}, v{vMAX}, v{vT}")
    rbf(vMAX)
    A(f"v_mul_f32 v{vNMC}, s{sC}, v{vMAX}")
    A(f"v_sub_f32 v{vNMC}, 0, v{vNMC}")
    stamp(2)

    def ppair(pi):
        sc = vSC + pi
        a, b = vP + 2, vP + 3
        return [f"v_lshlrev_b32 v{a}, 16, v{sc}",
                f"v_and_b32 v{b}, 0xffff0000, v{sc}",
                f"v_fma_f32 v{a}, v{a}, s{sC}, v{vNMC}",
                f"v_fma_f32 v{b}, v{b}, s{sC}, v{vNMC}",
                f"v_exp_f32 v{a}, v{a}",
                f"v_exp_f32 v{b}, v{b}",
                f"v_add_f32 v{vL}, v{vL}, v{a}",
                f"v_cvt_pk_bf16_f32 v{sc}, v{a}, v{b}",
                f"v_add_f32 v{vL}, v{vL}, v{b}"]
    def abuild(i):
        a = vA + 4 * (i & 1)
        t = vP + (i & 1)
        sc = vSC + (i >> 1)
        out = [f"v_perm_b32 v{t}, v{sc}, v{sc}, s{sSEL1 if i & 1 else sSEL0}"]
        for k in range(4): out.append(f"v_and_b32 v{a+k}, v{4+k}, v{t}")
        return out
    assert NPOOL % 4 == 0 and NPOOL <= 16
    A("v_lshrrev_b32 v16, 3, v2")
    A("v_lshl_add_u32 v16, v3, 1, v16")
    A("v_lshlrev_b32 v16, 6, v16")
    A(f"s_lshl_b32 s{sT1}, s{sLID}, 11")
    A(f"s_lshl_b32 s{sT2}, s{sW}, 9")
    A(f"s_add_u32 s{sT1}, s{sT1}, s{sT2}")
    A(f"s_add_u32 s{sT1}, s{sT1}, {WS_SC}")
    A("s_mov_b32 exec_lo, 0x01010101")
    A("s_mov_b32 exec_hi, 0x01010101")
    for k in range(NPOOL // 4):
        A(f"buffer_store_dwordx4 {vr(vSC+32-NPOOL+4*k,4)}, v16, {sr(S_WS,4)}, s{sT1} offen offset:{16*k} sc1")
        vmlog.append(("st", 0))
    A("s_mov_b64 exec, -1")
    NR = D + 1
    vAT = 48
    vS = 20
    assert NR <= 8
    vZ = 17
    sTK = 26
    sGV = 27
    sGS = 28 if not stamps else 18
    sSELP = 72
    sTKT, sA0, sA1 = 68, 69, 70
    A(f"v_mov_b32 v{vZ}, 0")
    A(f"s_andn2_b32 s{sT1}, s{sLID}, 3")
    A(f"s_lshl_b32 s{sTK}, s{sT1}, 7")
    A(f"s_add_u32 s{sTK}, s{sTK}, {WS_ML + 112}")
    A(f"s_lshl_b32 s{sGS}, s{sT1}, 11")
    A(f"s_add_u32 s{sGS}, s{sGS}, {WS_SC}")
    A(f"s_lshl_b32 s{sGV}, s{sB}, 3")
    A(f"s_add_u32 s{sGV}, s{sGV}, s{sHKV}")
    A(f"s_lshl_b32 s{sGV}, s{sGV}, 21")
    A(f"s_add_u32 s{sGV}, s{sGV}, {(NG - 2*NPOOL) * 8192}")
    dslot = [slot_of(NST - RG0 + k) for k in range(2 * NR)]
    dprev = [NST - RG0 + k for k in range(2 * NR)]
    def atomic(k):
        vmlog.append(("at", k))
        return [f"v_mov_b32 v{vAT + k % NR}, 1",
                "s_mov_b64 exec, 1",
                f"buffer_atomic_add v{vAT + k % NR}, v{vZ}, {sr(S_WS,4)}, s{sTK} offen sc0 sc1",
                "s_mov_b64 exec, -1"]
    def ticket_read(k):
        return [f"v_readfirstlane_b32 s{sTKT}, v{vAT + (k - (D-1)) % NR}", "s_nop 3", f"s_add_u32 s{sTKT}, s{sTKT}, 1"]
    def dissue(k, guard):
        pos = k % NR
        o = []
        o.append(f"s_lshr_b32 s{sA0}, s{sTKT}, 4")
        o.append(f"s_and_b32 s{sA1}, s{sTKT}, 15")
        o.append(f"s_lshl_b32 s{sOFF}, s{sA1}, 9")
        o.append(f"s_lshl2_add_u32 s{sOFF}, s{sA0}, s{sOFF}")
        o.append(f"s_add_u32 s{sOFF}, s{sOFF}, s{sGS}")
        o.append(f"s_lshl_b32 s{sA0}, s{sA0}, 14")
        o.append(f"s_add_u32 s{sA0}, s{sA0}, s{sGV}")
        o.append(f"s_and_b32 s{sT1}, s{sA1}, 3")
        o.append(f"s_lshl_b32 s{sT1}, s{sT1}, 11")
        o.append(f"s_add_u32 s{sA0}, s{sA0}, s{sT1}")
        o.append(f"s_lshr_b32 s{sA1}, s{sA1}, 2")
        o.append(f"s_lshl_b32 s{sA1}, s{sA1}, 19")
        o.append(f"s_add_u32 s{sA0}, s{sA0}, s{sA1}")
        if guard:
            o.append(f"s_cmp_lt_u32 s{sTKT}, {16*NPOOL}")
            o.append(f"s_cselect_b32 s{sA0}, s{sA0}, 0x7ff00000")
            o.append(f"s_cselect_b32 s{sOFF}, s{sOFF}, 0x7ff00000")
            o.append(f"s_cselect_b32 s{sSELP+2*pos}, s{sSEL0}, 0x0c0c0c0c")
            o.append(f"s_cselect_b32 s{sSELP+2*pos+1}, s{sSEL1}, 0x0c0c0c0c")
        else:
            o.append(f"s_mov_b32 s{sSELP+2*pos}, s{sSEL0}")
            o.append(f"s_mov_b32 s{sSELP+2*pos+1}, s{sSEL1}")
        o.append(f"s_add_u32 s{sA1}, s{sA0}, 8192")
        o += atomic(k)
        o.append(f"buffer_load_dword v{vS+pos}, v16, {sr(S_WS,4)}, s{sOFF} offen sc1")
        ra, rb = dslot[2*pos], dslot[2*pos+1]
        o.append(f"buffer_load_dwordx4 {vr(ra,4)}, v{vOFF}, {sr(S_V,4)}, s{sA0} offen {vf}")
        o.append(f"buffer_load_dwordx4 {vr(ra+4,4)}, v{vOFF}, {sr(S_V,4)}, s{sA0} offen offset:256 {vf}")
        o.append(f"buffer_load_dwordx4 {vr(rb,4)}, v{vOFF}, {sr(S_V,4)}, s{sA1} offen {vf}")
        o.append(f"buffer_load_dwordx4 {vr(rb+4,4)}, v{vOFF}, {sr(S_V,4)}, s{sA1} offen offset:256 {vf}")
        for _ in range(5): vmlog.append(("d", k))
        return o
    def dconsume(k):
        pos = k % NR
        sc = vS + pos
        a, b = vP + 2, vP + 3
        ra, rb = dslot[2*pos], dslot[2*pos+1]
        o = [f"v_lshlrev_b32 v{a}, 16, v{sc}",
             f"v_and_b32 v{b}, 0xffff0000, v{sc}",
             f"v_fma_f32 v{a}, v{a}, s{sC}, v{vNMC}",
             f"v_fma_f32 v{b}, v{b}, s{sC}, v{vNMC}",
             f"v_exp_f32 v{a}, v{a}",
             f"v_exp_f32 v{b}, v{b}",
             "s_nop 0",
             f"v_cvt_pk_bf16_f32 v{a}, v{a}, v{b}",
             f"v_perm_b32 v{vP}, v{a}, v{a}, s{sSELP+2*pos}",
             f"v_perm_b32 v{vP+1}, v{a}, v{a}, s{sSELP+2*pos+1}"]
        for k_ in range(4): o.append(f"v_and_b32 v{vA+k_}, v{4+k_}, v{vP}")
        for k_ in range(4): o.append(f"v_and_b32 v{vA+4+k_}, v{4+k_}, v{vP+1}")
        o.append(f"v_mfma_f32_16x16x32_bf16 {vr(vO,4)}, {vr(vA,4)}, {vr(ra,4)}, {vr(vO,4)}")
        o.append(f"v_mfma_f32_16x16x32_bf16 {vr(vO+4,4)}, {vr(vA,4)}, {vr(ra+4,4)}, {vr(vO+4,4)}")
        o.append(f"v_mfma_f32_16x16x32_bf16 {vr(vO,4)}, {vr(vA+4,4)}, {vr(rb,4)}, {vr(vO,4)}")
        o.append(f"v_mfma_f32_16x16x32_bf16 {vr(vO+4,4)}, {vr(vA+4,4)}, {vr(rb+4,4)}, {vr(vO+4,4)}")
        return o

    for x in ppair(0): A(x)
    for x in abuild(0): A(x)
    nextp = [1]
    LDONE = (31 + PP - 1) // PP - 1
    NV = NST - NG
    first_dyn_i = NV - LAG
    ev = {}
    for n_, k in enumerate(range(-(D-1), 0)):
        ev.setdefault(first_dyn_i - 2 * (D - 1) + 2 * n_, []).append(("at", k))
    for k in range(D):
        ev.setdefault(min(NV - 1, first_dyn_i + (2 * k * 3) // D), []).append(("d", k))
    for i in range(NV):
        gi = NG + i
        r = slot_of(gi)
        a = vA + 4 * (i & 1)
        assert issued[0] > gi
        if nextp[0] < 32:
            for _ in range(PP):
                if nextp[0] < 32:
                    for x in ppair(nextp[0]): A(x)
                    nextp[0] += 1
        else:
            A("s_nop 0")
        A(f"s_waitcnt vmcnt({after_n(('g', gi))})")
        A(f"v_mfma_f32_16x16x32_bf16 {vr(vO,4)}, {vr(a,4)}, {vr(r,4)}, {vr(vO,4)}")
        A(f"v_mfma_f32_16x16x32_bf16 {vr(vO+4,4)}, {vr(a,4)}, {vr(r+4,4)}, {vr(vO+4,4)}")
        for x in after_step([gi]): A(x)
        if i == 16: stamp(9)
        if i == 32: stamp(10)
        for (kind, k) in ev.get(i, []):
            if kind == "at":
                for x in atomic(k): A(x)
            else:
                assert issued[0] == NST
                assert dprev[2*(k%NR)] in consumed and dprev[2*(k%NR)+1] in consumed
                if k == 0:
                    A(f"v_mov_b32 v18, {L_FLAG+4}")
                    lds_wait(18, 19, 1)
                    A("ds_read_b32 v28, v29")
                    A("ds_read_b32 v30, v31")
                A(f"s_waitcnt vmcnt({min(after_n(('at', k-(D-1))), 2*(RS-1))})")
                for x in ticket_read(k): A(x)
                if k == 0: A(f"s_mov_b32 s71, s{sTKT}")
                for x in dissue(k, True): A(x)
        if i + 1 < NV:
            for x in abuild(i + 1): A(x)
        if i == LDONE:
            assert nextp[0] == 32
            for s_ in ("v_permlane16_swap_b32", "v_permlane32_swap_b32"):
                A(f"v_mov_b32 v{vT}, v{vL}")
                A("s_nop 1")
                A(f"{s_} v{vL}, v{vT}")
                A("s_nop 1")
                A(f"v_add_f32 v{vL}, v{vL}, v{vT}")
            A(f"v_and_b32 v{vT}, 8, v2")
            A(f"s_lshl_b32 s{sT1}, s{sW}, 4")
            A(f"s_add_u32 s{sT1}, s{sT1}, {L_STAT}")
            A(f"v_add_u32 v{vT}, s{sT1}, v{vT}")
            A(f"v_mov_b32 v{vP+4}, v{vMAX}")
            A(f"v_mov_b32 v{vP+5}, v{vL}")
            A(f"ds_write_b64 v{vT}, {vr(vP+4,2)}")
            A(f"v_mov_b32 v{vT}, {L_FLAG}")
            A(f"s_waitcnt vmcnt({after_n(('st', 0))})")
            lds_inc(vT, vT + 1)
            A("v_lshrrev_b32 v10, 1, v3")
            A("v_lshlrev_b32 v29, 2, v10")
            A("v_lshlrev_b32 v10, 10, v10")
            A("v_lshl_add_u32 v10, v2, 5, v10")
            A("v_and_b32 v18, 1, v3")
            A("v_lshl_add_u32 v10, v18, 4, v10")
            A(f"s_lshl_b32 s{sT1}, s{sW}, 11")
            A(f"s_add_u32 s{sT1}, s{sT1}, {L_PART}")
            A(f"v_add_u32 v10, s{sT1}, v10")
            A(f"s_lshl_b32 s{sT1}, s{sW}, 3")
            A(f"s_add_u32 s{sT1}, s{sT1}, {L_F}")
            A(f"v_add_u32 v29, s{sT1}, v29")
            A("v_lshrrev_b32 v31, 3, v2")
            A("v_lshlrev_b32 v31, 2, v31")
            A(f"v_add_u32 v31, {L_F+32}, v31")
    stamp(7)
    A("s_waitcnt lgkmcnt(0)")
    A(f"v_mov_b32 v{vNMC}, v30")
    A("s_nop 5")
    for k in range(8): A(f"v_mul_f32 v{vO+k}, v{vO+k}, v28")
    A(f"s_cmp_ge_u32 s71, {16*NPOOL}")
    A("s_cbranch_scc1 L_vdone")
    pat = []
    for k in range(1, D): pat += [("at", k)] + [("d", k)] * 5
    assert vmlog[-len(pat):] == pat, vmlog[-20:]
    WN = 6 * D - 7
    A.lab("L_dloop")
    for u in range(NR):
        k = D + u
        A(f"s_waitcnt vmcnt({WN})")
        for x in ticket_read(k): A(x)
        A(f"s_cmp_ge_u32 s{sTKT}, {16*NPOOL}")
        A(f"s_cbranch_scc1 L_drain{u}")
        for x in dissue(k, False): A(x)
        for x in dconsume(k - D): A(x)
    A("s_branch L_dloop")
    for u in range(NR):
        k = D + u
        A.lab(f"L_drain{u}")
        for n_ in range(D):
            if n_ > 0: A(f"s_waitcnt vmcnt({6*(D-1-n_)})")
            for x in dconsume(k - D + n_): A(x)
        if u < NR - 1: A("s_branch L_vdone")
    A.lab("L_vdone")
    A("s_nop 7")
    A(f"ds_write_b128 v10, {vr(vO,4)}")
    A(f"ds_write_b128 v10, {vr(vO+4,4)} offset:512")
    A("s_waitcnt vmcnt(0) lgkmcnt(0)")
    stamp(3)
    A("s_barrier")
    A("s_branch L_t3pre")

    A.lab("L_helper")
    sW = sWAVE
    vTH = 1
    vX = 32
    vY = 80
    vW1 = 144
    vW2 = 200
    A(f"s_lshl_b32 s{sT1}, s{sW}, 6")
    A(f"v_add_u32 v{vTH}, s{sT1}, v0")
    A(f"s_lshl_b32 s{sT2}, s{sI}, 3")
    A(f"s_add_u32 s{sT2}, s{sT2}, s{sB}")
    A("s_waitcnt lgkmcnt(0)")
    srd(S_WS, 40, WS_SIZE)
    srd(S_WQ, 22, 448 * 8192)
    srd(S_DBG, 38, 256)
    A(f"s_cmp_eq_u32 s{sW}, 0")
    A("s_cbranch_scc1 L_h0")
    A(f"s_cmp_eq_u32 s{sW}, 3")
    A("s_cbranch_scc1 L_h3")
    srd(S_X, 16, 7168)
    A("v_and_b32 v8, 31, v0")
    A("v_lshrrev_b32 v9, 5, v0")
    A("v_mul_u32_u24 v9, 896, v9")
    A("v_lshl_add_u32 v9, v8, 5, v9")
    A("v_cmp_gt_u32 vcc, 28, v8")
    A("v_mov_b32 v10, 0x7fffff00")
    A(f"s_sub_u32 s{sA}, s{sW}, 1")
    A(f"s_mul_i32 s{sA}, s{sA}, 3584")
    A("v_cndmask_b32 v10, v10, v9, vcc")
    A("v_mov_b32 v15, 1.0")
    A("v_cndmask_b32 v15, 0, v15, vcc")
    A(f"buffer_load_dwordx4 v[16:19], v10, {sr(S_X,4)}, s{sA} offen")
    A(f"buffer_load_dwordx4 v[20:23], v10, {sr(S_X,4)}, s{sA} offen offset:16")
    A(f"buffer_load_dwordx4 v[24:27], v10, {sr(S_X,4)}, s{sA} offen offset:1792")
    A(f"buffer_load_dwordx4 v[28:31], v10, {sr(S_X,4)}, s{sA} offen offset:1808")
    A("v_mov_b32 v12, 0")
    A(f"v_lshlrev_b32 v13, 2, v2")
    A(f"v_add_u32 v13, {L_FLAG}, v13")
    A("ds_write_b32 v13, v12")
    A(f"s_add_u32 s{sA}, s{sA}, {L_XN}")
    A(f"v_add_u32 v9, s{sA}, v9")
    A("s_waitcnt lgkmcnt(0)")
    A("s_barrier")
    A("s_waitcnt vmcnt(0)")
    stamp(5, 'q')
    keep = A.L; A.L = []
    layernorm(16, 16, 32, 48, 64, 15, False); l1 = A.L; A.L = []
    layernorm(24, 16, 80, 96, 112, 15, False); l2 = A.L; A.L = keep
    assert len(l1) == len(l2)
    for x, y in zip(l1, l2):
        if x.strip().startswith("s_nop"):
            A.L.append("  s_nop 0")
        elif x.strip().startswith("s_mov"):
            A.L.append(x)
        else:
            A.L.append(x); A.L.append(y)
    A("v_cmp_lt_f32 vcc, 0, v15")
    A(f"s_and_saveexec_b64 s[{sEX}:{sEX+1}], vcc")
    A("ds_write_b128 v9, v[16:19]")
    A("ds_write_b128 v9, v[20:23] offset:16")
    A("ds_write_b128 v9, v[24:27] offset:1792")
    A("ds_write_b128 v9, v[28:31] offset:1808")
    A(f"s_mov_b64 exec, s[{sEX}:{sEX+1}]")
    A(f"v_mov_b32 v9, {L_FLAG+16}")
    lds_inc(9, 10)
    stamp(6, 'q')
    A("s_branch L_hb2")

    A.lab("L_h0")
    A("v_lshrrev_b32 v13, 1, v0")
    A("v_lshlrev_b32 v13, 13, v13")
    A("v_and_b32 v14, 1, v0")
    A("v_lshl_add_u32 v13, v14, 4, v13")
    A(f"s_lshl_b32 s{sT1}, s{sT2}, 5")
    for i in range(14):
        A(f"s_mov_b32 m0, {L_WQ + i*1024}")
        A(f"s_add_u32 s{sCNT}, s{sT1}, {i*32*8192}")
        if not nowq: A(f"buffer_load_dwordx4 v13, {sr(S_WQ,4)}, s{sCNT} offen {wf} lds")
    A("s_barrier")
    A("v_lshrrev_b32 v12, 2, v2")
    A("v_lshl_add_u32 v12, v3, 3, v12")
    A("v_lshlrev_b32 v12, 5, v12")
    A("v_and_b32 v13, 3, v2")
    A("v_lshl_add_u32 v12, v13, 3, v12")
    A("v_and_b32 v13, 7, v2")
    A("v_mul_u32_u24 v13, 896, v13")
    A("v_lshl_add_u32 v13, v3, 4, v13")
    A("v_lshlrev_b32 v14, 13, v2")
    A("v_lshl_add_u32 v14, v3, 3, v14")
    A("s_waitcnt vmcnt(0)")
    stamp(5, 'q')
    for kk in range(14):
        r = 80 + 4 * kk
        A(f"ds_read_b64_tr_b16 {vr(r,2)}, v12 offset:{L_WQ + kk*1024}")
        A(f"ds_read_b64_tr_b16 {vr(r+2,2)}, v12 offset:{L_WQ + kk*1024+128}")
        if kk == 6: A("s_waitcnt lgkmcnt(0)")
    A("s_waitcnt lgkmcnt(0)")
    A(f"v_mov_b32 v15, {L_FLAG+16}")
    lds_wait(15, 16, 3, sleep=0)
    stamp(6, 'q')
    for kk in range(14):
        A(f"ds_read_b128 {vr(144+4*kk,4)}, v13 offset:{L_XN + kk*64}")
    for kk in range(14):
        A(f"s_waitcnt lgkmcnt({13-kk})")
        c = "0" if kk == 0 else "v[24:27]"
        A(f"v_mfma_f32_16x16x32_bf16 v[24:27], {vr(80+4*kk,4)}, {vr(144+4*kk,4)}, {c}")
    A("s_mov_b32 exec_lo, 0x00ff00ff")
    A("s_mov_b32 exec_hi, 0x00ff00ff")
    A("s_nop 5")
    A("v_cvt_pk_bf16_f32 v28, v24, v25")
    A("v_cvt_pk_bf16_f32 v29, v26, v27")
    guard([28, 29])
    A(f"buffer_store_dwordx2 v[28:29], v14, {sr(S_WS,4)}, s{sT1} offen sc1")
    A("s_mov_b64 exec, -1")
    stamp(7, 'q')
    A("s_branch L_hb2")

    A.lab("L_h3")
    for k in range(4): A(f"v_mov_b32 v{24+k}, -1")
    A("v_lshrrev_b32 v14, 1, v0")
    A("v_lshlrev_b32 v14, 13, v14")
    A("v_and_b32 v15, 1, v0")
    A("v_lshl_add_u32 v14, v15, 4, v14")
    A(f"s_lshl_b32 s{sT1}, s{sT2}, 5")
    A("s_mov_b64 exec, 0xffff")
    A(f"buffer_store_dwordx4 v[24:27], v14, {sr(S_WS,4)}, s{sT1} offen sc1")
    A("s_mov_b64 exec, -1")
    A("v_lshlrev_b32 v14, 4, v0")
    A(f"s_lshl_b32 s{sA}, s{sLID}, 7")
    A(f"s_add_u32 s{sA}, s{sA}, {WS_ML}")
    A("s_mov_b64 exec, 0xff")
    A(f"buffer_store_dwordx4 v[24:27], v14, {sr(S_WS,4)}, s{sA} offen sc1")
    A("s_mov_b64 exec, -1")
    A(f"s_lshl_b32 s{sT1}, s{sLID}, 11")
    A(f"s_add_u32 s{sT1}, s{sT1}, {WS_OB1}")
    for k in range(2):
        A(f"buffer_store_dwordx4 v[24:27], v14, {sr(S_WS,4)}, s{sT1} offen offset:{k*1024} sc1")
    A(f"s_lshl_b32 s{sT1}, s{sLID}, 9")
    A(f"s_add_u32 s{sT1}, s{sT1}, {WS_OB2}")
    A("s_mov_b32 exec_hi, 0")
    A(f"buffer_store_dwordx4 v[24:27], v14, {sr(S_WS,4)}, s{sT1} offen sc1")
    A("s_mov_b64 exec, -1")
    lab = A.newlab("L_noclr3")
    A(f"s_cmp_ge_u32 s{sF}, 28")
    A(f"s_cbranch_scc1 {lab}")
    A(f"s_lshl_b32 s{sT1}, s{sB}, 5")
    A(f"s_add_u32 s{sT1}, s{sT1}, s{sF}")
    A(f"s_lshl_b32 s{sT1}, s{sT1}, 11")
    A(f"s_add_u32 s{sT1}, s{sT1}, {WS_OB3}")
    for k in range(2):
        A(f"buffer_store_dwordx4 v[24:27], v14, {sr(S_WS,4)}, s{sT1} offen offset:{k*1024} sc1")
    A.lab(lab)
    A("s_barrier")
    A("v_mov_b32 v12, 1")
    A("v_mov_b32 v13, 0")
    A("v_mov_b32 v15, 1")
    A(f"s_lshl_b32 s{sD}, s{sHKV}, 5")
    A("v_lshrrev_b32 v16, 2, v0")
    A("v_lshlrev_b32 v16, 5, v16")
    A("v_and_b32 v17, 3, v0")
    A("v_add_u32 v16, v16, v17")
    A("v_lshlrev_b32 v16, 7, v16")
    A("v_lshlrev_b32 v17, 7, v0")
    A("s_waitcnt vmcnt(0)")
    stamp(5, 'q')
    A("s_mov_b64 exec, 1")
    A(f"buffer_atomic_add v12, v13, {sr(S_DBG,4)}, s{sD} offen sc0 sc1")
    A("s_mov_b64 exec, -1")
    A(f"v_mov_b32 v18, {L_FLAG+16}")
    lds_inc(18, 19)
    A("s_waitcnt vmcnt(0)")
    A(f"v_readfirstlane_b32 s{sBq}, v12")
    A("s_nop 3")
    A(f"s_and_b32 s{sBq}, s{sBq}, 31")
    A(f"s_cmp_lg_u32 s{sBq}, 31")
    A("s_cbranch_scc1 L_notlast")
    A(f"s_lshl_b32 s{sD}, s{sHKV}, 9")
    A(f"s_add_u32 s{sD}, s{sD}, {WS_ML+64}")
    A("s_mov_b32 exec_hi, 0")
    A(f"buffer_store_dword v15, v16, {sr(S_WS,4)}, s{sD} offen sc1")
    A("v_mov_b32 v12, 1")
    A("s_mov_b64 exec, 1")
    A(f"buffer_atomic_add v12, v13, {sr(S_DBG,4)}, 0 offen offset:16 sc0 sc1")
    A("s_mov_b64 exec, -1")
    A("s_waitcnt vmcnt(0)")
    A(f"v_readfirstlane_b32 s{sBq}, v12")
    A("s_nop 3")
    A(f"s_and_b32 s{sBq}, s{sBq}, 7")
    A(f"s_cmp_lg_u32 s{sBq}, 7")
    A("s_cbranch_scc1 L_notlast")
    for k in range(4):
        A(f"s_mov_b32 s{sD}, {WS_ML + 96 + k*8192}")
        A(f"buffer_store_dword v15, v17, {sr(S_WS,4)}, s{sD} offen sc1")
    A.lab("L_notlast")
    stamp(6, 'q')
    poll([f"buffer_load_dword v18, v13, {sr(S_WS,4)}, s{sA} offen offset:64 sc1"], [18], 19, spin)
    stamp(7, 'q')
    A(f"s_lshl_b32 s{sD}, s{sB}, 13")
    A(f"s_lshl_b32 s{sBq}, s{sHKV}, 10")
    A(f"s_add_u32 s{sD}, s{sD}, s{sBq}")
    A(f"v_add_u32 v12, {L_QF}, v14")
    poll([f"buffer_load_dwordx4 v[16:19], v14, {sr(S_WS,4)}, s{sD} offen sc1"], [16, 17, 18, 19], 24, spin)
    A("ds_write_b128 v12, v[16:19]")
    A("s_waitcnt lgkmcnt(0)")
    stamp(8, 'q')
    A("s_barrier")
    poll([f"buffer_load_dword v18, v13, {sr(S_WS,4)}, s{sA} offen offset:96 sc1"], [18], 19, spin)
    A("s_branch L_hw")

    A.lab("L_hb2")
    A("s_barrier")
    A.lab("L_hw")
    A("s_load_dwordx2 s[16:17], s[0:1], 0")
    A("s_load_dwordx2 s[24:25], s[0:1], 32")
    A("s_load_dwordx4 s[20:23], s[0:1], 48")
    A("s_load_dwordx2 s[18:19], s[0:1], 64")
    A("s_load_dwordx4 s[64:67], s[0:1], 72")
    A("s_waitcnt lgkmcnt(0)")
    srd(S_X, 16, 7168)
    srd(S_WO, 24, 4096 * 896)
    srd(S_B2, 64, 896)
    srd(S_OUT, 66, 7168)
    srd(S_W1, 20, 448 * 3584)
    srd(S_B1, 22, 3584)
    srd(S_W2, 18, 1792 * 896)

    def pace():
        A(f"s_waitcnt vmcnt({wpace-1})")
    A("v_and_b32 v12, 31, v0")
    A("v_lshlrev_b32 v12, 3, v12")
    A(f"s_mul_i32 s{sD}, s{sB}, 896")
    A(f"s_lshl_b32 s{sA}, s{sW}, 8")
    A(f"s_add_u32 s{sD}, s{sD}, s{sA}")
    A(f"buffer_load_dwordx2 v[64:65], v12, {sr(S_X,4)}, s{sD} offen")
    A("v_lshlrev_b32 v12, 3, v3")
    A(f"s_lshl_b32 s{sD}, s{sF}, 7")
    A(f"s_lshl_b32 s{sA}, s{sW}, 5")
    A(f"s_add_u32 s{sD}, s{sD}, s{sA}")
    A(f"buffer_load_dwordx2 v[66:67], v12, {sr(S_B1,4)}, s{sD} offen")
    A("v_and_b32 v12, 7, v0")
    A("v_lshlrev_b32 v12, 2, v12")
    A(f"s_lshl_b32 s{sD}, s{sF}, 5")
    A(f"buffer_load_dword v68, v12, {sr(S_B2,4)}, s{sD} offen")
    A("v_lshrrev_b32 v8, 2, v2")
    A("v_lshl_add_u32 v8, v3, 3, v8")
    A("v_and_b32 v9, 3, v2")
    A(f"s_cmp_ge_u32 s{sF}, 28")
    A("s_cbranch_scc1 L_noffn")
    if E > 8:
        A(f"v_mov_b32 v13, {L_FLAG+20}")
        lds_wait(13, 14, 4)
    A("v_lshrrev_b32 v12, 3, v0")
    A("v_mul_u32_u24 v12, 3584, v12")
    A("v_and_b32 v13, 7, v0")
    A("v_lshl_add_u32 v12, v13, 4, v12")
    A(f"s_mul_i32 s{sA}, s{sW}, {14*8*3584}")
    A(f"s_lshl_b32 s{sD}, s{sF}, 7")
    A(f"s_add_u32 s{sA}, s{sA}, s{sD}")
    A(f"s_mul_i32 s{sBq}, s{sW}, {14*1024}")
    for u in range(14):
        pace()
        A(f"s_add_u32 m0, s{sBq}, {L_W1S + u*1024}")
        A(f"s_add_u32 s{sD}, s{sA}, {u*8*3584}")
        if not now: A(f"buffer_load_dwordx4 v12, {sr(S_W1,4)}, s{sD} offen {wf} lds")
    if E:
        A(f"v_mov_b32 v13, {L_FLAG+20}")
        lds_wait(13, 14, 4)
    A("v_lshlrev_b32 v12, 4, v0")
    A(f"s_mul_i32 s{sA}, s{sF}, 57344")
    A(f"s_add_u32 s{sA}, s{sA}, s{sBq}")
    for u in range(14):
        pace()
        A(f"s_add_u32 m0, s{sBq}, {L_W2S + u*1024}")
        A(f"s_add_u32 s{sD}, s{sA}, {u*1024}")
        if not now: A(f"buffer_load_dwordx4 v12, {sr(S_W2,4)}, s{sD} offen {wf} lds")
    A("s_waitcnt vmcnt(0)")
    A(f"v_mov_b32 v12, {L_FLAG+8}")
    lds_inc(12, 13)
    lds_wait(12, 13, 4)
    A("v_lshlrev_b32 v12, 7, v8")
    A("v_lshl_add_u32 v12, v9, 3, v12")
    A(f"s_lshl_b32 s{sA}, s{sW}, 5")
    A(f"v_add_u32 v12, s{sA}, v12")
    for ks in range(14):
        A(f"ds_read_b64_tr_b16 {vr(vW1+4*ks,2)}, v12 offset:{L_W1S + ks*4096}")
        A(f"ds_read_b64_tr_b16 {vr(vW1+4*ks+2,2)}, v12 offset:{L_W1S + ks*4096 + 512}")
        if ks % 6 == 5: A("s_waitcnt lgkmcnt(0)")
    A("s_waitcnt lgkmcnt(0)")
    A("v_mul_u32_u24 v12, 896, v8")
    A("v_lshl_add_u32 v12, v9, 3, v12")
    A(f"s_mul_i32 s{sA}, s{sW}, 224")
    A(f"s_add_u32 s{sA}, s{sA}, {L_W2S}")
    A(f"v_add_u32 v12, s{sA}, v12")
    for j in range(7):
        for ks in range(2):
            r = vW2 + 4 * (2 * j + ks)
            A(f"ds_read_b64_tr_b16 {vr(r,2)}, v12 offset:{ks*28672 + j*32}")
            A(f"ds_read_b64_tr_b16 {vr(r+2,2)}, v12 offset:{ks*28672 + 3584 + j*32}")
        if j % 3 == 2: A("s_waitcnt lgkmcnt(0)")
    A("s_waitcnt lgkmcnt(0)")
    A(f"v_mov_b32 v12, {L_FLAG+12}")
    lds_inc(12, 13)
    lds_wait(12, 13, 4)
    A.lab("L_noffn")
    if E:
        A(f"v_mov_b32 v13, {L_FLAG+20}")
        lds_wait(13, 14, 4)
    A("v_lshlrev_b32 v12, 1, v3")
    A("v_xor_b32 v12, v12, v2")
    A("v_xor_b32 v13, 8, v12")
    A(f"s_cmp_eq_u32 s{sS}, 3")
    A(f"s_cselect_b32 s{sD}, 8, 16")
    A(f"v_cmp_gt_u32 s[20:21], s{sD}, v12")
    A(f"v_cmp_gt_u32 s[22:23], s{sD}, v13")
    A("v_mul_u32_u24 v14, 896, v3")
    A("v_lshl_add_u32 v12, v12, 4, v14")
    A("v_lshl_add_u32 v13, v13, 4, v14")
    A(f"s_lshl_b32 s{sA}, s{sHKV}, 9")
    A(f"s_mul_i32 s{sD}, s{sW}, 160")
    A(f"s_add_u32 s{sA}, s{sA}, s{sD}")
    A(f"s_mul_i32 s{sA}, s{sA}, 896")
    A(f"s_lshl_b32 s{sD}, s{sS}, 8")
    A(f"s_add_u32 s{sA}, s{sA}, s{sD}")
    A(f"s_mul_i32 s{sBq}, s{sW}, {40*1024}")
    for tt in range(40):
        if tt == 8:
            A(f"s_cmp_eq_u32 s{sW}, 3")
            A("s_cbranch_scc1 L_wodone")
        pace()
        if tt % 2 == 0: A(f"s_mov_b64 exec, s[{22 if (tt>>1)&1 else 20}:{23 if (tt>>1)&1 else 21}]")
        A(f"s_add_u32 m0, s{sBq}, {L_WO + tt*1024}")
        A(f"s_add_u32 s{sD}, s{sA}, {tt*4*896}")
        if not now: A(f"buffer_load_dwordx4 v{13 if (tt>>1)&1 else 12}, {sr(S_WO,4)}, s{sD} offen {wf} lds")
    A.lab("L_wodone")
    A("s_mov_b64 exec, -1")
    A("s_waitcnt vmcnt(0)")
    stamp(9)
    A(f"s_cmp_lg_u32 s{sW}, 3")
    A("s_cbranch_scc1 L_nostat")
    A(f"v_mov_b32 v12, {L_FLAG}")
    lds_wait(12, 13, 4, sleep=4)
    A("v_and_b32 v14, 1, v0")
    A("v_lshlrev_b32 v15, 3, v14")
    A(f"v_add_u32 v12, {L_STAT}, v15")
    for w in range(4): A(f"ds_read_b64 {vr(16+2*w,2)}, v12 offset:{w*16}")
    A("s_waitcnt lgkmcnt(0)")
    A("v_max_f32 v24, v16, v18")
    A("v_max3_f32 v24, v20, v22, v24")
    for w in range(4):
        A(f"v_sub_f32 v{28+w}, v{16+2*w}, v24")
        A(f"v_mul_f32 v{28+w}, s{sC}, v{28+w}")
        A(f"v_exp_f32 v{28+w}, v{28+w}")
    A("s_nop 0")
    A("v_mul_f32 v25, v28, v17")
    for w in range(1, 4): A(f"v_fma_f32 v25, v{28+w}, v{17+2*w}, v25")
    guard([24, 25])
    A(f"s_lshl_b32 s{sD}, s{sLID}, 7")
    A(f"s_add_u32 s{sD}, s{sD}, {WS_ML}")
    A("s_mov_b64 exec, 3")
    A(f"buffer_store_dwordx2 v[24:25], v15, {sr(S_WS,4)}, s{sD} offen sc1")
    A("s_mov_b64 exec, -1")
    for p in range(1, 4): A(f"s_xor_b32 s{20+p}, s{sD}, {p*128}")
    poll([f"buffer_load_dwordx2 {vr(32+2*(p-1),2)}, v15, {sr(S_WS,4)}, s{20+p} offen sc1" for p in range(1, 4)],
         range(32, 38), 12, spin)
    A("v_max_f32 v46, v24, v32")
    A("v_max3_f32 v46, v34, v36, v46")
    Ms = [24, 32, 34, 36]; Ls = [25, 33, 35, 37]
    for k in range(4):
        A(f"v_sub_f32 v{48+k}, v{Ms[k]}, v46")
        A(f"v_mul_f32 v{48+k}, s{sC}, v{48+k}")
        A(f"v_exp_f32 v{48+k}, v{48+k}")
    A("s_nop 0")
    A(f"v_mul_f32 v47, v48, v{Ls[0]}")
    for k in range(1, 4): A(f"v_fma_f32 v47, v{48+k}, v{Ls[k]}, v47")
    A("v_rcp_f32 v52, v47")
    A("s_nop 0")
    A("v_fma_f32 v53, -v47, v52, 1.0")
    A("v_fma_f32 v52, v53, v52, v52")
    for w in range(4):
        A(f"v_sub_f32 v{28+w}, v{16+2*w}, v46")
        A(f"v_mul_f32 v{28+w}, s{sC}, v{28+w}")
        A(f"v_exp_f32 v{28+w}, v{28+w}")
    A(f"v_mul_f32 v53, s{sC}, v46")
    A("v_sub_f32 v53, 0, v53")
    A("v_lshlrev_b32 v12, 2, v14")
    A(f"v_add_u32 v12, {L_F}, v12")
    for w in range(4): A(f"ds_write_b32 v12, v{28+w} offset:{w*8}")
    A("ds_write_b32 v12, v53 offset:32")
    A("ds_write_b32 v12, v52 offset:40")
    A(f"v_mov_b32 v12, {L_FLAG+4}")
    lds_inc(12, 13)
    A("s_waitcnt lgkmcnt(0)")
    A.lab("L_nostat")
    stamp(10)
    A("v_cmp_gt_u32 vcc, 56, v0")
    A("v_mov_b32 v11, 1.0")
    A("v_lshlrev_b32 v70, 16, v64")
    A("v_cndmask_b32 v11, 0, v11, vcc")
    A("v_and_b32 v71, 0xffff0000, v64")
    A("v_lshlrev_b32 v72, 16, v65")
    A("v_and_b32 v73, 0xffff0000, v65")
    A("v_lshlrev_b32 v74, 16, v66")
    A("v_and_b32 v75, 0xffff0000, v66")
    A("v_lshlrev_b32 v76, 16, v67")
    A("v_and_b32 v77, 0xffff0000, v67")
    A("v_lshlrev_b32 v78, 16, v68")
    A("v_and_b32 v79, 0xffff0000, v68")
    A(f"v_mov_b32 v12, {L_FLAG+4}")
    lds_wait(12, 13, 1, sleep=8)
    A(f"s_lshr_b32 s{sA}, s{sW}, 1")
    A(f"s_lshl_b32 s{sA}, s{sA}, 2")
    A(f"s_add_u32 s{sA}, s{sA}, {L_F}")
    A(f"v_mov_b32 v12, s{sA}")
    A("ds_read_b32 v64, v12 offset:40")
    A("v_and_b32 v14, 31, v0")
    A("v_lshlrev_b32 v14, 4, v14")
    A(f"s_lshl_b32 s{sA}, s{sW}, 9")
    A("v_lshrrev_b32 v13, 5, v0")
    A("v_lshl_add_u32 v12, v13, 12, v14")
    A(f"s_add_u32 s{sD}, s{sA}, {L_PART}")
    A(f"v_add_u32 v12, s{sD}, v12")
    A(f"s_lshl_b32 s{sD}, s{sLID}, 11")
    A(f"s_add_u32 s{sD}, s{sD}, {WS_OB1}")
    A(f"s_add_u32 s{sD}, s{sD}, s{sA}")
    A(f"s_and_b32 s{sBq}, s{sLID}, 3")
    A(f"s_xor_b32 s20, s{sBq}, 1")
    A(f"s_xor_b32 s21, s{sBq}, 2")
    A(f"s_xor_b32 s22, s{sBq}, 3")
    for k in range(3): A(f"s_lshl_b32 s{20+k}, s{20+k}, 11")
    A("v_cmp_eq_u32 vcc, 0, v13")
    A("v_mov_b32 v16, s20")
    A("v_mov_b32 v17, s21")
    A("v_mov_b32 v18, s22")
    A("v_cndmask_b32 v16, v18, v16, vcc")
    A("v_add_u32 v65, v16, v14")
    A("v_add_u32 v66, v17, v14")
    A(f"s_andn2_b32 s{sBq}, s{sD}, 0x1800")
    A("v_lshrrev_b32 v15, 1, v14")
    A(f"s_lshl_b32 s{sA}, s{sW}, 8")
    A(f"s_add_u32 s{sA}, s{sA}, {L_OBF}")
    A(f"v_add_u32 v15, s{sA}, v15")
    A("s_waitcnt lgkmcnt(0)")
    A("s_barrier")
    stamp(1)
    A("ds_read_b128 v[16:19], v12")
    A("ds_read_b128 v[20:23], v12 offset:2048")
    A("s_waitcnt lgkmcnt(0)")
    for k in range(4): A(f"v_add_f32 v{16+k}, v{16+k}, v{20+k}")
    for k in range(4): A(f"v_mov_b32 v{20+k}, v{16+k}")
    A("s_nop 0")
    for k in range(4): A(f"v_permlane32_swap_b32 v{16+k}, v{20+k}")
    A("s_nop 0")
    for k in range(4): A(f"v_add_f32 v{24+k}, v{16+k}, v{20+k}")
    guard(range(24, 28))
    A("s_mov_b32 exec_hi, 0")
    A(f"buffer_store_dwordx4 v[24:27], v14, {sr(S_WS,4)}, s{sD} offen sc1")
    A("s_mov_b64 exec, -1")

    A.lab("L_t3pre")
    A("v_lshrrev_b32 v4, 2, v2")
    A("v_and_b32 v5, 1, v3")
    A("v_lshl_or_b32 v5, v5, 2, v4")
    A(f"v_xor_b32 v5, s{sWAVE}, v5")
    A("v_lshlrev_b32 v5, 5, v5")
    A("v_and_b32 v6, 3, v2")
    A("v_lshl_add_u32 v5, v6, 3, v5")
    A("v_lshl_add_u32 v4, v3, 3, v4")
    A("v_lshl_add_u32 v5, v4, 8, v5")
    A("v_add_u32 v6, 0x10000, v5")
    for ks in range(16):
        b = 5 if ks < 8 else 6
        A(f"ds_read_b64_tr_b16 {vr(vY+4*ks,2)}, v{b} offset:{(ks%8)*8192}")
        A(f"ds_read_b64_tr_b16 {vr(vY+4*ks+2,2)}, v{b} offset:{(ks%8)*8192 + 1024}")
        if ks % 6 == 5: A("s_waitcnt lgkmcnt(2)")
    A("v_lshlrev_b32 v7, 4, v3")
    A(f"v_add_u32 v4, {L_OBF}, v7")
    A(f"s_lshl_b32 s{sT1}, s{sLID}, 9")
    A(f"s_add_u32 s{sT1}, s{sT1}, {WS_OB2}")
    A(f"s_lshl_b32 s{sT2}, s{sWAVE}, 6")
    A(f"s_add_u32 s{sT1}, s{sT1}, s{sT2}")
    A("s_mov_b32 s26, 0x00010001")
    A("s_mov_b32 s27, 0x00010001")
    A(f"s_cmp_ge_u32 s{sWAVE}, 4")
    A("s_cbranch_scc1 L_t3")
    for k in range(4): A(f"v_mov_b32 v{vX+4+k}, 0")
    if ack: A("s_waitcnt vmcnt(0)")
    poll([f"buffer_load_dwordx4 {vr(vX,4)}, v65, {sr(S_WS,4)}, s{sBq} offen sc1",
          "s_mov_b32 exec_hi, 0",
          f"buffer_load_dwordx4 {vr(vX+4,4)}, v66, {sr(S_WS,4)}, s{sBq} offen sc1",
          "s_mov_b64 exec, -1"], range(vX, vX + 8), 12, spin)
    stamp(2)
    for k in range(4): A(f"v_add_f32 v{16+k}, v{vX+k}, v{vX+4+k}")
    for k in range(4): A(f"v_mov_b32 v{20+k}, v{16+k}")
    A("s_nop 0")
    for k in range(4): A(f"v_permlane32_swap_b32 v{16+k}, v{20+k}")
    for k in range(4): A(f"v_add_f32 v{24+k}, v{24+k}, v{16+k}")
    for k in range(4): A(f"v_add_f32 v{24+k}, v{24+k}, v{20+k}")
    for k in range(4): A(f"v_mul_f32 v{24+k}, v{24+k}, v64")
    A("v_cvt_pk_bf16_f32 v24, v24, v25")
    A("v_cvt_pk_bf16_f32 v25, v26, v27")
    A("ds_write_b64 v15, v[24:25]")
    A.lab("L_t3")
    A("s_waitcnt lgkmcnt(0)")
    A("s_barrier")
    for ks in range(8): A(f"ds_read_b128 {vr(vX+4*ks,4)}, v4 offset:{ks*64}")
    for ks in range(16):
        A(f"s_waitcnt lgkmcnt({min(7, 15-ks)})")
        c = "0" if ks == 0 else "v[16:19]"
        A(f"v_mfma_f32_16x16x32_bf16 v[16:19], {vr(vY+4*ks,4)}, {vr(vX+4*(ks%8),4)}, {c}")
        if ks < 8: A(f"ds_read_b128 {vr(vX+4*ks,4)}, v4 offset:{(ks+8)*64}")
    A("s_mov_b64 exec, s[26:27]")
    A("s_nop 6")
    guard(range(16, 20))
    A(f"buffer_store_dwordx4 v[16:19], v7, {sr(S_WS,4)}, s{sT1} offen sc1")
    A("s_mov_b64 exec, -1")
    stamp(8, 't')
    A(f"s_cmp_ge_u32 s{sWAVE}, 4")
    A("s_cbranch_scc1 L_send")
    A(f"s_cmp_ge_u32 s{sF}, 28")
    A("s_cbranch_scc1 L_fin")
    A("v_lshl_add_u32 v12, v13, 13, v14")
    A(f"s_lshl_b32 s{sD}, s{sB}, 5")
    A(f"s_add_u32 s{sD}, s{sD}, s{sW}")
    A(f"s_lshl_b32 s{sD}, s{sD}, 9")
    A(f"s_add_u32 s{sD}, s{sD}, {WS_OB2}")
    A(f"s_add_u32 s{sBq}, s{sD}, 4096")
    A("v_lshrrev_b32 v15, 1, v14")
    A(f"s_lshl_b32 s{sA}, s{sW}, 8")
    A(f"s_add_u32 s{sA}, s{sA}, {L_H}")
    A(f"v_add_u32 v15, s{sA}, v15")
    A("v_lshlrev_b32 v10, 4, v0")
    A(f"s_lshl_b32 s{sA}, s{sW}, 10")
    A(f"s_add_u32 s{sA}, s{sA}, {L_XN2}")
    A(f"v_add_u32 v4, s{sA}, v10")
    A(f"v_add_u32 v10, {L_H}, v10")
    A(f"v_add_u32 v6, {L_R2}, v7")
    A(f"v_add_u32 v5, s{sA}, v7")
    A("v_lshl_add_u32 v8, v2, 6, v7")
    A("v_lshlrev_b32 v7, 3, v3")
    A(f"s_lshl_b32 s{sA}, s{sW}, 5")
    A(f"s_add_u32 s{sA}, s{sA}, {L_R2}")
    A(f"v_add_u32 v7, s{sA}, v7")
    for k in range(56): A(f"v_mov_b32 v{vY+k}, 0")
    if ack: A("s_waitcnt vmcnt(0)")
    poll([f"buffer_load_dwordx4 {vr(vX,4)}, v12, {sr(S_WS,4)}, s{sD} offen sc1",
          f"buffer_load_dwordx4 {vr(vX+4,4)}, v12, {sr(S_WS,4)}, s{sD} offen offset:2048 sc1",
          f"buffer_load_dwordx4 {vr(vX+8,4)}, v12, {sr(S_WS,4)}, s{sBq} offen sc1",
          f"buffer_load_dwordx4 {vr(vX+12,4)}, v12, {sr(S_WS,4)}, s{sBq} offen offset:2048 sc1"],
         range(vX, vX + 16), 16, spin)
    stamp(3)
    for k in range(4): A(f"v_add_f32 v{16+k}, v{vX+k}, v{vX+4+k}")
    for k in range(4): A(f"v_add_f32 v{20+k}, v{vX+8+k}, v{vX+12+k}")
    for k in range(4): A(f"v_add_f32 v{16+k}, v{16+k}, v{20+k}")
    for k in range(4): A(f"v_mov_b32 v{20+k}, v{16+k}")
    A("s_nop 0")
    for k in range(4): A(f"v_permlane32_swap_b32 v{16+k}, v{20+k}")
    A("s_nop 0")
    for k in range(4): A(f"v_add_f32 v{16+k}, v{16+k}, v{20+k}")
    A("v_cvt_pk_bf16_f32 v20, v16, v17")
    A("v_cvt_pk_bf16_f32 v21, v18, v19")
    A("v_lshlrev_b32 v16, 16, v20")
    A("v_and_b32 v17, 0xffff0000, v20")
    A("v_lshlrev_b32 v18, 16, v21")
    A("v_and_b32 v19, 0xffff0000, v21")
    for k in range(4): A(f"v_add_f32 v{16+k}, v{16+k}, v{70+k}")
    A("v_cvt_pk_bf16_f32 v20, v16, v17")
    A("v_cvt_pk_bf16_f32 v21, v18, v19")
    A("ds_write_b64 v15, v[20:21]")
    for k in range(4): A(f"v_mov_b32 v{16+k}, 0")
    A("s_waitcnt lgkmcnt(0)")
    A("s_barrier")
    A("s_mov_b32 exec_hi, 0x00ffffff")
    A("ds_read_b128 v[16:19], v10")
    A("s_mov_b64 exec, -1")
    A("s_waitcnt lgkmcnt(0)")
    layernorm(16, 8, 20, 32, 28, 11, True)
    A("ds_write_b128 v4, v[16:19]")
    A("s_waitcnt lgkmcnt(0)")
    stamp(5, 't')
    for ks in range(8): A(f"ds_read_b128 {vr(vX+4*ks,4)}, v5 offset:{ks*64}")
    for ks in range(14):
        nout = min(14, ks + 8) - ks - 1
        A(f"s_waitcnt lgkmcnt({nout})")
        c = "0" if ks == 0 else "v[16:19]"
        A(f"v_mfma_f32_16x16x32_bf16 v[16:19], {vr(vW1+4*ks,4)}, {vr(vX+4*(ks%8),4)}, {c}")
        if ks + 8 < 14: A(f"ds_read_b128 {vr(vX+4*ks,4)}, v5 offset:{(ks+8)*64}")
    A(f"s_lshl_b32 s{sD}, s{sB}, 5")
    A(f"s_add_u32 s{sD}, s{sD}, s{sF}")
    A(f"s_lshl_b32 s{sD}, s{sD}, 11")
    A(f"s_add_u32 s{sD}, s{sD}, {WS_OB3}")
    A(f"s_mul_i32 s{sA}, s{sW}, 448")
    A(f"s_add_u32 s{sD}, s{sD}, s{sA}")
    A("s_mov_b32 s24, 0x007f007f")
    A("s_mov_b32 s25, 0x007f007f")
    A("v_cvt_pk_bf16_f32 v20, v16, v17")
    A("v_cvt_pk_bf16_f32 v21, v18, v19")
    A("v_lshlrev_b32 v16, 16, v20")
    A("v_and_b32 v17, 0xffff0000, v20")
    A("v_lshlrev_b32 v18, 16, v21")
    A("v_and_b32 v19, 0xffff0000, v21")
    for k in range(4): A(f"v_add_f32 v{16+k}, v{16+k}, v{74+k}")
    A("v_cvt_pk_bf16_f32 v20, v16, v17")
    A("v_cvt_pk_bf16_f32 v21, v18, v19")
    A("v_lshlrev_b32 v16, 16, v20")
    A("v_and_b32 v17, 0xffff0000, v20")
    A("v_lshlrev_b32 v18, 16, v21")
    A("v_and_b32 v19, 0xffff0000, v21")
    for k in range(4): A(f"v_max_f32 v{16+k}, 0, v{16+k}")
    for k in range(4): A(f"v_mul_f32 v{16+k}, v{16+k}, v{16+k}")
    A("v_cvt_pk_bf16_f32 v20, v16, v17")
    A("v_cvt_pk_bf16_f32 v21, v18, v19")
    A("ds_write_b64 v7, v[20:21]")
    A("s_waitcnt lgkmcnt(0)")
    A("s_barrier")
    stamp(6, 't')
    for j in range(7):
        A(f"s_lshl_b64 exec, s[26:27], {j}")
        for ks in range(2):
            A(f"ds_read_b128 {vr(vY+4*(2*j+ks),4)}, v6 offset:{ks*64}")
    A("s_mov_b64 exec, -1")
    for q in range(14):
        A(f"s_waitcnt lgkmcnt({13-q})")
        c = "0" if q == 0 else "v[16:19]"
        A(f"v_mfma_f32_16x16x32_bf16 v[16:19], {vr(vW2+4*q,4)}, {vr(vY+4*q,4)}, {c}")
    A("s_mov_b64 exec, s[24:25]")
    A("s_nop 6")
    guard(range(16, 20))
    A(f"buffer_store_dwordx4 v[16:19], v8, {sr(S_WS,4)}, s{sD} offen sc1")
    A("s_mov_b64 exec, -1")
    stamp(7, 't')
    A(f"s_cmp_lg_u32 s{sW}, 0")
    A("s_cbranch_scc1 L_fin")
    A("v_lshrrev_b32 v12, 3, v0")
    A("v_lshlrev_b32 v12, 11, v12")
    A("v_and_b32 v13, 7, v0")
    A("v_lshl_add_u32 v12, v13, 3, v12")
    A(f"s_lshl_b32 s{sD}, s{sB}, 16")
    A(f"s_add_u32 s{sD}, s{sD}, {WS_OB3}")
    A(f"s_lshl_b32 s{sA}, s{sF}, 6")
    A(f"s_add_u32 s{sD}, s{sD}, s{sA}")
    for k in range(4): A(f"s_add_u32 s{20+k}, s{sD}, {k*16384}")
    A(f"v_mov_b32 v{vX+6}, 0")
    A(f"v_mov_b32 v{vX+7}, 0")
    A("v_lshlrev_b32 v13, 2, v13")
    A(f"s_lshl_b32 s{sA}, s{sF}, 5")
    A(f"s_add_u32 s{sBq}, s{sA}, {L_H}")
    A(f"v_add_u32 v14, s{sBq}, v13")
    A("ds_read_b32 v28, v14")
    A(f"s_mul_i32 s{sD}, s{sB}, 896")
    A(f"s_add_u32 s{sD}, s{sD}, s{sA}")
    A("s_waitcnt lgkmcnt(0)")
    A("v_lshlrev_b32 v29, 16, v28")
    A("v_and_b32 v28, 0xffff0000, v28")
    if ack: A("s_waitcnt vmcnt(0)")
    loads = [f"buffer_load_dwordx2 {vr(vX+2*k,2)}, v12, {sr(S_WS,4)}, s{20+k} offen sc1" for k in range(3)]
    loads += ["s_mov_b32 exec_hi, 0",
              f"buffer_load_dwordx2 {vr(vX+6,2)}, v12, {sr(S_WS,4)}, s23 offen sc1",
              "s_mov_b64 exec, -1"]
    poll(loads, range(vX, vX + 8), 15, spin)
    stamp(4)
    A(f"v_add_f32 v16, v{vX}, v{vX+2}")
    A(f"v_add_f32 v18, v{vX+1}, v{vX+3}")
    A(f"v_add_f32 v17, v{vX+4}, v{vX+6}")
    A(f"v_add_f32 v19, v{vX+5}, v{vX+7}")
    A("v_add_f32 v16, v16, v17")
    A("v_add_f32 v18, v18, v19")
    A("s_nop 0")
    A(f"v_add_f32_dpp v16, v16, v16 row_ror:8 {DPPM}")
    A(f"v_add_f32_dpp v18, v18, v18 row_ror:8 {DPPM}")
    for sw in ("v_permlane16_swap_b32", "v_permlane32_swap_b32"):
        A("v_mov_b32 v17, v16")
        A("v_mov_b32 v19, v18")
        A("s_nop 1")
        A(f"{sw} v16, v17")
        A(f"{sw} v18, v19")
        A("s_nop 1")
        A("v_add_f32 v16, v16, v17")
        A("v_add_f32 v18, v18, v19")
    A("v_cvt_pk_bf16_f32 v16, v16, v18")
    A("v_lshlrev_b32 v17, 16, v16")
    A("v_and_b32 v16, 0xffff0000, v16")
    A("v_add_f32 v17, v17, v78")
    A("v_add_f32 v16, v16, v79")
    A("v_cvt_pk_bf16_f32 v16, v17, v16")
    A("v_lshlrev_b32 v17, 16, v16")
    A("v_and_b32 v16, 0xffff0000, v16")
    A("v_add_f32 v17, v17, v29")
    A("v_add_f32 v16, v16, v28")
    A("v_cvt_pk_bf16_f32 v16, v17, v16")
    A("s_mov_b64 exec, 0xff")
    A(f"buffer_store_dword v16, v13, {sr(S_OUT,4)}, s{sD} offen")
    A("s_mov_b64 exec, -1")
    A.lab("L_fin")
    if stamps:
        A("s_waitcnt vmcnt(0)")
        stamp(11)
        dump_stamps(12)
        A("s_endpgm")
    A.lab("L_send")
    if stamps:
        dump_stamps(11)
    A.lab("L_end")
    A("s_endpgm")

    tail = []
    tail.append('.section .rodata,"a"')
    tail.append(".p2align 6")
    tail.append(f".amdhsa_kernel {KN}")
    tail.append("  .amdhsa_next_free_vgpr 256")
    tail.append("  .amdhsa_next_free_sgpr 102")
    tail.append("  .amdhsa_accum_offset 256")
    tail.append("  .amdhsa_group_segment_fixed_size 0")
    tail.append("  .amdhsa_kernarg_size 104")
    tail.append("  .amdhsa_user_sgpr_count 2")
    tail.append("  .amdhsa_user_sgpr_kernarg_segment_ptr 1")
    tail.append("  .amdhsa_system_sgpr_workgroup_id_x 1")
    tail.append("  .amdhsa_float_denorm_mode_32 3")
    tail.append(".end_amdhsa_kernel")
    return "\n".join(hdr + A.L + tail) + "\n"

if __name__ == "__main__":
    kw = eval("dict(%s)" % (sys.argv[2] if len(sys.argv) > 2 else ""))
    open(sys.argv[1], "w").write(gen(**kw))
```

```python
import sys, struct

KN = "sequential_preLN__gqa_block_cached__dense_activation_squared_relu__decode_kernel"

def f32(x):
    return struct.unpack("<I", struct.pack("<f", x))[0]

TAG = 0x5A17C0DE
LOG2E_16 = 1.4426950408889634 / 16.0

WS_Q = 0x0
WS_OB1 = 0x10000
WS_ML = 0x90000
WS_OB2 = 0xA0000
WS_OB3 = 0xC0000
WS_SC = 0x140000
WS_ST = 0x600000
WS_SIZE = 0x800000

L_WO = 0
L_W1S = 0
L_W2S = 65536
L_WQ = 0
L_XN = 16384
L_S = 131072
L_QF = L_S
L_PART = L_S + 1024
L_STAT = L_S + 9216
L_F = L_S + 9280
L_FLAG = L_S + 9344
L_OBF = L_S + 9472
L_H = L_S + 10496
L_XN2 = L_S + 11520
L_R2 = L_S + 15616
LDS_SIZE = L_S + 15872

class G:
    def __init__(self):
        self.L = []
        self.nlab = 0
    def __call__(self, s):
        self.L.append("  " + s)
    def lab(self, name):
        self.L.append(name + ":")
    def newlab(self, p="L"):
        self.nlab += 1
        return f"{p}_{self.nlab}"
    def c(self, s):
        self.L.append("  ; " + s)

def vr(a, n=1):
    return f"v{a}" if n == 1 else f"v[{a}:{a+n-1}]"
def sr(a, n=1):
    return f"s{a}" if n == 1 else f"s[{a}:{a+n-1}]"

DPPM = "row_mask:0xf bank_mask:0xf"

def gen(RG0=20, RS=6, stamps=False, spin=1 << 20, dry=False, wpace=6, PP=4, E=8, now=0, kf='nt', vf='nt', wf='', LAG=None, D=3, NPOOL=8, mix=1, ack=1, RSP=4, nowq=0, noext=0):
    A = G()
    hdr = []
    hdr.append(f"; @launch grid=(256,1,1) block=(512,1,1) lds={LDS_SIZE}")
    hdr.append('.amdgcn_target "amdgcn-amd-amdhsa--gfx950"')
    hdr.append(".text")
    hdr.append(f".globl {KN}")
    hdr.append(".p2align 8")
    hdr.append(f".type {KN},@function")
    hdr.append(f"{KN}:")

    S_K, S_V, S_X, S_WQ, S_WO, S_W1, S_B1, S_W2, S_B2, S_OUT, S_DBG, S_WS = [44 + 4 * i for i in range(12)]
    sWAVE = 3
    sHKV, sB, sS, sLID, sI = 4, 5, 6, 7, 8
    sSPIN, sT1, sT2, sDRY = 9, 10, 11, 12
    sF, sC, sCNT = 13, 14, 15
    sA, sBq, sCq, sD = 16, 17, 18, 19
    sEX = 42
    sST = 92

    def slot(idx):
        return sST + 2 * idx if idx < 5 else 28 + 2 * (idx - 5)
    def stamp(idx, grp=None):
        if stamps and (grp is None or grp == stamps):
            A(f"s_memrealtime s[{slot(idx)}:{slot(idx)+1}]")
    def dump_stamps(n):
        A("s_waitcnt lgkmcnt(0)")
        A(f"s_lshl_b32 s{sT1}, s2, 3")
        A(f"s_add_u32 s{sT1}, s{sT1}, s{sWAVE}")
        A(f"s_lshl_b32 s{sT1}, s{sT1}, 6")
        A(f"s_add_u32 s{sT1}, s{sT1}, {WS_ST}")
        A("v_mov_b32 v20, 0")
        A("v_cmp_eq_u32 vcc, 0, v0")
        A(f"s_and_saveexec_b64 s[{sEX}:{sEX+1}], vcc")
        for k in range(n):
            A(f"v_mov_b32 v21, s{slot(k)}")
            A(f"buffer_store_dword v21, v20, {sr(S_WS,4)}, s{sT1} offen offset:{4*k}")

    def srd(dst, ptr, size):
        A(f"s_mov_b32 s{dst}, s{ptr}")
        A(f"s_mov_b32 s{dst+1}, s{ptr+1}")
        A(f"s_mov_b32 s{dst+2}, {hex(size)}")
        A(f"s_mov_b32 s{dst+3}, 0x20000")

    def rbf(v):
        A(f"v_cvt_pk_bf16_f32 v{v}, v{v}, v{v}")
        A(f"v_and_b32 v{v}, 0xffff0000, v{v}")

    def reduce_lanes(v, t, full, op="add"):
        for m in ("quad_perm:[1,0,3,2]", "quad_perm:[2,3,0,1]", "row_half_mirror", "row_mirror"):
            A("s_nop 1")
            A(f"v_{op}_f32_dpp v{v}, v{v}, v{v} {m} {DPPM}")
        sw = ["v_permlane16_swap_b32"] + (["v_permlane32_swap_b32"] if full else [])
        for s_ in sw:
            A(f"v_mov_b32 v{t}, v{v}")
            A("s_nop 1")
            A(f"{s_} v{v}, v{t}")
            A("s_nop 1")
            A(f"v_{op}_f32 v{v}, v{v}, v{t}")

    def tree_add(dst, regs, tmp):
        cur = list(regs); k = 0
        while len(cur) > 1:
            nxt = []
            for a in range(0, len(cur) - 1, 2):
                d = dst if len(cur) == 2 else tmp + k
                if len(cur) != 2: k += 1
                A(f"v_add_f32 v{d}, v{cur[a]}, v{cur[a+1]}")
                nxt.append(d)
            if len(cur) & 1: nxt.append(cur[-1])
            cur = nxt

    def div448(v, t):
        A(f"v_mul_f32 v{t}, {hex(f32(1.0/448.0))}, v{v}")
        A(f"v_fma_f32 v{v}, v{t}, s{sT2}, v{v}")
        A(f"v_fma_f32 v{v}, v{v}, s{sT1}, v{t}")

    def layernorm(src, E, f, d, t, vvalid, full):
        A(f"s_mov_b32 s{sT1}, {hex(f32(1.0/448.0))}")
        A(f"s_mov_b32 s{sT2}, {hex(f32(-448.0))}")
        for k in range(E // 2):
            A(f"v_lshlrev_b32 v{f+2*k}, 16, v{src+k}")
            A(f"v_and_b32 v{f+2*k+1}, 0xffff0000, v{src+k}")
        tree_add(t, range(f, f + E), d)
        reduce_lanes(t, t + 1, full)
        div448(t, t + 1)
        for k in range(E): A(f"v_sub_f32 v{d+k}, v{f+k}, v{t}")
        for k in range(E // 2): A(f"v_mul_f32 v{d+k}, v{d+k}, v{d+k}")
        for k in range(E // 2): A(f"v_fma_f32 v{d+k}, v{d+E//2+k}, v{d+E//2+k}, v{d+k}")
        tree_add(t + 2, range(d, d + E // 2), d + E // 2)
        A(f"v_cvt_pk_bf16_f32 v{t}, v{t}, v{t}")
        A(f"v_mul_f32 v{t+2}, v{t+2}, v{vvalid}")
        A(f"v_and_b32 v{t}, 0xffff0000, v{t}")
        fill = [f"v_sub_f32 v{f+k}, v{f+k}, v{t}" for k in range(E)]
        fill += [f"v_cvt_pk_bf16_f32 v{src+k}, v{f+2*k}, v{f+2*k+1}" for k in range(E // 2)]
        for k in range(E // 2):
            fill.append(f"v_lshlrev_b32 v{f+2*k}, 16, v{src+k}")
            fill.append(f"v_and_b32 v{f+2*k+1}, 0xffff0000, v{src+k}")
        def F(n):
            for _ in range(n):
                if fill: A(fill.pop(0))
                else: A("s_nop 0")
        v = t + 2
        for m in ("quad_perm:[1,0,3,2]", "quad_perm:[2,3,0,1]", "row_half_mirror", "row_mirror"):
            F(2)
            A(f"v_add_f32_dpp v{v}, v{v}, v{v} {m} {DPPM}")
        sw = ["v_permlane16_swap_b32"] + (["v_permlane32_swap_b32"] if full else [])
        for s_ in sw:
            A(f"v_mov_b32 v{t+1}, v{v}")
            F(2)
            A(f"{s_} v{v}, v{t+1}")
            F(2)
            A(f"v_add_f32 v{v}, v{v}, v{t+1}")
        div448(v, t + 1)
        rbf(v)
        A(f"v_add_f32 v{v}, {hex(f32(1e-5))}, v{v}")
        rbf(v)
        A(f"v_sqrt_f32 v{v}, v{v}")
        F(1)
        rbf(v)
        A(f"v_rcp_f32 v{v}, v{v}")
        while fill: A(fill.pop(0))
        A("s_nop 0")
        for k in range(E): A(f"v_mul_f32 v{f+k}, v{f+k}, v{v}")
        for k in range(E // 2):
            A(f"v_cvt_pk_bf16_f32 v{src+k}, v{f+2*k}, v{f+2*k+1}")

    def lds_wait(addr_v, tmp, target, sleep=2):
        lp = A.newlab("L_lw"); dn = A.newlab("L_lwd")
        A(f"s_mov_b32 s{sCNT}, {spin}")
        A.lab(lp)
        A(f"ds_read_b32 v{tmp}, v{addr_v}")
        A("s_waitcnt lgkmcnt(0)")
        A(f"v_cmp_gt_u32 vcc, {target}, v{tmp}")
        A(f"s_cbranch_vccz {dn}")
        if sleep: A(f"s_sleep {sleep}")
        A(f"s_sub_u32 s{sCNT}, s{sCNT}, 1")
        A(f"s_cmp_lg_u32 s{sCNT}, 0")
        A(f"s_cbranch_scc1 {lp}")
        A.lab(dn)

    def lds_inc(addr_v, tmp):
        A(f"v_mov_b32 v{tmp}, 1")
        A("s_mov_b64 exec, 1")
        A(f"ds_add_u32 v{addr_v}, v{tmp}")
        A("s_mov_b64 exec, -1")

    def poll(loads, regs, t0, cnt_src):
        lp = A.newlab("L_p"); dn = A.newlab("L_pd")
        A(f"s_mov_b32 s{sCNT}, {cnt_src}")
        A.lab(lp)
        for x in loads: A(x)
        A("s_waitcnt vmcnt(0)")
        regs = list(regs)
        if len(regs) == 1:
            A(f"v_cmp_eq_u32 vcc, -1, v{regs[0]}")
        else:
            if len(regs) == 2:
                A(f"v_max_u32 v{t0}, v{regs[0]}, v{regs[1]}"); rest = []
            else:
                A(f"v_max3_u32 v{t0}, v{regs[0]}, v{regs[1]}, v{regs[2]}"); rest = regs[3:]
            while rest:
                if len(rest) >= 2:
                    A(f"v_max3_u32 v{t0}, v{t0}, v{rest[0]}, v{rest[1]}"); rest = rest[2:]
                else:
                    A(f"v_max_u32 v{t0}, v{t0}, v{rest[0]}"); rest = rest[1:]
            A(f"v_cmp_eq_u32 vcc, -1, v{t0}")
        A(f"s_cbranch_vccz {dn}")
        A(f"s_sub_u32 s{sCNT}, s{sCNT}, 1")
        A(f"s_cmp_lg_u32 s{sCNT}, 0")
        A(f"s_cbranch_scc1 {lp}")
        A.lab(dn)
    def guard(regs):
        for r in regs: A(f"v_min_u32 v{r}, -2, v{r}")

    A("s_cmp_ge_u32 s2, 256")
    A("s_cbranch_scc1 L_end")
    A("s_load_dwordx16 s[16:31], s[0:1], 0")
    A("s_load_dwordx8 s[32:39], s[0:1], 64")
    A("s_load_dwordx2 s[40:41], s[0:1], 96")
    stamp(0)
    A("v_lshrrev_b32 v1, 6, v0")
    A("v_and_b32 v0, 63, v0")
    A(f"v_readfirstlane_b32 s{sWAVE}, v1")
    A(f"s_lshr_b32 s{sT1}, s2, 3")
    A(f"s_lshr_b32 s{sB}, s{sT1}, 2")
    A(f"s_and_b32 s{sS}, s{sT1}, 3")
    if mix:
        A(f"s_add_u32 s{sT2}, s{sS}, 1")
        A(f"s_mul_i32 s{sT2}, s{sT2}, s{sS}")
        A(f"s_lshr_b32 s{sT2}, s{sT2}, 1")
        A(f"s_sub_u32 s{sHKV}, s2, s{sT2}")
        A(f"s_and_b32 s{sHKV}, s{sHKV}, 7")
    else:
        A(f"s_and_b32 s{sHKV}, s2, 7")
    A(f"s_lshl_b32 s{sI}, s{sHKV}, 2")
    A(f"s_add_u32 s{sI}, s{sI}, s{sS}")
    A(f"s_lshl_b32 s{sLID}, s{sB}, 5")
    A(f"s_add_u32 s{sLID}, s{sLID}, s{sI}")
    A(f"s_add_u32 s{sF}, s{sI}, 3")
    A(f"s_lshr_b32 s{sF}, s{sF}, 3")
    A(f"s_sub_u32 s{sF}, s{sI}, s{sF}")
    A(f"s_and_b32 s{sT2}, s{sI}, 7")
    A(f"s_cmp_eq_u32 s{sT2}, 4")
    A(f"s_cselect_b32 s{sF}, 99, s{sF}")
    A(f"s_mov_b32 s{sC}, {hex(f32(LOG2E_16))}")
    A(f"s_mov_b32 s{sDRY}, 0")
    A("v_and_b32 v2, 15, v0")
    A("v_lshrrev_b32 v3, 4, v0")
    A(f"s_cmp_lt_u32 s{sWAVE}, 4")
    A("s_cbranch_scc1 L_helper")

    vOFF = 1
    vMAX, vL, vNMC = 11, 12, 13
    vT = 14
    vQ = 16
    vO = 32
    vA = 40
    vU = 48
    vSC = 56
    vP = 88
    vRING = 96
    sW = 9
    sBASE, sOFF, sSEL0, sSEL1 = 22, 23, 24, 25
    A.c("stream wave")
    A(f"s_sub_u32 s{sW}, s{sWAVE}, 4")
    A(f"s_lshl_b32 s{sT1}, s{sB}, 3")
    A(f"s_add_u32 s{sT1}, s{sT1}, s{sHKV}")
    A(f"s_lshl_b32 s{sT1}, s{sT1}, 21")
    A(f"s_lshl_b32 s{sT2}, s{sS}, 19")
    A(f"s_add_u32 s{sT1}, s{sT1}, s{sT2}")
    A(f"s_lshl_b32 s{sT2}, s{sW}, 11")
    A(f"s_add_u32 s{sCNT}, s{sT1}, s{sT2}")
    A(f"v_lshlrev_b32 v{vOFF}, 9, v3")
    A(f"v_lshl_add_u32 v{vOFF}, v2, 4, v{vOFF}")
    A("s_waitcnt lgkmcnt(0)")
    srd(S_K, 18, 0x8000000)
    srd(S_V, 20, 0x8000000)
    A(f"s_mov_b32 s{sBASE}, s{sCNT}")

    NG = 64
    NST = 2 * NG - 2 * NPOOL
    vmlog = []
    def after_n(key):
        idx = max(k for k, v in enumerate(vmlog) if v == key)
        return min(63, len(vmlog) - 1 - idx)
    issued = [0]
    L_EXT = 131072 - 4 * E * 2048
    sEXT = 21
    def is_ext(j): return RG0 <= j < RG0 + E
    def slot_of(j):
        assert not is_ext(j)
        return vRING + 8 * ((j if j < RG0 else j - E) % RG0)
    def issue(j):
        s = S_K if j < NG else S_V
        off = (j % NG) * 8192
        out = []
        fl = kf if j < NG else vf
        out.append(f"s_add_u32 s{sOFF}, s{sBASE}, {off}")
        if is_ext(j):
            e = j - RG0
            out.append(f"s_add_u32 m0, s{sEXT}, {e*2048}")
            out.append("s_nop 0")
            out.append(f"buffer_load_dwordx4 v{vOFF}, {sr(s,4)}, s{sOFF} offen {fl} lds")
            out.append(f"s_add_u32 m0, s{sEXT}, {e*2048 + 1024 - 256}")
            out.append("s_nop 0")
            out.append(f"buffer_load_dwordx4 v{vOFF}, {sr(s,4)}, s{sOFF} offen offset:256 {fl} lds")
        else:
            r = slot_of(j)
            out.append(f"buffer_load_dwordx4 {vr(r,4)}, v{vOFF}, {sr(s,4)}, s{sOFF} offen {fl}")
            out.append(f"buffer_load_dwordx4 {vr(r+4,4)}, v{vOFF}, {sr(s,4)}, s{sOFF} offen offset:256 {fl}")
        issued[0] = j + 1
        vmlog.append(("g", j)); vmlog.append(("g", j))
        return out
    A(f"s_mul_i32 s{sEXT}, s{sW}, {E*2048}")
    A(f"s_add_u32 s{sEXT}, s{sEXT}, {L_EXT}")
    for j in range(RSP):
        for x in issue(j): A(x)
    srd(S_WS, 40, WS_SIZE)
    A("v_and_b32 v8, 7, v2")
    A("v_and_b32 v11, 1, v8")
    A("v_mov_b32 v12, 0xffff")
    A("v_lshlrev_b32 v11, 4, v11")
    A("v_lshlrev_b32 v12, v11, v12")
    A("v_lshrrev_b32 v11, 1, v8")
    for k in range(4):
        A(f"v_cmp_eq_u32 vcc, {k}, v11")
        A("s_nop 1")
        A(f"v_cndmask_b32 v{4+k}, 0, v12, vcc")
    A(f"s_mov_b32 s{sSEL0}, 0x01000100")
    A(f"s_mov_b32 s{sSEL1}, 0x03020302")
    A("s_barrier")
    for j in range(RSP, RG0 + E):
        A(f"s_waitcnt vmcnt({2*(RSP-1)})")
        if j == RSP: stamp(5)
        if j == 16: stamp(6)
        for x in issue(j): A(x)
    A("v_lshlrev_b32 v8, 4, v0")
    A(f"v_add_u32 v8, s{sEXT}, v8")
    for k in range(8): A(f"v_mov_b32 v{vO+k}, 0")
    A(f"v_mov_b32 v{vMAX}, 0xff800000")
    A(f"v_mov_b32 v{vL}, 0")
    A(f"v_lshrrev_b32 v{vT}, 3, v2")
    A(f"v_lshlrev_b32 v{vT}, 9, v{vT}")
    A(f"v_lshl_add_u32 v{vT}, v2, 4, v{vT}")
    A(f"v_xor_b32 v{vT+1}, 512, v{vT}")
    A(f"v_add_u32 v{vT}, {L_QF}, v{vT}")
    A(f"v_add_u32 v{vT+1}, {L_QF}, v{vT+1}")
    stamp(4)
    A("s_barrier")
    stamp(1)
    A(f"ds_read_b128 {vr(vQ,4)}, v{vT}")
    A(f"ds_read_b128 {vr(vQ+4,4)}, v{vT} offset:256")
    A(f"ds_read_b128 {vr(vQ+8,4)}, v{vT+1}")
    A(f"ds_read_b128 {vr(vQ+12,4)}, v{vT+1} offset:256")
    A("s_waitcnt lgkmcnt(0)")

    if LAG is None: LAG = RS + 2
    consumed = set()
    nstep = [0]
    def prev_occupant(j):
        if j < RG0: return None
        return j - RG0 - E if j - RG0 - E < RG0 and j < 2 * RG0 + E else j - RG0
    def after_step(groups):
        out = []
        for g_ in groups: consumed.add(g_)
        nstep[0] += 1
        lag = issued[0] - len(consumed)
        if lag >= LAG:
            want = len(groups) if nstep[0] * len(groups) <= RS else max(1, len(groups) // 2) if len(groups) > 1 else (nstep[0] & 1)
        else:
            want = LAG - lag
        for _ in range(want):
            j = issued[0]
            if j >= NST: break
            if prev_occupant(j) not in consumed: break
            assert slot_of(prev_occupant(j)) == slot_of(j)
            out.append(f"s_waitcnt vmcnt({2*(RS-1)})")
            out += issue(j)
        return out

    def merge(X, Y, every=3):
        out = []; yi = 0
        for k, x in enumerate(X):
            out.append(x)
            if (k + 1) % every == 0 and yi < len(Y):
                out.append(Y[yi]); yi += 1
        assert yi == len(Y)
        return out

    Yprev = []
    regp = [p for p in range(NG // 2) if not is_ext(2 * p)]
    extp = [p for p in range(NG // 2) if is_ext(2 * p)]
    order = []
    for k, p in enumerate(regp):
        order.append(p)
        if k >= 1 and extp: order.append(extp.pop(0))
    next_ext = [p for p in order if is_ext(2 * p)]
    def ext_read(p):
        e = 2 * p - RG0
        return [f"ds_read_b128 {vr(vA,4)}, v8 offset:{e*2048}",
                f"ds_read_b128 {vr(vA+4,4)}, v8 offset:{e*2048+1024}",
                f"ds_read_b128 {vr(vP,4)}, v8 offset:{e*2048+2048}",
                f"ds_read_b128 {vr(vP+4,4)}, v8 offset:{e*2048+3072}"]
    for oi, p in enumerate(order):
        ga, gb = 2 * p, 2 * p + 1
        ub = vU + 4 * (oi & 1)
        ua_, wa_, ub_, wb_ = ub, ub + 1, ub + 2, ub + 3
        if is_ext(ga):
            ra, rb = vA, vP
            A("s_waitcnt lgkmcnt(0)")
        else:
            ra, rb = slot_of(ga), slot_of(gb)
            assert issued[0] > gb
            n_after = after_n(("g", gb))
            nxt = order[oi + 1] if oi + 1 < len(order) else None
            if nxt is not None and is_ext(2 * nxt):
                n_after = min(n_after, after_n(("g", 2 * nxt + 1)))
                A(f"s_waitcnt vmcnt({n_after})")
                for x in ext_read(nxt): A(x)
            else:
                A(f"s_waitcnt vmcnt({n_after})")
        X = []
        for e in range(8):
            for (acc, r, q) in ((ua_, ra, vQ + e), (wa_, ra, vQ + 8 + e), (ub_, rb, vQ + e), (wb_, rb, vQ + 8 + e)):
                src2 = "0" if e == 0 else f"v{acc}"
                X.append(f"v_dot2_f32_bf16 v{acc}, v{r+e}, v{q}, {src2}")
        for x in merge(X, Yprev): A(x)
        for x in after_step([ga, gb]): A(x)
        if E and p == next_ext[-1]:
            A(f"v_mov_b32 v8, {L_FLAG+20}")
            lds_inc(8, 9)
        Y = []
        Y.append(f"v_add_f32_dpp v{ua_}, v{wa_}, v{ua_} row_ror:8 {DPPM}")
        Y.append(f"v_add_f32_dpp v{ub_}, v{wb_}, v{ub_} row_ror:8 {DPPM}")
        for m in ("quad_perm:[1,0,3,2]", "quad_perm:[2,3,0,1]", "row_half_mirror"):
            Y.append(f"v_add_f32_dpp v{ua_}, v{ua_}, v{ua_} {m} {DPPM}")
            Y.append(f"v_add_f32_dpp v{ub_}, v{ub_}, v{ub_} {m} {DPPM}")
        Y.append(f"v_cvt_pk_bf16_f32 v{vSC+p}, v{ua_}, v{ub_}")
        Y.append(f"v_max3_f32 v{vMAX}, v{ua_}, v{ub_}, v{vMAX}")
        Yprev = Y
    A("s_nop 2")
    for y in Yprev:
        A(y); A("s_nop 1")
    for s_ in ("v_permlane16_swap_b32", "v_permlane32_swap_b32"):
        A(f"v_mov_b32 v{vT}, v{vMAX}")
        A("s_nop 1")
        A(f"{s_} v{vMAX}, v{vT}")
        A("s_nop 1")
        A(f"v_max_f32 v{vMAX}, v{vMAX}, v{vT}")
    rbf(vMAX)
    A(f"v_mul_f32 v{vNMC}, s{sC}, v{vMAX}")
    A(f"v_sub_f32 v{vNMC}, 0, v{vNMC}")
    stamp(2)

    def ppair(pi):
        sc = vSC + pi
        a, b = vP + 2, vP + 3
        return [f"v_lshlrev_b32 v{a}, 16, v{sc}",
                f"v_and_b32 v{b}, 0xffff0000, v{sc}",
                f"v_fma_f32 v{a}, v{a}, s{sC}, v{vNMC}",
                f"v_fma_f32 v{b}, v{b}, s{sC}, v{vNMC}",
                f"v_exp_f32 v{a}, v{a}",
                f"v_exp_f32 v{b}, v{b}",
                f"v_add_f32 v{vL}, v{vL}, v{a}",
                f"v_cvt_pk_bf16_f32 v{sc}, v{a}, v{b}",
                f"v_add_f32 v{vL}, v{vL}, v{b}"]
    def abuild(i):
        a = vA + 4 * (i & 1)
        t = vP + (i & 1)
        sc = vSC + (i >> 1)
        out = [f"v_perm_b32 v{t}, v{sc}, v{sc}, s{sSEL1 if i & 1 else sSEL0}"]
        for k in range(4): out.append(f"v_and_b32 v{a+k}, v{4+k}, v{t}")
        return out
    assert NPOOL % 4 == 0 and NPOOL <= 16
    A("v_lshrrev_b32 v16, 3, v2")
    A("v_lshl_add_u32 v16, v3, 1, v16")
    A("v_lshlrev_b32 v16, 6, v16")
    A(f"s_lshl_b32 s{sT1}, s{sLID}, 11")
    A(f"s_lshl_b32 s{sT2}, s{sW}, 9")
    A(f"s_add_u32 s{sT1}, s{sT1}, s{sT2}")
    A(f"s_add_u32 s{sT1}, s{sT1}, {WS_SC}")
    A("s_mov_b32 exec_lo, 0x01010101")
    A("s_mov_b32 exec_hi, 0x01010101")
    for k in range(NPOOL // 4):
        A(f"buffer_store_dwordx4 {vr(vSC+32-NPOOL+4*k,4)}, v16, {sr(S_WS,4)}, s{sT1} offen offset:{16*k} sc1")
        vmlog.append(("st", 0))
    A("s_mov_b64 exec, -1")
    NR = D + 1
    vAT = 48
    vS = 20
    assert NR <= 8
    vZ = 17
    sTK = 26
    sGV = 27
    sGS = 28 if not stamps else 18
    sSELP = 72
    sTKT, sA0, sA1 = 68, 69, 70
    A(f"v_mov_b32 v{vZ}, 0")
    A(f"s_andn2_b32 s{sT1}, s{sLID}, 3")
    A(f"s_lshl_b32 s{sTK}, s{sT1}, 7")
    A(f"s_add_u32 s{sTK}, s{sTK}, {WS_ML + 112}")
    A(f"s_lshl_b32 s{sGS}, s{sT1}, 11")
    A(f"s_add_u32 s{sGS}, s{sGS}, {WS_SC}")
    A(f"s_lshl_b32 s{sGV}, s{sB}, 3")
    A(f"s_add_u32 s{sGV}, s{sGV}, s{sHKV}")
    A(f"s_lshl_b32 s{sGV}, s{sGV}, 21")
    A(f"s_add_u32 s{sGV}, s{sGV}, {(NG - 2*NPOOL) * 8192}")
    dslot = [slot_of(NST - RG0 + k) for k in range(2 * NR)]
    dprev = [NST - RG0 + k for k in range(2 * NR)]
    def atomic(k):
        vmlog.append(("at", k))
        return [f"v_mov_b32 v{vAT + k % NR}, 1",
                "s_mov_b64 exec, 1",
                f"buffer_atomic_add v{vAT + k % NR}, v{vZ}, {sr(S_WS,4)}, s{sTK} offen sc0 sc1",
                "s_mov_b64 exec, -1"]
    def ticket_read(k):
        return [f"v_readfirstlane_b32 s{sTKT}, v{vAT + (k - (D-1)) % NR}", "s_nop 3", f"s_add_u32 s{sTKT}, s{sTKT}, 1"]
    def dissue(k, guard):
        pos = k % NR
        o = []
        o.append(f"s_lshr_b32 s{sA0}, s{sTKT}, 4")
        o.append(f"s_and_b32 s{sA1}, s{sTKT}, 15")
        o.append(f"s_lshl_b32 s{sOFF}, s{sA1}, 9")
        o.append(f"s_lshl2_add_u32 s{sOFF}, s{sA0}, s{sOFF}")
        o.append(f"s_add_u32 s{sOFF}, s{sOFF}, s{sGS}")
        o.append(f"s_lshl_b32 s{sA0}, s{sA0}, 14")
        o.append(f"s_add_u32 s{sA0}, s{sA0}, s{sGV}")
        o.append(f"s_and_b32 s{sT1}, s{sA1}, 3")
        o.append(f"s_lshl_b32 s{sT1}, s{sT1}, 11")
        o.append(f"s_add_u32 s{sA0}, s{sA0}, s{sT1}")
        o.append(f"s_lshr_b32 s{sA1}, s{sA1}, 2")
        o.append(f"s_lshl_b32 s{sA1}, s{sA1}, 19")
        o.append(f"s_add_u32 s{sA0}, s{sA0}, s{sA1}")
        if guard:
            o.append(f"s_cmp_lt_u32 s{sTKT}, {16*NPOOL}")
            o.append(f"s_cselect_b32 s{sA0}, s{sA0}, 0x7ff00000")
            o.append(f"s_cselect_b32 s{sOFF}, s{sOFF}, 0x7ff00000")
            o.append(f"s_cselect_b32 s{sSELP+2*pos}, s{sSEL0}, 0x0c0c0c0c")
            o.append(f"s_cselect_b32 s{sSELP+2*pos+1}, s{sSEL1}, 0x0c0c0c0c")
        else:
            o.append(f"s_mov_b32 s{sSELP+2*pos}, s{sSEL0}")
            o.append(f"s_mov_b32 s{sSELP+2*pos+1}, s{sSEL1}")
        o.append(f"s_add_u32 s{sA1}, s{sA0}, 8192")
        o += atomic(k)
        o.append(f"buffer_load_dword v{vS+pos}, v16, {sr(S_WS,4)}, s{sOFF} offen sc1")
        ra, rb = dslot[2*pos], dslot[2*pos+1]
        o.append(f"buffer_load_dwordx4 {vr(ra,4)}, v{vOFF}, {sr(S_V,4)}, s{sA0} offen {vf}")
        o.append(f"buffer_load_dwordx4 {vr(ra+4,4)}, v{vOFF}, {sr(S_V,4)}, s{sA0} offen offset:256 {vf}")
        o.append(f"buffer_load_dwordx4 {vr(rb,4)}, v{vOFF}, {sr(S_V,4)}, s{sA1} offen {vf}")
        o.append(f"buffer_load_dwordx4 {vr(rb+4,4)}, v{vOFF}, {sr(S_V,4)}, s{sA1} offen offset:256 {vf}")
        for _ in range(5): vmlog.append(("d", k))
        return o
    def dconsume(k):
        pos = k % NR
        sc = vS + pos
        a, b = vP + 2, vP + 3
        ra, rb = dslot[2*pos], dslot[2*pos+1]
        o = [f"v_lshlrev_b32 v{a}, 16, v{sc}",
             f"v_and_b32 v{b}, 0xffff0000, v{sc}",
             f"v_fma_f32 v{a}, v{a}, s{sC}, v{vNMC}",
             f"v_fma_f32 v{b}, v{b}, s{sC}, v{vNMC}",
             f"v_exp_f32 v{a}, v{a}",
             f"v_exp_f32 v{b}, v{b}",
             "s_nop 0",
             f"v_cvt_pk_bf16_f32 v{a}, v{a}, v{b}",
             f"v_perm_b32 v{vP}, v{a}, v{a}, s{sSELP+2*pos}",
             f"v_perm_b32 v{vP+1}, v{a}, v{a}, s{sSELP+2*pos+1}"]
        for k_ in range(4): o.append(f"v_and_b32 v{vA+k_}, v{4+k_}, v{vP}")
        for k_ in range(4): o.append(f"v_and_b32 v{vA+4+k_}, v{4+k_}, v{vP+1}")
        o.append(f"v_mfma_f32_16x16x32_bf16 {vr(vO,4)}, {vr(vA,4)}, {vr(ra,4)}, {vr(vO,4)}")
        o.append(f"v_mfma_f32_16x16x32_bf16 {vr(vO+4,4)}, {vr(vA,4)}, {vr(ra+4,4)}, {vr(vO+4,4)}")
        o.append(f"v_mfma_f32_16x16x32_bf16 {vr(vO,4)}, {vr(vA+4,4)}, {vr(rb,4)}, {vr(vO,4)}")
        o.append(f"v_mfma_f32_16x16x32_bf16 {vr(vO+4,4)}, {vr(vA+4,4)}, {vr(rb+4,4)}, {vr(vO+4,4)}")
        return o

    for x in ppair(0): A(x)
    for x in abuild(0): A(x)
    nextp = [1]
    LDONE = (31 + PP - 1) // PP - 1
    NV = NST - NG
    first_dyn_i = NV - LAG
    ev = {}
    for n_, k in enumerate(range(-(D-1), 0)):
        ev.setdefault(first_dyn_i - 2 * (D - 1) + 2 * n_, []).append(("at", k))
    for k in range(D):
        ev.setdefault(min(NV - 1, first_dyn_i + (2 * k * 3) // D), []).append(("d", k))
    for i in range(NV):
        gi = NG + i
        r = slot_of(gi)
        a = vA + 4 * (i & 1)
        assert issued[0] > gi
        if nextp[0] < 32:
            for _ in range(PP):
                if nextp[0] < 32:
                    for x in ppair(nextp[0]): A(x)
                    nextp[0] += 1
        else:
            A("s_nop 0")
        A(f"s_waitcnt vmcnt({after_n(('g', gi))})")
        A(f"v_mfma_f32_16x16x32_bf16 {vr(vO,4)}, {vr(a,4)}, {vr(r,4)}, {vr(vO,4)}")
        A(f"v_mfma_f32_16x16x32_bf16 {vr(vO+4,4)}, {vr(a,4)}, {vr(r+4,4)}, {vr(vO+4,4)}")
        for x in after_step([gi]): A(x)
        if i == 16: stamp(9)
        if i == 32: stamp(10)
        for (kind, k) in ev.get(i, []):
            if kind == "at":
                for x in atomic(k): A(x)
            else:
                assert issued[0] == NST
                assert dprev[2*(k%NR)] in consumed and dprev[2*(k%NR)+1] in consumed
                if k == 0:
                    A(f"v_mov_b32 v18, {L_FLAG+4}")
                    lds_wait(18, 19, 1)
                    A("ds_read_b32 v28, v29")
                    A("ds_read_b32 v30, v31")
                A(f"s_waitcnt vmcnt({min(after_n(('at', k-(D-1))), 2*(RS-1))})")
                for x in ticket_read(k): A(x)
                if k == 0: A(f"s_mov_b32 s71, s{sTKT}")
                for x in dissue(k, True): A(x)
        if i + 1 < NV:
            for x in abuild(i + 1): A(x)
        if i == LDONE:
            assert nextp[0] == 32
            for s_ in ("v_permlane16_swap_b32", "v_permlane32_swap_b32"):
                A(f"v_mov_b32 v{vT}, v{vL}")
                A("s_nop 1")
                A(f"{s_} v{vL}, v{vT}")
                A("s_nop 1")
                A(f"v_add_f32 v{vL}, v{vL}, v{vT}")
            A(f"v_and_b32 v{vT}, 8, v2")
            A(f"s_lshl_b32 s{sT1}, s{sW}, 4")
            A(f"s_add_u32 s{sT1}, s{sT1}, {L_STAT}")
            A(f"v_add_u32 v{vT}, s{sT1}, v{vT}")
            A(f"v_mov_b32 v{vP+4}, v{vMAX}")
            A(f"v_mov_b32 v{vP+5}, v{vL}")
            A(f"ds_write_b64 v{vT}, {vr(vP+4,2)}")
            A(f"v_mov_b32 v{vT}, {L_FLAG}")
            A(f"s_waitcnt vmcnt({after_n(('st', 0))})")
            lds_inc(vT, vT + 1)
            A("v_lshrrev_b32 v10, 1, v3")
            A("v_lshlrev_b32 v29, 2, v10")
            A("v_lshlrev_b32 v10, 10, v10")
            A("v_lshl_add_u32 v10, v2, 5, v10")
            A("v_and_b32 v18, 1, v3")
            A("v_lshl_add_u32 v10, v18, 4, v10")
            A(f"s_lshl_b32 s{sT1}, s{sW}, 11")
            A(f"s_add_u32 s{sT1}, s{sT1}, {L_PART}")
            A(f"v_add_u32 v10, s{sT1}, v10")
            A(f"s_lshl_b32 s{sT1}, s{sW}, 3")
            A(f"s_add_u32 s{sT1}, s{sT1}, {L_F}")
            A(f"v_add_u32 v29, s{sT1}, v29")
            A("v_lshrrev_b32 v31, 3, v2")
            A("v_lshlrev_b32 v31, 2, v31")
            A(f"v_add_u32 v31, {L_F+32}, v31")
    stamp(7)
    A("s_waitcnt lgkmcnt(0)")
    A(f"v_mov_b32 v{vNMC}, v30")
    A("s_nop 5")
    for k in range(8): A(f"v_mul_f32 v{vO+k}, v{vO+k}, v28")
    A(f"s_cmp_ge_u32 s71, {16*NPOOL}")
    A("s_cbranch_scc1 L_vdone")
    pat = []
    for k in range(1, D): pat += [("at", k)] + [("d", k)] * 5
    assert vmlog[-len(pat):] == pat, vmlog[-20:]
    WN = 6 * D - 7
    A.lab("L_dloop")
    for u in range(NR):
        k = D + u
        A(f"s_waitcnt vmcnt({WN})")
        for x in ticket_read(k): A(x)
        A(f"s_cmp_ge_u32 s{sTKT}, {16*NPOOL}")
        A(f"s_cbranch_scc1 L_drain{u}")
        for x in dissue(k, False): A(x)
        for x in dconsume(k - D): A(x)
    A("s_branch L_dloop")
    for u in range(NR):
        k = D + u
        A.lab(f"L_drain{u}")
        for n_ in range(D):
            if n_ > 0: A(f"s_waitcnt vmcnt({6*(D-1-n_)})")
            for x in dconsume(k - D + n_): A(x)
        if u < NR - 1: A("s_branch L_vdone")
    A.lab("L_vdone")
    A("s_nop 7")
    A(f"ds_write_b128 v10, {vr(vO,4)}")
    A(f"ds_write_b128 v10, {vr(vO+4,4)} offset:512")
    A("s_waitcnt vmcnt(0) lgkmcnt(0)")
    stamp(3)
    A("s_barrier")
    A("s_branch L_t3pre")

    A.lab("L_helper")
    sW = sWAVE
    vTH = 1
    vX = 32
    vY = 80
    vW1 = 144
    vW2 = 200
    A(f"s_lshl_b32 s{sT1}, s{sW}, 6")
    A(f"v_add_u32 v{vTH}, s{sT1}, v0")
    A(f"s_lshl_b32 s{sT2}, s{sI}, 3")
    A(f"s_add_u32 s{sT2}, s{sT2}, s{sB}")
    A("s_waitcnt lgkmcnt(0)")
    srd(S_WS, 40, WS_SIZE)
    srd(S_WQ, 22, 448 * 8192)
    srd(S_DBG, 38, 256)
    A(f"s_cmp_eq_u32 s{sW}, 0")
    A("s_cbranch_scc1 L_h0")
    A(f"s_cmp_eq_u32 s{sW}, 3")
    A("s_cbranch_scc1 L_h3")
    srd(S_X, 16, 7168)
    A("v_and_b32 v8, 31, v0")
    A("v_lshrrev_b32 v9, 5, v0")
    A("v_mul_u32_u24 v9, 896, v9")
    A("v_lshl_add_u32 v9, v8, 5, v9")
    A("v_cmp_gt_u32 vcc, 28, v8")
    A("v_mov_b32 v10, 0x7fffff00")
    A(f"s_sub_u32 s{sA}, s{sW}, 1")
    A(f"s_mul_i32 s{sA}, s{sA}, 3584")
    A("v_cndmask_b32 v10, v10, v9, vcc")
    A("v_mov_b32 v15, 1.0")
    A("v_cndmask_b32 v15, 0, v15, vcc")
    A(f"buffer_load_dwordx4 v[16:19], v10, {sr(S_X,4)}, s{sA} offen")
    A(f"buffer_load_dwordx4 v[20:23], v10, {sr(S_X,4)}, s{sA} offen offset:16")
    A(f"buffer_load_dwordx4 v[24:27], v10, {sr(S_X,4)}, s{sA} offen offset:1792")
    A(f"buffer_load_dwordx4 v[28:31], v10, {sr(S_X,4)}, s{sA} offen offset:1808")
    A("v_mov_b32 v12, 0")
    A(f"v_lshlrev_b32 v13, 2, v2")
    A(f"v_add_u32 v13, {L_FLAG}, v13")
    A("ds_write_b32 v13, v12")
    A(f"s_add_u32 s{sA}, s{sA}, {L_XN}")
    A(f"v_add_u32 v9, s{sA}, v9")
    A("s_waitcnt lgkmcnt(0)")
    A("s_barrier")
    A("s_waitcnt vmcnt(0)")
    stamp(5, 'q')
    keep = A.L; A.L = []
    layernorm(16, 16, 32, 48, 64, 15, False); l1 = A.L; A.L = []
    layernorm(24, 16, 80, 96, 112, 15, False); l2 = A.L; A.L = keep
    assert len(l1) == len(l2)
    for x, y in zip(l1, l2):
        if x.strip().startswith("s_nop"):
            A.L.append("  s_nop 0")
        elif x.strip().startswith("s_mov"):
            A.L.append(x)
        else:
            A.L.append(x); A.L.append(y)
    A("v_cmp_lt_f32 vcc, 0, v15")
    A(f"s_and_saveexec_b64 s[{sEX}:{sEX+1}], vcc")
    A("ds_write_b128 v9, v[16:19]")
    A("ds_write_b128 v9, v[20:23] offset:16")
    A("ds_write_b128 v9, v[24:27] offset:1792")
    A("ds_write_b128 v9, v[28:31] offset:1808")
    A(f"s_mov_b64 exec, s[{sEX}:{sEX+1}]")
    A(f"v_mov_b32 v9, {L_FLAG+16}")
    lds_inc(9, 10)
    stamp(6, 'q')
    A("s_branch L_hb2")

    A.lab("L_h0")
    A("v_lshrrev_b32 v13, 1, v0")
    A("v_lshlrev_b32 v13, 13, v13")
    A("v_and_b32 v14, 1, v0")
    A("v_lshl_add_u32 v13, v14, 4, v13")
    A(f"s_lshl_b32 s{sT1}, s{sT2}, 5")
    for i in range(14):
        A(f"s_mov_b32 m0, {L_WQ + i*1024}")
        A(f"s_add_u32 s{sCNT}, s{sT1}, {i*32*8192}")
        if not nowq: A(f"buffer_load_dwordx4 v13, {sr(S_WQ,4)}, s{sCNT} offen {wf} lds")
    A("s_barrier")
    A("v_lshrrev_b32 v12, 2, v2")
    A("v_lshl_add_u32 v12, v3, 3, v12")
    A("v_lshlrev_b32 v12, 5, v12")
    A("v_and_b32 v13, 3, v2")
    A("v_lshl_add_u32 v12, v13, 3, v12")
    A("v_and_b32 v13, 7, v2")
    A("v_mul_u32_u24 v13, 896, v13")
    A("v_lshl_add_u32 v13, v3, 4, v13")
    A("v_lshlrev_b32 v14, 13, v2")
    A("v_lshl_add_u32 v14, v3, 3, v14")
    A("s_waitcnt vmcnt(0)")
    stamp(5, 'q')
    for kk in range(14):
        r = 80 + 4 * kk
        A(f"ds_read_b64_tr_b16 {vr(r,2)}, v12 offset:{L_WQ + kk*1024}")
        A(f"ds_read_b64_tr_b16 {vr(r+2,2)}, v12 offset:{L_WQ + kk*1024+128}")
        if kk == 6: A("s_waitcnt lgkmcnt(0)")
    A("s_waitcnt lgkmcnt(0)")
    A(f"v_mov_b32 v15, {L_FLAG+16}")
    lds_wait(15, 16, 3, sleep=0)
    stamp(6, 'q')
    for kk in range(14):
        A(f"ds_read_b128 {vr(144+4*kk,4)}, v13 offset:{L_XN + kk*64}")
    for kk in range(14):
        A(f"s_waitcnt lgkmcnt({13-kk})")
        c = "0" if kk == 0 else "v[24:27]"
        A(f"v_mfma_f32_16x16x32_bf16 v[24:27], {vr(80+4*kk,4)}, {vr(144+4*kk,4)}, {c}")
    A("s_mov_b32 exec_lo, 0x00ff00ff")
    A("s_mov_b32 exec_hi, 0x00ff00ff")
    A("s_nop 5")
    A("v_cvt_pk_bf16_f32 v28, v24, v25")
    A("v_cvt_pk_bf16_f32 v29, v26, v27")
    guard([28, 29])
    A(f"buffer_store_dwordx2 v[28:29], v14, {sr(S_WS,4)}, s{sT1} offen sc1")
    A("s_mov_b64 exec, -1")
    stamp(7, 'q')
    A("s_branch L_hb2")

    A.lab("L_h3")
    for k in range(4): A(f"v_mov_b32 v{24+k}, -1")
    A("v_lshrrev_b32 v14, 1, v0")
    A("v_lshlrev_b32 v14, 13, v14")
    A("v_and_b32 v15, 1, v0")
    A("v_lshl_add_u32 v14, v15, 4, v14")
    A(f"s_lshl_b32 s{sT1}, s{sT2}, 5")
    A("s_mov_b64 exec, 0xffff")
    A(f"buffer_store_dwordx4 v[24:27], v14, {sr(S_WS,4)}, s{sT1} offen sc1")
    A("s_mov_b64 exec, -1")
    A("v_lshlrev_b32 v14, 4, v0")
    A(f"s_lshl_b32 s{sA}, s{sLID}, 7")
    A(f"s_add_u32 s{sA}, s{sA}, {WS_ML}")
    A("s_mov_b64 exec, 0xff")
    A(f"buffer_store_dwordx4 v[24:27], v14, {sr(S_WS,4)}, s{sA} offen sc1")
    A("s_mov_b64 exec, -1")
    A(f"s_lshl_b32 s{sT1}, s{sLID}, 11")
    A(f"s_add_u32 s{sT1}, s{sT1}, {WS_OB1}")
    for k in range(2):
        A(f"buffer_store_dwordx4 v[24:27], v14, {sr(S_WS,4)}, s{sT1} offen offset:{k*1024} sc1")
    A(f"s_lshl_b32 s{sT1}, s{sLID}, 9")
    A(f"s_add_u32 s{sT1}, s{sT1}, {WS_OB2}")
    A("s_mov_b32 exec_hi, 0")
    A(f"buffer_store_dwordx4 v[24:27], v14, {sr(S_WS,4)}, s{sT1} offen sc1")
    A("s_mov_b64 exec, -1")
    lab = A.newlab("L_noclr3")
    A(f"s_cmp_ge_u32 s{sF}, 28")
    A(f"s_cbranch_scc1 {lab}")
    A(f"s_lshl_b32 s{sT1}, s{sB}, 5")
    A(f"s_add_u32 s{sT1}, s{sT1}, s{sF}")
    A(f"s_lshl_b32 s{sT1}, s{sT1}, 11")
    A(f"s_add_u32 s{sT1}, s{sT1}, {WS_OB3}")
    for k in range(2):
        A(f"buffer_store_dwordx4 v[24:27], v14, {sr(S_WS,4)}, s{sT1} offen offset:{k*1024} sc1")
    A.lab(lab)
    A("s_barrier")
    A("v_mov_b32 v12, 1")
    A("v_mov_b32 v13, 0")
    A("v_mov_b32 v15, 1")
    A(f"s_lshl_b32 s{sD}, s{sHKV}, 5")
    A("v_lshrrev_b32 v16, 2, v0")
    A("v_lshlrev_b32 v16, 5, v16")
    A("v_and_b32 v17, 3, v0")
    A("v_add_u32 v16, v16, v17")
    A("v_lshlrev_b32 v16, 7, v16")
    A("v_lshlrev_b32 v17, 7, v0")
    A("s_waitcnt vmcnt(0)")
    stamp(5, 'q')
    A("s_mov_b64 exec, 1")
    A(f"buffer_atomic_add v12, v13, {sr(S_DBG,4)}, s{sD} offen sc0 sc1")
    A("s_mov_b64 exec, -1")
    A(f"v_mov_b32 v18, {L_FLAG+16}")
    lds_inc(18, 19)
    A("s_waitcnt vmcnt(0)")
    A(f"v_readfirstlane_b32 s{sBq}, v12")
    A("s_nop 3")
    A(f"s_and_b32 s{sBq}, s{sBq}, 31")
    A(f"s_cmp_lg_u32 s{sBq}, 31")
    A("s_cbranch_scc1 L_notlast")
    A(f"s_lshl_b32 s{sD}, s{sHKV}, 9")
    A(f"s_add_u32 s{sD}, s{sD}, {WS_ML+64}")
    A("s_mov_b32 exec_hi, 0")
    A(f"buffer_store_dword v15, v16, {sr(S_WS,4)}, s{sD} offen sc1")
    A("v_mov_b32 v12, 1")
    A("s_mov_b64 exec, 1")
    A(f"buffer_atomic_add v12, v13, {sr(S_DBG,4)}, 0 offen offset:16 sc0 sc1")
    A("s_mov_b64 exec, -1")
    A("s_waitcnt vmcnt(0)")
    A(f"v_readfirstlane_b32 s{sBq}, v12")
    A("s_nop 3")
    A(f"s_and_b32 s{sBq}, s{sBq}, 7")
    A(f"s_cmp_lg_u32 s{sBq}, 7")
    A("s_cbranch_scc1 L_notlast")
    for k in range(4):
        A(f"s_mov_b32 s{sD}, {WS_ML + 96 + k*8192}")
        A(f"buffer_store_dword v15, v17, {sr(S_WS,4)}, s{sD} offen sc1")
    A.lab("L_notlast")
    stamp(6, 'q')
    poll([f"buffer_load_dword v18, v13, {sr(S_WS,4)}, s{sA} offen offset:64 sc1"], [18], 19, spin)
    stamp(7, 'q')
    A(f"s_lshl_b32 s{sD}, s{sB}, 13")
    A(f"s_lshl_b32 s{sBq}, s{sHKV}, 10")
    A(f"s_add_u32 s{sD}, s{sD}, s{sBq}")
    A(f"v_add_u32 v12, {L_QF}, v14")
    poll([f"buffer_load_dwordx4 v[16:19], v14, {sr(S_WS,4)}, s{sD} offen sc1"], [16, 17, 18, 19], 24, spin)
    A("ds_write_b128 v12, v[16:19]")
    A("s_waitcnt lgkmcnt(0)")
    stamp(8, 'q')
    A("s_barrier")
    poll([f"buffer_load_dword v18, v13, {sr(S_WS,4)}, s{sA} offen offset:96 sc1"], [18], 19, spin)
    A("s_branch L_hw")

    A.lab("L_hb2")
    A("s_barrier")
    A.lab("L_hw")
    A("s_load_dwordx2 s[16:17], s[0:1], 0")
    A("s_load_dwordx2 s[24:25], s[0:1], 32")
    A("s_load_dwordx4 s[20:23], s[0:1], 48")
    A("s_load_dwordx2 s[18:19], s[0:1], 64")
    A("s_load_dwordx4 s[64:67], s[0:1], 72")
    A("s_waitcnt lgkmcnt(0)")
    srd(S_X, 16, 7168)
    srd(S_WO, 24, 4096 * 896)
    srd(S_B2, 64, 896)
    srd(S_OUT, 66, 7168)
    srd(S_W1, 20, 448 * 3584)
    srd(S_B1, 22, 3584)
    srd(S_W2, 18, 1792 * 896)

    def pace():
        A(f"s_waitcnt vmcnt({wpace-1})")
    A("v_and_b32 v12, 31, v0")
    A("v_lshlrev_b32 v12, 3, v12")
    A(f"s_mul_i32 s{sD}, s{sB}, 896")
    A(f"s_lshl_b32 s{sA}, s{sW}, 8")
    A(f"s_add_u32 s{sD}, s{sD}, s{sA}")
    A(f"buffer_load_dwordx2 v[64:65], v12, {sr(S_X,4)}, s{sD} offen")
    A("v_lshlrev_b32 v12, 3, v3")
    A(f"s_lshl_b32 s{sD}, s{sF}, 7")
    A(f"s_lshl_b32 s{sA}, s{sW}, 5")
    A(f"s_add_u32 s{sD}, s{sD}, s{sA}")
    A(f"buffer_load_dwordx2 v[66:67], v12, {sr(S_B1,4)}, s{sD} offen")
    A("v_and_b32 v12, 7, v0")
    A("v_lshlrev_b32 v12, 2, v12")
    A(f"s_lshl_b32 s{sD}, s{sF}, 5")
    A(f"buffer_load_dword v68, v12, {sr(S_B2,4)}, s{sD} offen")
    A("v_lshrrev_b32 v8, 2, v2")
    A("v_lshl_add_u32 v8, v3, 3, v8")
    A("v_and_b32 v9, 3, v2")
    A(f"s_cmp_ge_u32 s{sF}, 28")
    A("s_cbranch_scc1 L_noffn")
    if E > 8:
        A(f"v_mov_b32 v13, {L_FLAG+20}")
        lds_wait(13, 14, 4)
    A("v_lshrrev_b32 v12, 3, v0")
    A("v_mul_u32_u24 v12, 3584, v12")
    A("v_and_b32 v13, 7, v0")
    A("v_lshl_add_u32 v12, v13, 4, v12")
    A(f"s_mul_i32 s{sA}, s{sW}, {14*8*3584}")
    A(f"s_lshl_b32 s{sD}, s{sF}, 7")
    A(f"s_add_u32 s{sA}, s{sA}, s{sD}")
    A(f"s_mul_i32 s{sBq}, s{sW}, {14*1024}")
    for u in range(14):
        pace()
        A(f"s_add_u32 m0, s{sBq}, {L_W1S + u*1024}")
        A(f"s_add_u32 s{sD}, s{sA}, {u*8*3584}")
        if not now: A(f"buffer_load_dwordx4 v12, {sr(S_W1,4)}, s{sD} offen {wf} lds")
    if E:
        A(f"v_mov_b32 v13, {L_FLAG+20}")
        lds_wait(13, 14, 4)
    A("v_lshlrev_b32 v12, 4, v0")
    A(f"s_mul_i32 s{sA}, s{sF}, 57344")
    A(f"s_add_u32 s{sA}, s{sA}, s{sBq}")
    for u in range(14):
        pace()
        A(f"s_add_u32 m0, s{sBq}, {L_W2S + u*1024}")
        A(f"s_add_u32 s{sD}, s{sA}, {u*1024}")
        if not now: A(f"buffer_load_dwordx4 v12, {sr(S_W2,4)}, s{sD} offen {wf} lds")
    A("s_waitcnt vmcnt(0)")
    A(f"v_mov_b32 v12, {L_FLAG+8}")
    lds_inc(12, 13)
    lds_wait(12, 13, 4)
    A("v_lshlrev_b32 v12, 7, v8")
    A("v_lshl_add_u32 v12, v9, 3, v12")
    A(f"s_lshl_b32 s{sA}, s{sW}, 5")
    A(f"v_add_u32 v12, s{sA}, v12")
    for ks in range(14):
        A(f"ds_read_b64_tr_b16 {vr(vW1+4*ks,2)}, v12 offset:{L_W1S + ks*4096}")
        A(f"ds_read_b64_tr_b16 {vr(vW1+4*ks+2,2)}, v12 offset:{L_W1S + ks*4096 + 512}")
        if ks % 6 == 5: A("s_waitcnt lgkmcnt(0)")
    A("s_waitcnt lgkmcnt(0)")
    A("v_mul_u32_u24 v12, 896, v8")
    A("v_lshl_add_u32 v12, v9, 3, v12")
    A(f"s_mul_i32 s{sA}, s{sW}, 224")
    A(f"s_add_u32 s{sA}, s{sA}, {L_W2S}")
    A(f"v_add_u32 v12, s{sA}, v12")
    for j in range(7):
        for ks in range(2):
            r = vW2 + 4 * (2 * j + ks)
            A(f"ds_read_b64_tr_b16 {vr(r,2)}, v12 offset:{ks*28672 + j*32}")
            A(f"ds_read_b64_tr_b16 {vr(r+2,2)}, v12 offset:{ks*28672 + 3584 + j*32}")
        if j % 3 == 2: A("s_waitcnt lgkmcnt(0)")
    A("s_waitcnt lgkmcnt(0)")
    A(f"v_mov_b32 v12, {L_FLAG+12}")
    lds_inc(12, 13)
    lds_wait(12, 13, 4)
    A.lab("L_noffn")
    if E:
        A(f"v_mov_b32 v13, {L_FLAG+20}")
        lds_wait(13, 14, 4)
    A("v_lshlrev_b32 v12, 1, v3")
    A("v_xor_b32 v12, v12, v2")
    A("v_xor_b32 v13, 8, v12")
    A(f"s_cmp_eq_u32 s{sS}, 3")
    A(f"s_cselect_b32 s{sD}, 8, 16")
    A(f"v_cmp_gt_u32 s[20:21], s{sD}, v12")
    A(f"v_cmp_gt_u32 s[22:23], s{sD}, v13")
    A("v_mul_u32_u24 v14, 896, v3")
    A("v_lshl_add_u32 v12, v12, 4, v14")
    A("v_lshl_add_u32 v13, v13, 4, v14")
    A(f"s_lshl_b32 s{sA}, s{sHKV}, 9")
    A(f"s_mul_i32 s{sD}, s{sW}, 160")
    A(f"s_add_u32 s{sA}, s{sA}, s{sD}")
    A(f"s_mul_i32 s{sA}, s{sA}, 896")
    A(f"s_lshl_b32 s{sD}, s{sS}, 8")
    A(f"s_add_u32 s{sA}, s{sA}, s{sD}")
    A(f"s_mul_i32 s{sBq}, s{sW}, {40*1024}")
    for tt in range(40):
        if tt == 8:
            A(f"s_cmp_eq_u32 s{sW}, 3")
            A("s_cbranch_scc1 L_wodone")
        pace()
        if tt % 2 == 0: A(f"s_mov_b64 exec, s[{22 if (tt>>1)&1 else 20}:{23 if (tt>>1)&1 else 21}]")
        A(f"s_add_u32 m0, s{sBq}, {L_WO + tt*1024}")
        A(f"s_add_u32 s{sD}, s{sA}, {tt*4*896}")
        if not now: A(f"buffer_load_dwordx4 v{13 if (tt>>1)&1 else 12}, {sr(S_WO,4)}, s{sD} offen {wf} lds")
    A.lab("L_wodone")
    A("s_mov_b64 exec, -1")
    A("s_waitcnt vmcnt(0)")
    stamp(9)
    A(f"s_cmp_lg_u32 s{sW}, 3")
    A("s_cbranch_scc1 L_nostat")
    A(f"v_mov_b32 v12, {L_FLAG}")
    lds_wait(12, 13, 4, sleep=4)
    A("v_and_b32 v14, 1, v0")
    A("v_lshlrev_b32 v15, 3, v14")
    A(f"v_add_u32 v12, {L_STAT}, v15")
    for w in range(4): A(f"ds_read_b64 {vr(16+2*w,2)}, v12 offset:{w*16}")
    A("s_waitcnt lgkmcnt(0)")
    A("v_max_f32 v24, v16, v18")
    A("v_max3_f32 v24, v20, v22, v24")
    for w in range(4):
        A(f"v_sub_f32 v{28+w}, v{16+2*w}, v24")
        A(f"v_mul_f32 v{28+w}, s{sC}, v{28+w}")
        A(f"v_exp_f32 v{28+w}, v{28+w}")
    A("s_nop 0")
    A("v_mul_f32 v25, v28, v17")
    for w in range(1, 4): A(f"v_fma_f32 v25, v{28+w}, v{17+2*w}, v25")
    guard([24, 25])
    A(f"s_lshl_b32 s{sD}, s{sLID}, 7")
    A(f"s_add_u32 s{sD}, s{sD}, {WS_ML}")
    A("s_mov_b64 exec, 3")
    A(f"buffer_store_dwordx2 v[24:25], v15, {sr(S_WS,4)}, s{sD} offen sc1")
    A("s_mov_b64 exec, -1")
    for p in range(1, 4): A(f"s_xor_b32 s{20+p}, s{sD}, {p*128}")
    poll([f"buffer_load_dwordx2 {vr(32+2*(p-1),2)}, v15, {sr(S_WS,4)}, s{20+p} offen sc1" for p in range(1, 4)],
         range(32, 38), 12, spin)
    A("v_max_f32 v46, v24, v32")
    A("v_max3_f32 v46, v34, v36, v46")
    Ms = [24, 32, 34, 36]; Ls = [25, 33, 35, 37]
    for k in range(4):
        A(f"v_sub_f32 v{48+k}, v{Ms[k]}, v46")
        A(f"v_mul_f32 v{48+k}, s{sC}, v{48+k}")
        A(f"v_exp_f32 v{48+k}, v{48+k}")
    A("s_nop 0")
    A(f"v_mul_f32 v47, v48, v{Ls[0]}")
    for k in range(1, 4): A(f"v_fma_f32 v47, v{48+k}, v{Ls[k]}, v47")
    A("v_rcp_f32 v52, v47")
    A("s_nop 0")
    A("v_fma_f32 v53, -v47, v52, 1.0")
    A("v_fma_f32 v52, v53, v52, v52")
    for w in range(4):
        A(f"v_sub_f32 v{28+w}, v{16+2*w}, v46")
        A(f"v_mul_f32 v{28+w}, s{sC}, v{28+w}")
        A(f"v_exp_f32 v{28+w}, v{28+w}")
    A(f"v_mul_f32 v53, s{sC}, v46")
    A("v_sub_f32 v53, 0, v53")
    A("v_lshlrev_b32 v12, 2, v14")
    A(f"v_add_u32 v12, {L_F}, v12")
    for w in range(4): A(f"ds_write_b32 v12, v{28+w} offset:{w*8}")
    A("ds_write_b32 v12, v53 offset:32")
    A("ds_write_b32 v12, v52 offset:40")
    A(f"v_mov_b32 v12, {L_FLAG+4}")
    lds_inc(12, 13)
    A("s_waitcnt lgkmcnt(0)")
    A.lab("L_nostat")
    stamp(10)
    A("v_cmp_gt_u32 vcc, 56, v0")
    A("v_mov_b32 v11, 1.0")
    A("v_lshlrev_b32 v70, 16, v64")
    A("v_cndmask_b32 v11, 0, v11, vcc")
    A("v_and_b32 v71, 0xffff0000, v64")
    A("v_lshlrev_b32 v72, 16, v65")
    A("v_and_b32 v73, 0xffff0000, v65")
    A("v_lshlrev_b32 v74, 16, v66")
    A("v_and_b32 v75, 0xffff0000, v66")
    A("v_lshlrev_b32 v76, 16, v67")
    A("v_and_b32 v77, 0xffff0000, v67")
    A("v_lshlrev_b32 v78, 16, v68")
    A("v_and_b32 v79, 0xffff0000, v68")
    class skipdry:
        def __enter__(self):
            if dry:
                self.lab = A.newlab("L_sk")
                A(f"s_cmp_lg_u32 s{sDRY}, 0")
                A(f"s_cbranch_scc1 {self.lab}")
        def __exit__(self, *a):
            if dry: A.lab(self.lab)
    def tbar():
        with skipdry(): A("s_barrier")
    if dry:
        A(f"s_cmp_eq_u32 s{sW}, 0")
        A(f"s_cselect_b32 s{sDRY}, 1, 0")
    A.lab("L_tail")
    A(f"v_mov_b32 v12, {L_FLAG+4}")
    with skipdry():
        lds_wait(12, 13, 1, sleep=8)
    A(f"s_lshr_b32 s{sA}, s{sW}, 1")
    A(f"s_lshl_b32 s{sA}, s{sA}, 2")
    A(f"s_add_u32 s{sA}, s{sA}, {L_F}")
    A(f"v_mov_b32 v12, s{sA}")
    A("ds_read_b32 v64, v12 offset:40")
    A("v_and_b32 v14, 31, v0")
    A("v_lshlrev_b32 v14, 4, v14")
    A(f"s_lshl_b32 s{sA}, s{sW}, 9")
    A("v_lshrrev_b32 v13, 5, v0")
    A("v_lshl_add_u32 v12, v13, 12, v14")
    A(f"s_add_u32 s{sD}, s{sA}, {L_PART}")
    A(f"v_add_u32 v12, s{sD}, v12")
    A(f"s_lshl_b32 s{sD}, s{sLID}, 11")
    A(f"s_add_u32 s{sD}, s{sD}, {WS_OB1}")
    A(f"s_add_u32 s{sD}, s{sD}, s{sA}")
    A(f"s_and_b32 s{sBq}, s{sLID}, 3")
    A(f"s_xor_b32 s20, s{sBq}, 1")
    A(f"s_xor_b32 s21, s{sBq}, 2")
    A(f"s_xor_b32 s22, s{sBq}, 3")
    for k in range(3): A(f"s_lshl_b32 s{20+k}, s{20+k}, 11")
    A("v_cmp_eq_u32 vcc, 0, v13")
    A("v_mov_b32 v16, s20")
    A("v_mov_b32 v17, s21")
    A("v_mov_b32 v18, s22")
    A("v_cndmask_b32 v16, v18, v16, vcc")
    A("v_add_u32 v65, v16, v14")
    A("v_add_u32 v66, v17, v14")
    A(f"s_andn2_b32 s{sBq}, s{sD}, 0x1800")
    A("v_lshrrev_b32 v15, 1, v14")
    A(f"s_lshl_b32 s{sA}, s{sW}, 8")
    A(f"s_add_u32 s{sA}, s{sA}, {L_OBF}")
    A(f"v_add_u32 v15, s{sA}, v15")
    A("s_waitcnt lgkmcnt(0)")
    tbar()
    stamp(1)
    A("ds_read_b128 v[16:19], v12")
    A("ds_read_b128 v[20:23], v12 offset:2048")
    A("s_waitcnt lgkmcnt(0)")
    for k in range(4): A(f"v_add_f32 v{16+k}, v{16+k}, v{20+k}")
    for k in range(4): A(f"v_mov_b32 v{20+k}, v{16+k}")
    A("s_nop 0")
    for k in range(4): A(f"v_permlane32_swap_b32 v{16+k}, v{20+k}")
    A("s_nop 0")
    for k in range(4): A(f"v_add_f32 v{24+k}, v{16+k}, v{20+k}")
    guard(range(24, 28))
    with skipdry():
        A("s_mov_b32 exec_hi, 0")
        A(f"buffer_store_dwordx4 v[24:27], v14, {sr(S_WS,4)}, s{sD} offen sc1")
        A("s_mov_b64 exec, -1")

    A.lab("L_t3pre")
    A("v_lshrrev_b32 v4, 2, v2")
    A("v_and_b32 v5, 1, v3")
    A("v_lshl_or_b32 v5, v5, 2, v4")
    A(f"v_xor_b32 v5, s{sWAVE}, v5")
    A("v_lshlrev_b32 v5, 5, v5")
    A("v_and_b32 v6, 3, v2")
    A("v_lshl_add_u32 v5, v6, 3, v5")
    A("v_lshl_add_u32 v4, v3, 3, v4")
    A("v_lshl_add_u32 v5, v4, 8, v5")
    A("v_add_u32 v6, 0x10000, v5")
    for ks in range(16):
        b = 5 if ks < 8 else 6
        A(f"ds_read_b64_tr_b16 {vr(vY+4*ks,2)}, v{b} offset:{(ks%8)*8192}")
        A(f"ds_read_b64_tr_b16 {vr(vY+4*ks+2,2)}, v{b} offset:{(ks%8)*8192 + 1024}")
        if ks % 6 == 5: A("s_waitcnt lgkmcnt(2)")
    A("v_lshlrev_b32 v7, 4, v3")
    A(f"v_add_u32 v4, {L_OBF}, v7")
    A(f"s_lshl_b32 s{sT1}, s{sLID}, 9")
    A(f"s_add_u32 s{sT1}, s{sT1}, {WS_OB2}")
    A(f"s_lshl_b32 s{sT2}, s{sWAVE}, 6")
    A(f"s_add_u32 s{sT1}, s{sT1}, s{sT2}")
    A("s_mov_b32 s26, 0x00010001")
    A("s_mov_b32 s27, 0x00010001")
    A(f"s_cmp_ge_u32 s{sWAVE}, 4")
    A("s_cbranch_scc1 L_t3")
    for k in range(4): A(f"v_mov_b32 v{vX+4+k}, 0")
    if ack: A("s_waitcnt vmcnt(0)")
    with skipdry():
        poll([f"buffer_load_dwordx4 {vr(vX,4)}, v65, {sr(S_WS,4)}, s{sBq} offen sc1",
              "s_mov_b32 exec_hi, 0",
              f"buffer_load_dwordx4 {vr(vX+4,4)}, v66, {sr(S_WS,4)}, s{sBq} offen sc1",
              "s_mov_b64 exec, -1"], range(vX, vX + 8), 12, spin)
    stamp(2)
    for k in range(4): A(f"v_add_f32 v{16+k}, v{vX+k}, v{vX+4+k}")
    for k in range(4): A(f"v_mov_b32 v{20+k}, v{16+k}")
    A("s_nop 0")
    for k in range(4): A(f"v_permlane32_swap_b32 v{16+k}, v{20+k}")
    for k in range(4): A(f"v_add_f32 v{24+k}, v{24+k}, v{16+k}")
    for k in range(4): A(f"v_add_f32 v{24+k}, v{24+k}, v{20+k}")
    for k in range(4): A(f"v_mul_f32 v{24+k}, v{24+k}, v64")
    A("v_cvt_pk_bf16_f32 v24, v24, v25")
    A("v_cvt_pk_bf16_f32 v25, v26, v27")
    A("ds_write_b64 v15, v[24:25]")
    A.lab("L_t3")
    A("s_waitcnt lgkmcnt(0)")
    tbar()
    for ks in range(8): A(f"ds_read_b128 {vr(vX+4*ks,4)}, v4 offset:{ks*64}")
    for ks in range(16):
        A(f"s_waitcnt lgkmcnt({min(7, 15-ks)})")
        c = "0" if ks == 0 else "v[16:19]"
        A(f"v_mfma_f32_16x16x32_bf16 v[16:19], {vr(vY+4*ks,4)}, {vr(vX+4*(ks%8),4)}, {c}")
        if ks < 8: A(f"ds_read_b128 {vr(vX+4*ks,4)}, v4 offset:{(ks+8)*64}")
    A("s_mov_b64 exec, s[26:27]")
    A("s_nop 6")
    guard(range(16, 20))
    with skipdry():
        A(f"buffer_store_dwordx4 v[16:19], v7, {sr(S_WS,4)}, s{sT1} offen sc1")
    A("s_mov_b64 exec, -1")
    stamp(8, 't')
    A(f"s_cmp_ge_u32 s{sWAVE}, 4")
    A("s_cbranch_scc1 L_send")
    A(f"s_cmp_ge_u32 s{sF}, 28")
    A("s_cbranch_scc1 L_fin")
    A("v_lshl_add_u32 v12, v13, 13, v14")
    A(f"s_lshl_b32 s{sD}, s{sB}, 5")
    A(f"s_add_u32 s{sD}, s{sD}, s{sW}")
    A(f"s_lshl_b32 s{sD}, s{sD}, 9")
    A(f"s_add_u32 s{sD}, s{sD}, {WS_OB2}")
    A(f"s_add_u32 s{sBq}, s{sD}, 4096")
    A("v_lshrrev_b32 v15, 1, v14")
    A(f"s_lshl_b32 s{sA}, s{sW}, 8")
    A(f"s_add_u32 s{sA}, s{sA}, {L_H}")
    A(f"v_add_u32 v15, s{sA}, v15")
    A("v_lshlrev_b32 v10, 4, v0")
    A(f"s_lshl_b32 s{sA}, s{sW}, 10")
    A(f"s_add_u32 s{sA}, s{sA}, {L_XN2}")
    A(f"v_add_u32 v4, s{sA}, v10")
    A(f"v_add_u32 v10, {L_H}, v10")
    A(f"v_add_u32 v6, {L_R2}, v7")
    A(f"v_add_u32 v5, s{sA}, v7")
    A("v_lshl_add_u32 v8, v2, 6, v7")
    A("v_lshlrev_b32 v7, 3, v3")
    A(f"s_lshl_b32 s{sA}, s{sW}, 5")
    A(f"s_add_u32 s{sA}, s{sA}, {L_R2}")
    A(f"v_add_u32 v7, s{sA}, v7")
    for k in range(56): A(f"v_mov_b32 v{vY+k}, 0")
    if ack: A("s_waitcnt vmcnt(0)")
    with skipdry():
        poll([f"buffer_load_dwordx4 {vr(vX,4)}, v12, {sr(S_WS,4)}, s{sD} offen sc1",
              f"buffer_load_dwordx4 {vr(vX+4,4)}, v12, {sr(S_WS,4)}, s{sD} offen offset:2048 sc1",
              f"buffer_load_dwordx4 {vr(vX+8,4)}, v12, {sr(S_WS,4)}, s{sBq} offen sc1",
              f"buffer_load_dwordx4 {vr(vX+12,4)}, v12, {sr(S_WS,4)}, s{sBq} offen offset:2048 sc1"],
             range(vX, vX + 16), 16, spin)
    stamp(3)
    for k in range(4): A(f"v_add_f32 v{16+k}, v{vX+k}, v{vX+4+k}")
    for k in range(4): A(f"v_add_f32 v{20+k}, v{vX+8+k}, v{vX+12+k}")
    for k in range(4): A(f"v_add_f32 v{16+k}, v{16+k}, v{20+k}")
    for k in range(4): A(f"v_mov_b32 v{20+k}, v{16+k}")
    A("s_nop 0")
    for k in range(4): A(f"v_permlane32_swap_b32 v{16+k}, v{20+k}")
    A("s_nop 0")
    for k in range(4): A(f"v_add_f32 v{16+k}, v{16+k}, v{20+k}")
    A("v_cvt_pk_bf16_f32 v20, v16, v17")
    A("v_cvt_pk_bf16_f32 v21, v18, v19")
    A("v_lshlrev_b32 v16, 16, v20")
    A("v_and_b32 v17, 0xffff0000, v20")
    A("v_lshlrev_b32 v18, 16, v21")
    A("v_and_b32 v19, 0xffff0000, v21")
    for k in range(4): A(f"v_add_f32 v{16+k}, v{16+k}, v{70+k}")
    A("v_cvt_pk_bf16_f32 v20, v16, v17")
    A("v_cvt_pk_bf16_f32 v21, v18, v19")
    A("ds_write_b64 v15, v[20:21]")
    for k in range(4): A(f"v_mov_b32 v{16+k}, 0")
    A("s_waitcnt lgkmcnt(0)")
    tbar()
    A("s_mov_b32 exec_hi, 0x00ffffff")
    A("ds_read_b128 v[16:19], v10")
    A("s_mov_b64 exec, -1")
    A("s_waitcnt lgkmcnt(0)")
    layernorm(16, 8, 20, 32, 28, 11, True)
    A("ds_write_b128 v4, v[16:19]")
    A("s_waitcnt lgkmcnt(0)")
    stamp(5, 't')
    for ks in range(8): A(f"ds_read_b128 {vr(vX+4*ks,4)}, v5 offset:{ks*64}")
    for ks in range(14):
        nout = min(14, ks + 8) - ks - 1
        A(f"s_waitcnt lgkmcnt({nout})")
        c = "0" if ks == 0 else "v[16:19]"
        A(f"v_mfma_f32_16x16x32_bf16 v[16:19], {vr(vW1+4*ks,4)}, {vr(vX+4*(ks%8),4)}, {c}")
        if ks + 8 < 14: A(f"ds_read_b128 {vr(vX+4*ks,4)}, v5 offset:{(ks+8)*64}")
    A(f"s_lshl_b32 s{sD}, s{sB}, 5")
    A(f"s_add_u32 s{sD}, s{sD}, s{sF}")
    A(f"s_lshl_b32 s{sD}, s{sD}, 11")
    A(f"s_add_u32 s{sD}, s{sD}, {WS_OB3}")
    A(f"s_mul_i32 s{sA}, s{sW}, 448")
    A(f"s_add_u32 s{sD}, s{sD}, s{sA}")
    A("s_mov_b32 s24, 0x007f007f")
    A("s_mov_b32 s25, 0x007f007f")
    A("v_cvt_pk_bf16_f32 v20, v16, v17")
    A("v_cvt_pk_bf16_f32 v21, v18, v19")
    A("v_lshlrev_b32 v16, 16, v20")
    A("v_and_b32 v17, 0xffff0000, v20")
    A("v_lshlrev_b32 v18, 16, v21")
    A("v_and_b32 v19, 0xffff0000, v21")
    for k in range(4): A(f"v_add_f32 v{16+k}, v{16+k}, v{74+k}")
    A("v_cvt_pk_bf16_f32 v20, v16, v17")
    A("v_cvt_pk_bf16_f32 v21, v18, v19")
    A("v_lshlrev_b32 v16, 16, v20")
    A("v_and_b32 v17, 0xffff0000, v20")
    A("v_lshlrev_b32 v18, 16, v21")
    A("v_and_b32 v19, 0xffff0000, v21")
    for k in range(4): A(f"v_max_f32 v{16+k}, 0, v{16+k}")
    for k in range(4): A(f"v_mul_f32 v{16+k}, v{16+k}, v{16+k}")
    A("v_cvt_pk_bf16_f32 v20, v16, v17")
    A("v_cvt_pk_bf16_f32 v21, v18, v19")
    A("ds_write_b64 v7, v[20:21]")
    A("s_waitcnt lgkmcnt(0)")
    tbar()
    stamp(6, 't')
    for j in range(7):
        A(f"s_lshl_b64 exec, s[26:27], {j}")
        for ks in range(2):
            A(f"ds_read_b128 {vr(vY+4*(2*j+ks),4)}, v6 offset:{ks*64}")
    A("s_mov_b64 exec, -1")
    for q in range(14):
        A(f"s_waitcnt lgkmcnt({13-q})")
        c = "0" if q == 0 else "v[16:19]"
        A(f"v_mfma_f32_16x16x32_bf16 v[16:19], {vr(vW2+4*q,4)}, {vr(vY+4*q,4)}, {c}")
    A("s_mov_b64 exec, s[24:25]")
    A("s_nop 6")
    guard(range(16, 20))
    with skipdry():
        A(f"buffer_store_dwordx4 v[16:19], v8, {sr(S_WS,4)}, s{sD} offen sc1")
    A("s_mov_b64 exec, -1")
    stamp(7, 't')
    A(f"s_cmp_lg_u32 s{sW}, 0")
    A("s_cbranch_scc1 L_fin")
    A("v_lshrrev_b32 v12, 3, v0")
    A("v_lshlrev_b32 v12, 11, v12")
    A("v_and_b32 v13, 7, v0")
    A("v_lshl_add_u32 v12, v13, 3, v12")
    A(f"s_lshl_b32 s{sD}, s{sB}, 16")
    A(f"s_add_u32 s{sD}, s{sD}, {WS_OB3}")
    A(f"s_lshl_b32 s{sA}, s{sF}, 6")
    A(f"s_add_u32 s{sD}, s{sD}, s{sA}")
    for k in range(4): A(f"s_add_u32 s{20+k}, s{sD}, {k*16384}")
    A(f"v_mov_b32 v{vX+6}, 0")
    A(f"v_mov_b32 v{vX+7}, 0")
    A("v_lshlrev_b32 v13, 2, v13")
    A(f"s_lshl_b32 s{sA}, s{sF}, 5")
    A(f"s_add_u32 s{sBq}, s{sA}, {L_H}")
    A(f"v_add_u32 v14, s{sBq}, v13")
    A("ds_read_b32 v28, v14")
    A(f"s_mul_i32 s{sD}, s{sB}, 896")
    A(f"s_add_u32 s{sD}, s{sD}, s{sA}")
    A("s_waitcnt lgkmcnt(0)")
    A("v_lshlrev_b32 v29, 16, v28")
    A("v_and_b32 v28, 0xffff0000, v28")
    if ack: A("s_waitcnt vmcnt(0)")
    loads = [f"buffer_load_dwordx2 {vr(vX+2*k,2)}, v12, {sr(S_WS,4)}, s{20+k} offen sc1" for k in range(3)]
    loads += ["s_mov_b32 exec_hi, 0",
              f"buffer_load_dwordx2 {vr(vX+6,2)}, v12, {sr(S_WS,4)}, s23 offen sc1",
              "s_mov_b64 exec, -1"]
    with skipdry():
        poll(loads, range(vX, vX + 8), 15, spin)
    stamp(4)
    A(f"v_add_f32 v16, v{vX}, v{vX+2}")
    A(f"v_add_f32 v18, v{vX+1}, v{vX+3}")
    A(f"v_add_f32 v17, v{vX+4}, v{vX+6}")
    A(f"v_add_f32 v19, v{vX+5}, v{vX+7}")
    A("v_add_f32 v16, v16, v17")
    A("v_add_f32 v18, v18, v19")
    A("s_nop 0")
    A(f"v_add_f32_dpp v16, v16, v16 row_ror:8 {DPPM}")
    A(f"v_add_f32_dpp v18, v18, v18 row_ror:8 {DPPM}")
    for sw in ("v_permlane16_swap_b32", "v_permlane32_swap_b32"):
        A("v_mov_b32 v17, v16")
        A("v_mov_b32 v19, v18")
        A("s_nop 1")
        A(f"{sw} v16, v17")
        A(f"{sw} v18, v19")
        A("s_nop 1")
        A("v_add_f32 v16, v16, v17")
        A("v_add_f32 v18, v18, v19")
    A("v_cvt_pk_bf16_f32 v16, v16, v18")
    A("v_lshlrev_b32 v17, 16, v16")
    A("v_and_b32 v16, 0xffff0000, v16")
    A("v_add_f32 v17, v17, v78")
    A("v_add_f32 v16, v16, v79")
    A("v_cvt_pk_bf16_f32 v16, v17, v16")
    A("v_lshlrev_b32 v17, 16, v16")
    A("v_and_b32 v16, 0xffff0000, v16")
    A("v_add_f32 v17, v17, v29")
    A("v_add_f32 v16, v16, v28")
    A("v_cvt_pk_bf16_f32 v16, v17, v16")
    A("s_mov_b64 exec, 0xff")
    with skipdry():
        A(f"buffer_store_dword v16, v13, {sr(S_OUT,4)}, s{sD} offen")
    A("s_mov_b64 exec, -1")
    A.lab("L_fin")
    if dry:
        A(f"s_cmp_eq_u32 s{sDRY}, 0")
        A("s_cbranch_scc1 L_fin2")
        A(f"s_mov_b32 s{sDRY}, 0")
        A("s_waitcnt lgkmcnt(0)")
        A("s_branch L_tail")
        A.lab("L_fin2")
    if stamps:
        A("s_waitcnt vmcnt(0)")
        stamp(11)
        dump_stamps(12)
        A("s_endpgm")
    A.lab("L_send")
    if stamps:
        dump_stamps(11)
    A.lab("L_end")
    A("s_endpgm")

    tail = []
    tail.append('.section .rodata,"a"')
    tail.append(".p2align 6")
    tail.append(f".amdhsa_kernel {KN}")
    tail.append("  .amdhsa_next_free_vgpr 256")
    tail.append("  .amdhsa_next_free_sgpr 102")
    tail.append("  .amdhsa_accum_offset 256")
    tail.append("  .amdhsa_group_segment_fixed_size 0")
    tail.append("  .amdhsa_kernarg_size 104")
    tail.append("  .amdhsa_user_sgpr_count 2")
    tail.append("  .amdhsa_user_sgpr_kernarg_segment_ptr 1")
    tail.append("  .amdhsa_system_sgpr_workgroup_id_x 1")
    tail.append("  .amdhsa_float_denorm_mode_32 3")
    tail.append(".end_amdhsa_kernel")
    return "\n".join(hdr + A.L + tail) + "\n"

if __name__ == "__main__":
    kw = eval("dict(%s)" % (sys.argv[2] if len(sys.argv) > 2 else ""))
    open(sys.argv[1], "w").write(gen(**kw))
```

```python
import sys, struct

KN = "sequential_preLN__gqa_block_cached__dense_activation_squared_relu__decode_kernel"

def f32(x):
    return struct.unpack("<I", struct.pack("<f", x))[0]

TAG = 0x5A17C0DE
LOG2E_16 = 1.4426950408889634 / 16.0

WS_Q = 0x0
WS_OB1 = 0x10000
WS_ML = 0x90000
WS_OB2 = 0xA0000
WS_OB3 = 0xC0000
WS_SC = 0x140000
WS_ST = 0x600000
WS_SIZE = 0x800000

L_WO = 0
L_W1S = 0
L_W2S = 65536
L_WQ = 0
L_XN = 16384
L_S = 131072
L_QF = L_S
L_PART = L_S + 1024
L_STAT = L_S + 9216
L_F = L_S + 9280
L_FLAG = L_S + 9344
L_OBF = L_S + 9472
L_H = L_S + 10496
L_XN2 = L_S + 11520
L_R2 = L_S + 15616
LDS_SIZE = L_S + 15872

class G:
    def __init__(self):
        self.L = []
        self.nlab = 0
    def __call__(self, s):
        self.L.append("  " + s)
    def lab(self, name):
        self.L.append(name + ":")
    def newlab(self, p="L"):
        self.nlab += 1
        return f"{p}_{self.nlab}"
    def c(self, s):
        self.L.append("  ; " + s)

def vr(a, n=1):
    return f"v{a}" if n == 1 else f"v[{a}:{a+n-1}]"
def sr(a, n=1):
    return f"s{a}" if n == 1 else f"s[{a}:{a+n-1}]"

DPPM = "row_mask:0xf bank_mask:0xf"

def gen(RG0=20, RS=6, stamps=False, spin=1 << 20, dry=False, wpace=6, PP=4, E=8, now=0, kf='nt', vf='nt', wf='', LAG=None, D=3, NPOOL=8, mix=1, ack=1, RSP=4, nowq=0, noext=0, touch=0):
    A = G()
    hdr = []
    hdr.append(f"; @launch grid=(256,1,1) block=(512,1,1) lds={LDS_SIZE}")
    hdr.append('.amdgcn_target "amdgcn-amd-amdhsa--gfx950"')
    hdr.append(".text")
    hdr.append(f".globl {KN}")
    hdr.append(".p2align 8")
    hdr.append(f".type {KN},@function")
    hdr.append(f"{KN}:")

    S_K, S_V, S_X, S_WQ, S_WO, S_W1, S_B1, S_W2, S_B2, S_OUT, S_DBG, S_WS = [44 + 4 * i for i in range(12)]
    sWAVE = 3
    sHKV, sB, sS, sLID, sI = 4, 5, 6, 7, 8
    sSPIN, sT1, sT2, sDRY = 9, 10, 11, 12
    sF, sC, sCNT = 13, 14, 15
    sA, sBq, sCq, sD = 16, 17, 18, 19
    sEX = 42
    sST = 92

    def slot(idx):
        return sST + 2 * idx if idx < 5 else 28 + 2 * (idx - 5)
    def stamp(idx, grp=None):
        if stamps and (grp is None or grp == stamps):
            A(f"s_memrealtime s[{slot(idx)}:{slot(idx)+1}]")
    def dump_stamps(n):
        A("s_waitcnt lgkmcnt(0)")
        A(f"s_lshl_b32 s{sT1}, s2, 3")
        A(f"s_add_u32 s{sT1}, s{sT1}, s{sWAVE}")
        A(f"s_lshl_b32 s{sT1}, s{sT1}, 6")
        A(f"s_add_u32 s{sT1}, s{sT1}, {WS_ST}")
        A("v_mov_b32 v20, 0")
        A("v_cmp_eq_u32 vcc, 0, v0")
        A(f"s_and_saveexec_b64 s[{sEX}:{sEX+1}], vcc")
        for k in range(n):
            A(f"v_mov_b32 v21, s{slot(k)}")
            A(f"buffer_store_dword v21, v20, {sr(S_WS,4)}, s{sT1} offen offset:{4*k}")

    def srd(dst, ptr, size):
        A(f"s_mov_b32 s{dst}, s{ptr}")
        A(f"s_mov_b32 s{dst+1}, s{ptr+1}")
        A(f"s_mov_b32 s{dst+2}, {hex(size)}")
        A(f"s_mov_b32 s{dst+3}, 0x20000")

    def rbf(v):
        A(f"v_cvt_pk_bf16_f32 v{v}, v{v}, v{v}")
        A(f"v_and_b32 v{v}, 0xffff0000, v{v}")

    def reduce_lanes(v, t, full, op="add"):
        for m in ("quad_perm:[1,0,3,2]", "quad_perm:[2,3,0,1]", "row_half_mirror", "row_mirror"):
            A("s_nop 1")
            A(f"v_{op}_f32_dpp v{v}, v{v}, v{v} {m} {DPPM}")
        sw = ["v_permlane16_swap_b32"] + (["v_permlane32_swap_b32"] if full else [])
        for s_ in sw:
            A(f"v_mov_b32 v{t}, v{v}")
            A("s_nop 1")
            A(f"{s_} v{v}, v{t}")
            A("s_nop 1")
            A(f"v_{op}_f32 v{v}, v{v}, v{t}")

    def tree_add(dst, regs, tmp):
        cur = list(regs); k = 0
        while len(cur) > 1:
            nxt = []
            for a in range(0, len(cur) - 1, 2):
                d = dst if len(cur) == 2 else tmp + k
                if len(cur) != 2: k += 1
                A(f"v_add_f32 v{d}, v{cur[a]}, v{cur[a+1]}")
                nxt.append(d)
            if len(cur) & 1: nxt.append(cur[-1])
            cur = nxt

    def div448(v, t):
        A(f"v_mul_f32 v{t}, {hex(f32(1.0/448.0))}, v{v}")
        A(f"v_fma_f32 v{v}, v{t}, s{sT2}, v{v}")
        A(f"v_fma_f32 v{v}, v{v}, s{sT1}, v{t}")

    def layernorm(src, E, f, d, t, vvalid, full):
        A(f"s_mov_b32 s{sT1}, {hex(f32(1.0/448.0))}")
        A(f"s_mov_b32 s{sT2}, {hex(f32(-448.0))}")
        for k in range(E // 2):
            A(f"v_lshlrev_b32 v{f+2*k}, 16, v{src+k}")
            A(f"v_and_b32 v{f+2*k+1}, 0xffff0000, v{src+k}")
        tree_add(t, range(f, f + E), d)
        reduce_lanes(t, t + 1, full)
        div448(t, t + 1)
        for k in range(E): A(f"v_sub_f32 v{d+k}, v{f+k}, v{t}")
        for k in range(E // 2): A(f"v_mul_f32 v{d+k}, v{d+k}, v{d+k}")
        for k in range(E // 2): A(f"v_fma_f32 v{d+k}, v{d+E//2+k}, v{d+E//2+k}, v{d+k}")
        tree_add(t + 2, range(d, d + E // 2), d + E // 2)
        A(f"v_cvt_pk_bf16_f32 v{t}, v{t}, v{t}")
        A(f"v_mul_f32 v{t+2}, v{t+2}, v{vvalid}")
        A(f"v_and_b32 v{t}, 0xffff0000, v{t}")
        fill = [f"v_sub_f32 v{f+k}, v{f+k}, v{t}" for k in range(E)]
        fill += [f"v_cvt_pk_bf16_f32 v{src+k}, v{f+2*k}, v{f+2*k+1}" for k in range(E // 2)]
        for k in range(E // 2):
            fill.append(f"v_lshlrev_b32 v{f+2*k}, 16, v{src+k}")
            fill.append(f"v_and_b32 v{f+2*k+1}, 0xffff0000, v{src+k}")
        def F(n):
            for _ in range(n):
                if fill: A(fill.pop(0))
                else: A("s_nop 0")
        v = t + 2
        for m in ("quad_perm:[1,0,3,2]", "quad_perm:[2,3,0,1]", "row_half_mirror", "row_mirror"):
            F(2)
            A(f"v_add_f32_dpp v{v}, v{v}, v{v} {m} {DPPM}")
        sw = ["v_permlane16_swap_b32"] + (["v_permlane32_swap_b32"] if full else [])
        for s_ in sw:
            A(f"v_mov_b32 v{t+1}, v{v}")
            F(2)
            A(f"{s_} v{v}, v{t+1}")
            F(2)
            A(f"v_add_f32 v{v}, v{v}, v{t+1}")
        div448(v, t + 1)
        rbf(v)
        A(f"v_add_f32 v{v}, {hex(f32(1e-5))}, v{v}")
        rbf(v)
        A(f"v_sqrt_f32 v{v}, v{v}")
        F(1)
        rbf(v)
        A(f"v_rcp_f32 v{v}, v{v}")
        while fill: A(fill.pop(0))
        A("s_nop 0")
        for k in range(E): A(f"v_mul_f32 v{f+k}, v{f+k}, v{v}")
        for k in range(E // 2):
            A(f"v_cvt_pk_bf16_f32 v{src+k}, v{f+2*k}, v{f+2*k+1}")

    def lds_wait(addr_v, tmp, target, sleep=2):
        lp = A.newlab("L_lw"); dn = A.newlab("L_lwd")
        A(f"s_mov_b32 s{sCNT}, {spin}")
        A.lab(lp)
        A(f"ds_read_b32 v{tmp}, v{addr_v}")
        A("s_waitcnt lgkmcnt(0)")
        A(f"v_cmp_gt_u32 vcc, {target}, v{tmp}")
        A(f"s_cbranch_vccz {dn}")
        if sleep: A(f"s_sleep {sleep}")
        A(f"s_sub_u32 s{sCNT}, s{sCNT}, 1")
        A(f"s_cmp_lg_u32 s{sCNT}, 0")
        A(f"s_cbranch_scc1 {lp}")
        A.lab(dn)

    def lds_inc(addr_v, tmp):
        A(f"v_mov_b32 v{tmp}, 1")
        A("s_mov_b64 exec, 1")
        A(f"ds_add_u32 v{addr_v}, v{tmp}")
        A("s_mov_b64 exec, -1")

    def poll(loads, regs, t0, cnt_src):
        lp = A.newlab("L_p"); dn = A.newlab("L_pd")
        A(f"s_mov_b32 s{sCNT}, {cnt_src}")
        A.lab(lp)
        for x in loads: A(x)
        A("s_waitcnt vmcnt(0)")
        regs = list(regs)
        if len(regs) == 1:
            A(f"v_cmp_eq_u32 vcc, -1, v{regs[0]}")
        else:
            if len(regs) == 2:
                A(f"v_max_u32 v{t0}, v{regs[0]}, v{regs[1]}"); rest = []
            else:
                A(f"v_max3_u32 v{t0}, v{regs[0]}, v{regs[1]}, v{regs[2]}"); rest = regs[3:]
            while rest:
                if len(rest) >= 2:
                    A(f"v_max3_u32 v{t0}, v{t0}, v{rest[0]}, v{rest[1]}"); rest = rest[2:]
                else:
                    A(f"v_max_u32 v{t0}, v{t0}, v{rest[0]}"); rest = rest[1:]
            A(f"v_cmp_eq_u32 vcc, -1, v{t0}")
        A(f"s_cbranch_vccz {dn}")
        A(f"s_sub_u32 s{sCNT}, s{sCNT}, 1")
        A(f"s_cmp_lg_u32 s{sCNT}, 0")
        A(f"s_cbranch_scc1 {lp}")
        A.lab(dn)
    def guard(regs):
        for r in regs: A(f"v_min_u32 v{r}, -2, v{r}")

    A("s_cmp_ge_u32 s2, 256")
    A("s_cbranch_scc1 L_end")
    A("s_load_dwordx16 s[16:31], s[0:1], 0")
    A("s_load_dwordx8 s[32:39], s[0:1], 64")
    A("s_load_dwordx2 s[40:41], s[0:1], 96")
    stamp(0)
    A("v_lshrrev_b32 v1, 6, v0")
    A("v_and_b32 v0, 63, v0")
    A(f"v_readfirstlane_b32 s{sWAVE}, v1")
    A(f"s_lshr_b32 s{sT1}, s2, 3")
    A(f"s_lshr_b32 s{sB}, s{sT1}, 2")
    A(f"s_and_b32 s{sS}, s{sT1}, 3")
    if mix:
        A(f"s_add_u32 s{sT2}, s{sS}, 1")
        A(f"s_mul_i32 s{sT2}, s{sT2}, s{sS}")
        A(f"s_lshr_b32 s{sT2}, s{sT2}, 1")
        A(f"s_sub_u32 s{sHKV}, s2, s{sT2}")
        A(f"s_and_b32 s{sHKV}, s{sHKV}, 7")
    else:
        A(f"s_and_b32 s{sHKV}, s2, 7")
    A(f"s_lshl_b32 s{sI}, s{sHKV}, 2")
    A(f"s_add_u32 s{sI}, s{sI}, s{sS}")
    A(f"s_lshl_b32 s{sLID}, s{sB}, 5")
    A(f"s_add_u32 s{sLID}, s{sLID}, s{sI}")
    A(f"s_add_u32 s{sF}, s{sI}, 3")
    A(f"s_lshr_b32 s{sF}, s{sF}, 3")
    A(f"s_sub_u32 s{sF}, s{sI}, s{sF}")
    A(f"s_and_b32 s{sT2}, s{sI}, 7")
    A(f"s_cmp_eq_u32 s{sT2}, 4")
    A(f"s_cselect_b32 s{sF}, 99, s{sF}")
    A(f"s_mov_b32 s{sC}, {hex(f32(LOG2E_16))}")
    A(f"s_mov_b32 s{sDRY}, 0")
    A("v_and_b32 v2, 15, v0")
    A("v_lshrrev_b32 v3, 4, v0")
    A(f"s_cmp_lt_u32 s{sWAVE}, 4")
    A("s_cbranch_scc1 L_helper")

    vOFF = 1
    vMAX, vL, vNMC = 11, 12, 13
    vT = 14
    vQ = 16
    vO = 32
    vA = 40
    vU = 48
    vSC = 56
    vP = 88
    vRING = 96
    sW = 9
    sBASE, sOFF, sSEL0, sSEL1 = 22, 23, 24, 25
    A.c("stream wave")
    A(f"s_sub_u32 s{sW}, s{sWAVE}, 4")
    A(f"s_lshl_b32 s{sT1}, s{sB}, 3")
    A(f"s_add_u32 s{sT1}, s{sT1}, s{sHKV}")
    A(f"s_lshl_b32 s{sT1}, s{sT1}, 21")
    A(f"s_lshl_b32 s{sT2}, s{sS}, 19")
    A(f"s_add_u32 s{sT1}, s{sT1}, s{sT2}")
    A(f"s_lshl_b32 s{sT2}, s{sW}, 11")
    A(f"s_add_u32 s{sCNT}, s{sT1}, s{sT2}")
    A(f"v_lshlrev_b32 v{vOFF}, 9, v3")
    A(f"v_lshl_add_u32 v{vOFF}, v2, 4, v{vOFF}")
    A("s_waitcnt lgkmcnt(0)")
    srd(S_K, 18, 0x8000000)
    srd(S_V, 20, 0x8000000)
    A(f"s_mov_b32 s{sBASE}, s{sCNT}")

    NG = 64
    NST = 2 * NG - 2 * NPOOL
    vmlog = []
    def after_n(key):
        idx = max(k for k, v in enumerate(vmlog) if v == key)
        return min(63, len(vmlog) - 1 - idx)
    issued = [0]
    L_EXT = 131072 - 4 * E * 2048
    sEXT = 21
    def is_ext(j): return RG0 <= j < RG0 + E
    def slot_of(j):
        assert not is_ext(j)
        return vRING + 8 * ((j if j < RG0 else j - E) % RG0)
    def issue(j):
        s = S_K if j < NG else S_V
        off = (j % NG) * 8192
        out = []
        fl = kf if j < NG else vf
        out.append(f"s_add_u32 s{sOFF}, s{sBASE}, {off}")
        if is_ext(j):
            e = j - RG0
            out.append(f"s_add_u32 m0, s{sEXT}, {e*2048}")
            out.append("s_nop 0")
            out.append(f"buffer_load_dwordx4 v{vOFF}, {sr(s,4)}, s{sOFF} offen {fl} lds")
            out.append(f"s_add_u32 m0, s{sEXT}, {e*2048 + 1024 - 256}")
            out.append("s_nop 0")
            out.append(f"buffer_load_dwordx4 v{vOFF}, {sr(s,4)}, s{sOFF} offen offset:256 {fl} lds")
        else:
            r = slot_of(j)
            out.append(f"buffer_load_dwordx4 {vr(r,4)}, v{vOFF}, {sr(s,4)}, s{sOFF} offen {fl}")
            out.append(f"buffer_load_dwordx4 {vr(r+4,4)}, v{vOFF}, {sr(s,4)}, s{sOFF} offen offset:256 {fl}")
        issued[0] = j + 1
        vmlog.append(("g", j)); vmlog.append(("g", j))
        return out
    A(f"s_mul_i32 s{sEXT}, s{sW}, {E*2048}")
    A(f"s_add_u32 s{sEXT}, s{sEXT}, {L_EXT}")
    for j in range(RSP):
        for x in issue(j): A(x)
    if touch:
        A("s_mov_b64 exec, 1")
        A(f"buffer_load_dword v9, v{vOFF}, {sr(S_V,4)}, s{sBASE} offen {vf}")
        A("s_mov_b64 exec, -1")
        vmlog.append(("touch", 0))
    srd(S_WS, 40, WS_SIZE)
    A("v_and_b32 v8, 7, v2")
    A("v_and_b32 v11, 1, v8")
    A("v_mov_b32 v12, 0xffff")
    A("v_lshlrev_b32 v11, 4, v11")
    A("v_lshlrev_b32 v12, v11, v12")
    A("v_lshrrev_b32 v11, 1, v8")
    for k in range(4):
        A(f"v_cmp_eq_u32 vcc, {k}, v11")
        A("s_nop 1")
        A(f"v_cndmask_b32 v{4+k}, 0, v12, vcc")
    A(f"s_mov_b32 s{sSEL0}, 0x01000100")
    A(f"s_mov_b32 s{sSEL1}, 0x03020302")
    A("s_barrier")
    for j in range(RSP, RG0 + E):
        A(f"s_waitcnt vmcnt({2*(RSP-1)})")
        if j == RSP: stamp(5)
        if j == 16: stamp(6)
        for x in issue(j): A(x)
    A("v_lshlrev_b32 v8, 4, v0")
    A(f"v_add_u32 v8, s{sEXT}, v8")
    for k in range(8): A(f"v_mov_b32 v{vO+k}, 0")
    A(f"v_mov_b32 v{vMAX}, 0xff800000")
    A(f"v_mov_b32 v{vL}, 0")
    A(f"v_lshrrev_b32 v{vT}, 3, v2")
    A(f"v_lshlrev_b32 v{vT}, 9, v{vT}")
    A(f"v_lshl_add_u32 v{vT}, v2, 4, v{vT}")
    A(f"v_xor_b32 v{vT+1}, 512, v{vT}")
    A(f"v_add_u32 v{vT}, {L_QF}, v{vT}")
    A(f"v_add_u32 v{vT+1}, {L_QF}, v{vT+1}")
    stamp(4)
    A("s_barrier")
    stamp(1)
    A(f"ds_read_b128 {vr(vQ,4)}, v{vT}")
    A(f"ds_read_b128 {vr(vQ+4,4)}, v{vT} offset:256")
    A(f"ds_read_b128 {vr(vQ+8,4)}, v{vT+1}")
    A(f"ds_read_b128 {vr(vQ+12,4)}, v{vT+1} offset:256")
    A("s_waitcnt lgkmcnt(0)")

    if LAG is None: LAG = RS + 2
    consumed = set()
    nstep = [0]
    def prev_occupant(j):
        if j < RG0: return None
        return j - RG0 - E if j - RG0 - E < RG0 and j < 2 * RG0 + E else j - RG0
    def after_step(groups):
        out = []
        for g_ in groups: consumed.add(g_)
        nstep[0] += 1
        lag = issued[0] - len(consumed)
        if lag >= LAG:
            want = len(groups) if nstep[0] * len(groups) <= RS else max(1, len(groups) // 2) if len(groups) > 1 else (nstep[0] & 1)
        else:
            want = LAG - lag
        for _ in range(want):
            j = issued[0]
            if j >= NST: break
            if prev_occupant(j) not in consumed: break
            assert slot_of(prev_occupant(j)) == slot_of(j)
            out.append(f"s_waitcnt vmcnt({2*(RS-1)})")
            out += issue(j)
        return out

    def merge(X, Y, every=3):
        out = []; yi = 0
        for k, x in enumerate(X):
            out.append(x)
            if (k + 1) % every == 0 and yi < len(Y):
                out.append(Y[yi]); yi += 1
        assert yi == len(Y)
        return out

    Yprev = []
    regp = [p for p in range(NG // 2) if not is_ext(2 * p)]
    extp = [p for p in range(NG // 2) if is_ext(2 * p)]
    order = []
    for k, p in enumerate(regp):
        order.append(p)
        if k >= 1 and extp: order.append(extp.pop(0))
    next_ext = [p for p in order if is_ext(2 * p)]
    def ext_read(p):
        e = 2 * p - RG0
        return [f"ds_read_b128 {vr(vA,4)}, v8 offset:{e*2048}",
                f"ds_read_b128 {vr(vA+4,4)}, v8 offset:{e*2048+1024}",
                f"ds_read_b128 {vr(vP,4)}, v8 offset:{e*2048+2048}",
                f"ds_read_b128 {vr(vP+4,4)}, v8 offset:{e*2048+3072}"]
    for oi, p in enumerate(order):
        ga, gb = 2 * p, 2 * p + 1
        ub = vU + 4 * (oi & 1)
        ua_, wa_, ub_, wb_ = ub, ub + 1, ub + 2, ub + 3
        if is_ext(ga):
            ra, rb = vA, vP
            A("s_waitcnt lgkmcnt(0)")
        else:
            ra, rb = slot_of(ga), slot_of(gb)
            assert issued[0] > gb
            n_after = after_n(("g", gb))
            nxt = order[oi + 1] if oi + 1 < len(order) else None
            if nxt is not None and is_ext(2 * nxt):
                n_after = min(n_after, after_n(("g", 2 * nxt + 1)))
                A(f"s_waitcnt vmcnt({n_after})")
                for x in ext_read(nxt): A(x)
            else:
                A(f"s_waitcnt vmcnt({n_after})")
        X = []
        for e in range(8):
            for (acc, r, q) in ((ua_, ra, vQ + e), (wa_, ra, vQ + 8 + e), (ub_, rb, vQ + e), (wb_, rb, vQ + 8 + e)):
                src2 = "0" if e == 0 else f"v{acc}"
                X.append(f"v_dot2_f32_bf16 v{acc}, v{r+e}, v{q}, {src2}")
        for x in merge(X, Yprev): A(x)
        for x in after_step([ga, gb]): A(x)
        if E and p == next_ext[-1]:
            A(f"v_mov_b32 v8, {L_FLAG+20}")
            lds_inc(8, 9)
        Y = []
        Y.append(f"v_add_f32_dpp v{ua_}, v{wa_}, v{ua_} row_ror:8 {DPPM}")
        Y.append(f"v_add_f32_dpp v{ub_}, v{wb_}, v{ub_} row_ror:8 {DPPM}")
        for m in ("quad_perm:[1,0,3,2]", "quad_perm:[2,3,0,1]", "row_half_mirror"):
            Y.append(f"v_add_f32_dpp v{ua_}, v{ua_}, v{ua_} {m} {DPPM}")
            Y.append(f"v_add_f32_dpp v{ub_}, v{ub_}, v{ub_} {m} {DPPM}")
        Y.append(f"v_cvt_pk_bf16_f32 v{vSC+p}, v{ua_}, v{ub_}")
        Y.append(f"v_max3_f32 v{vMAX}, v{ua_}, v{ub_}, v{vMAX}")
        Yprev = Y
    A("s_nop 2")
    for y in Yprev:
        A(y); A("s_nop 1")
    for s_ in ("v_permlane16_swap_b32", "v_permlane32_swap_b32"):
        A(f"v_mov_b32 v{vT}, v{vMAX}")
        A("s_nop 1")
        A(f"{s_} v{vMAX}, v{vT}")
        A("s_nop 1")
        A(f"v_max_f32 v{vMAX}, v{vMAX}, v{vT}")
    rbf(vMAX)
    A(f"v_mul_f32 v{vNMC}, s{sC}, v{vMAX}")
    A(f"v_sub_f32 v{vNMC}, 0, v{vNMC}")
    stamp(2)

    def ppair(pi):
        sc = vSC + pi
        a, b = vP + 2, vP + 3
        return [f"v_lshlrev_b32 v{a}, 16, v{sc}",
                f"v_and_b32 v{b}, 0xffff0000, v{sc}",
                f"v_fma_f32 v{a}, v{a}, s{sC}, v{vNMC}",
                f"v_fma_f32 v{b}, v{b}, s{sC}, v{vNMC}",
                f"v_exp_f32 v{a}, v{a}",
                f"v_exp_f32 v{b}, v{b}",
                f"v_add_f32 v{vL}, v{vL}, v{a}",
                f"v_cvt_pk_bf16_f32 v{sc}, v{a}, v{b}",
                f"v_add_f32 v{vL}, v{vL}, v{b}"]
    def abuild(i):
        a = vA + 4 * (i & 1)
        t = vP + (i & 1)
        sc = vSC + (i >> 1)
        out = [f"v_perm_b32 v{t}, v{sc}, v{sc}, s{sSEL1 if i & 1 else sSEL0}"]
        for k in range(4): out.append(f"v_and_b32 v{a+k}, v{4+k}, v{t}")
        return out
    assert NPOOL % 4 == 0 and NPOOL <= 16
    A("v_lshrrev_b32 v16, 3, v2")
    A("v_lshl_add_u32 v16, v3, 1, v16")
    A("v_lshlrev_b32 v16, 6, v16")
    A(f"s_lshl_b32 s{sT1}, s{sLID}, 11")
    A(f"s_lshl_b32 s{sT2}, s{sW}, 9")
    A(f"s_add_u32 s{sT1}, s{sT1}, s{sT2}")
    A(f"s_add_u32 s{sT1}, s{sT1}, {WS_SC}")
    A("s_mov_b32 exec_lo, 0x01010101")
    A("s_mov_b32 exec_hi, 0x01010101")
    for k in range(NPOOL // 4):
        A(f"buffer_store_dwordx4 {vr(vSC+32-NPOOL+4*k,4)}, v16, {sr(S_WS,4)}, s{sT1} offen offset:{16*k} sc1")
        vmlog.append(("st", 0))
    A("s_mov_b64 exec, -1")
    NR = D + 1
    vAT = 48
    vS = 20
    assert NR <= 8
    vZ = 17
    sTK = 26
    sGV = 27
    sGS = 28 if not stamps else 18
    sSELP = 72
    sTKT, sA0, sA1 = 68, 69, 70
    A(f"v_mov_b32 v{vZ}, 0")
    A(f"s_andn2_b32 s{sT1}, s{sLID}, 3")
    A(f"s_lshl_b32 s{sTK}, s{sT1}, 7")
    A(f"s_add_u32 s{sTK}, s{sTK}, {WS_ML + 112}")
    A(f"s_lshl_b32 s{sGS}, s{sT1}, 11")
    A(f"s_add_u32 s{sGS}, s{sGS}, {WS_SC}")
    A(f"s_lshl_b32 s{sGV}, s{sB}, 3")
    A(f"s_add_u32 s{sGV}, s{sGV}, s{sHKV}")
    A(f"s_lshl_b32 s{sGV}, s{sGV}, 21")
    A(f"s_add_u32 s{sGV}, s{sGV}, {(NG - 2*NPOOL) * 8192}")
    dslot = [slot_of(NST - RG0 + k) for k in range(2 * NR)]
    dprev = [NST - RG0 + k for k in range(2 * NR)]
    def atomic(k):
        vmlog.append(("at", k))
        return [f"v_mov_b32 v{vAT + k % NR}, 1",
                "s_mov_b64 exec, 1",
                f"buffer_atomic_add v{vAT + k % NR}, v{vZ}, {sr(S_WS,4)}, s{sTK} offen sc0 sc1",
                "s_mov_b64 exec, -1"]
    def ticket_read(k):
        return [f"v_readfirstlane_b32 s{sTKT}, v{vAT + (k - (D-1)) % NR}", "s_nop 3", f"s_add_u32 s{sTKT}, s{sTKT}, 1"]
    def dissue(k, guard):
        pos = k % NR
        o = []
        o.append(f"s_lshr_b32 s{sA0}, s{sTKT}, 4")
        o.append(f"s_and_b32 s{sA1}, s{sTKT}, 15")
        o.append(f"s_lshl_b32 s{sOFF}, s{sA1}, 9")
        o.append(f"s_lshl2_add_u32 s{sOFF}, s{sA0}, s{sOFF}")
        o.append(f"s_add_u32 s{sOFF}, s{sOFF}, s{sGS}")
        o.append(f"s_lshl_b32 s{sA0}, s{sA0}, 14")
        o.append(f"s_add_u32 s{sA0}, s{sA0}, s{sGV}")
        o.append(f"s_and_b32 s{sT1}, s{sA1}, 3")
        o.append(f"s_lshl_b32 s{sT1}, s{sT1}, 11")
        o.append(f"s_add_u32 s{sA0}, s{sA0}, s{sT1}")
        o.append(f"s_lshr_b32 s{sA1}, s{sA1}, 2")
        o.append(f"s_lshl_b32 s{sA1}, s{sA1}, 19")
        o.append(f"s_add_u32 s{sA0}, s{sA0}, s{sA1}")
        if guard:
            o.append(f"s_cmp_lt_u32 s{sTKT}, {16*NPOOL}")
            o.append(f"s_cselect_b32 s{sA0}, s{sA0}, 0x7ff00000")
            o.append(f"s_cselect_b32 s{sOFF}, s{sOFF}, 0x7ff00000")
            o.append(f"s_cselect_b32 s{sSELP+2*pos}, s{sSEL0}, 0x0c0c0c0c")
            o.append(f"s_cselect_b32 s{sSELP+2*pos+1}, s{sSEL1}, 0x0c0c0c0c")
        else:
            o.append(f"s_mov_b32 s{sSELP+2*pos}, s{sSEL0}")
            o.append(f"s_mov_b32 s{sSELP+2*pos+1}, s{sSEL1}")
        o.append(f"s_add_u32 s{sA1}, s{sA0}, 8192")
        o += atomic(k)
        o.append(f"buffer_load_dword v{vS+pos}, v16, {sr(S_WS,4)}, s{sOFF} offen sc1")
        ra, rb = dslot[2*pos], dslot[2*pos+1]
        o.append(f"buffer_load_dwordx4 {vr(ra,4)}, v{vOFF}, {sr(S_V,4)}, s{sA0} offen {vf}")
        o.append(f"buffer_load_dwordx4 {vr(ra+4,4)}, v{vOFF}, {sr(S_V,4)}, s{sA0} offen offset:256 {vf}")
        o.append(f"buffer_load_dwordx4 {vr(rb,4)}, v{vOFF}, {sr(S_V,4)}, s{sA1} offen {vf}")
        o.append(f"buffer_load_dwordx4 {vr(rb+4,4)}, v{vOFF}, {sr(S_V,4)}, s{sA1} offen offset:256 {vf}")
        for _ in range(5): vmlog.append(("d", k))
        return o
    def dconsume(k):
        pos = k % NR
        sc = vS + pos
        a, b = vP + 2, vP + 3
        ra, rb = dslot[2*pos], dslot[2*pos+1]
        o = [f"v_lshlrev_b32 v{a}, 16, v{sc}",
             f"v_and_b32 v{b}, 0xffff0000, v{sc}",
             f"v_fma_f32 v{a}, v{a}, s{sC}, v{vNMC}",
             f"v_fma_f32 v{b}, v{b}, s{sC}, v{vNMC}",
             f"v_exp_f32 v{a}, v{a}",
             f"v_exp_f32 v{b}, v{b}",
             "s_nop 0",
             f"v_cvt_pk_bf16_f32 v{a}, v{a}, v{b}",
             f"v_perm_b32 v{vP}, v{a}, v{a}, s{sSELP+2*pos}",
             f"v_perm_b32 v{vP+1}, v{a}, v{a}, s{sSELP+2*pos+1}"]
        for k_ in range(4): o.append(f"v_and_b32 v{vA+k_}, v{4+k_}, v{vP}")
        for k_ in range(4): o.append(f"v_and_b32 v{vA+4+k_}, v{4+k_}, v{vP+1}")
        o.append(f"v_mfma_f32_16x16x32_bf16 {vr(vO,4)}, {vr(vA,4)}, {vr(ra,4)}, {vr(vO,4)}")
        o.append(f"v_mfma_f32_16x16x32_bf16 {vr(vO+4,4)}, {vr(vA,4)}, {vr(ra+4,4)}, {vr(vO+4,4)}")
        o.append(f"v_mfma_f32_16x16x32_bf16 {vr(vO,4)}, {vr(vA+4,4)}, {vr(rb,4)}, {vr(vO,4)}")
        o.append(f"v_mfma_f32_16x16x32_bf16 {vr(vO+4,4)}, {vr(vA+4,4)}, {vr(rb+4,4)}, {vr(vO+4,4)}")
        return o

    for x in ppair(0): A(x)
    for x in abuild(0): A(x)
    nextp = [1]
    LDONE = (31 + PP - 1) // PP - 1
    NV = NST - NG
    first_dyn_i = NV - LAG
    ev = {}
    for n_, k in enumerate(range(-(D-1), 0)):
        ev.setdefault(first_dyn_i - 2 * (D - 1) + 2 * n_, []).append(("at", k))
    for k in range(D):
        ev.setdefault(min(NV - 1, first_dyn_i + (2 * k * 3) // D), []).append(("d", k))
    for i in range(NV):
        gi = NG + i
        r = slot_of(gi)
        a = vA + 4 * (i & 1)
        assert issued[0] > gi
        if nextp[0] < 32:
            for _ in range(PP):
                if nextp[0] < 32:
                    for x in ppair(nextp[0]): A(x)
                    nextp[0] += 1
        else:
            A("s_nop 0")
        A(f"s_waitcnt vmcnt({after_n(('g', gi))})")
        A(f"v_mfma_f32_16x16x32_bf16 {vr(vO,4)}, {vr(a,4)}, {vr(r,4)}, {vr(vO,4)}")
        A(f"v_mfma_f32_16x16x32_bf16 {vr(vO+4,4)}, {vr(a,4)}, {vr(r+4,4)}, {vr(vO+4,4)}")
        for x in after_step([gi]): A(x)
        if i == 16: stamp(9)
        if i == 32: stamp(10)
        for (kind, k) in ev.get(i, []):
            if kind == "at":
                for x in atomic(k): A(x)
            else:
                assert issued[0] == NST
                assert dprev[2*(k%NR)] in consumed and dprev[2*(k%NR)+1] in consumed
                if k == 0:
                    A(f"v_mov_b32 v18, {L_FLAG+4}")
                    lds_wait(18, 19, 1)
                    A("ds_read_b32 v28, v29")
                    A("ds_read_b32 v30, v31")
                A(f"s_waitcnt vmcnt({min(after_n(('at', k-(D-1))), 2*(RS-1))})")
                for x in ticket_read(k): A(x)
                if k == 0: A(f"s_mov_b32 s71, s{sTKT}")
                for x in dissue(k, True): A(x)
        if i + 1 < NV:
            for x in abuild(i + 1): A(x)
        if i == LDONE:
            assert nextp[0] == 32
            for s_ in ("v_permlane16_swap_b32", "v_permlane32_swap_b32"):
                A(f"v_mov_b32 v{vT}, v{vL}")
                A("s_nop 1")
                A(f"{s_} v{vL}, v{vT}")
                A("s_nop 1")
                A(f"v_add_f32 v{vL}, v{vL}, v{vT}")
            A(f"v_and_b32 v{vT}, 8, v2")
            A(f"s_lshl_b32 s{sT1}, s{sW}, 4")
            A(f"s_add_u32 s{sT1}, s{sT1}, {L_STAT}")
            A(f"v_add_u32 v{vT}, s{sT1}, v{vT}")
            A(f"v_mov_b32 v{vP+4}, v{vMAX}")
            A(f"v_mov_b32 v{vP+5}, v{vL}")
            A(f"ds_write_b64 v{vT}, {vr(vP+4,2)}")
            A(f"v_mov_b32 v{vT}, {L_FLAG}")
            A(f"s_waitcnt vmcnt({after_n(('st', 0))})")
            lds_inc(vT, vT + 1)
            A("v_lshrrev_b32 v10, 1, v3")
            A("v_lshlrev_b32 v29, 2, v10")
            A("v_lshlrev_b32 v10, 10, v10")
            A("v_lshl_add_u32 v10, v2, 5, v10")
            A("v_and_b32 v18, 1, v3")
            A("v_lshl_add_u32 v10, v18, 4, v10")
            A(f"s_lshl_b32 s{sT1}, s{sW}, 11")
            A(f"s_add_u32 s{sT1}, s{sT1}, {L_PART}")
            A(f"v_add_u32 v10, s{sT1}, v10")
            A(f"s_lshl_b32 s{sT1}, s{sW}, 3")
            A(f"s_add_u32 s{sT1}, s{sT1}, {L_F}")
            A(f"v_add_u32 v29, s{sT1}, v29")
            A("v_lshrrev_b32 v31, 3, v2")
            A("v_lshlrev_b32 v31, 2, v31")
            A(f"v_add_u32 v31, {L_F+32}, v31")
    stamp(7)
    A("s_waitcnt lgkmcnt(0)")
    A(f"v_mov_b32 v{vNMC}, v30")
    A("s_nop 5")
    for k in range(8): A(f"v_mul_f32 v{vO+k}, v{vO+k}, v28")
    A(f"s_cmp_ge_u32 s71, {16*NPOOL}")
    A("s_cbranch_scc1 L_vdone")
    pat = []
    for k in range(1, D): pat += [("at", k)] + [("d", k)] * 5
    assert vmlog[-len(pat):] == pat, vmlog[-20:]
    WN = 6 * D - 7
    A.lab("L_dloop")
    for u in range(NR):
        k = D + u
        A(f"s_waitcnt vmcnt({WN})")
        for x in ticket_read(k): A(x)
        A(f"s_cmp_ge_u32 s{sTKT}, {16*NPOOL}")
        A(f"s_cbranch_scc1 L_drain{u}")
        for x in dissue(k, False): A(x)
        for x in dconsume(k - D): A(x)
    A("s_branch L_dloop")
    for u in range(NR):
        k = D + u
        A.lab(f"L_drain{u}")
        for n_ in range(D):
            if n_ > 0: A(f"s_waitcnt vmcnt({6*(D-1-n_)})")
            for x in dconsume(k - D + n_): A(x)
        if u < NR - 1: A("s_branch L_vdone")
    A.lab("L_vdone")
    A("s_nop 7")
    A(f"ds_write_b128 v10, {vr(vO,4)}")
    A(f"ds_write_b128 v10, {vr(vO+4,4)} offset:512")
    A("s_waitcnt vmcnt(0) lgkmcnt(0)")
    stamp(3)
    A("s_barrier")
    A("s_branch L_t3pre")

    A.lab("L_helper")
    sW = sWAVE
    vTH = 1
    vX = 32
    vY = 80
    vW1 = 144
    vW2 = 200
    A(f"s_lshl_b32 s{sT1}, s{sW}, 6")
    A(f"v_add_u32 v{vTH}, s{sT1}, v0")
    A(f"s_lshl_b32 s{sT2}, s{sI}, 3")
    A(f"s_add_u32 s{sT2}, s{sT2}, s{sB}")
    A("s_waitcnt lgkmcnt(0)")
    srd(S_WS, 40, WS_SIZE)
    srd(S_WQ, 22, 448 * 8192)
    srd(S_DBG, 38, 256)
    A(f"s_cmp_eq_u32 s{sW}, 0")
    A("s_cbranch_scc1 L_h0")
    A(f"s_cmp_eq_u32 s{sW}, 3")
    A("s_cbranch_scc1 L_h3")
    srd(S_X, 16, 7168)
    A("v_and_b32 v8, 31, v0")
    A("v_lshrrev_b32 v9, 5, v0")
    A("v_mul_u32_u24 v9, 896, v9")
    A("v_lshl_add_u32 v9, v8, 5, v9")
    A("v_cmp_gt_u32 vcc, 28, v8")
    A("v_mov_b32 v10, 0x7fffff00")
    A(f"s_sub_u32 s{sA}, s{sW}, 1")
    A(f"s_mul_i32 s{sA}, s{sA}, 3584")
    A("v_cndmask_b32 v10, v10, v9, vcc")
    A("v_mov_b32 v15, 1.0")
    A("v_cndmask_b32 v15, 0, v15, vcc")
    A(f"buffer_load_dwordx4 v[16:19], v10, {sr(S_X,4)}, s{sA} offen")
    A(f"buffer_load_dwordx4 v[20:23], v10, {sr(S_X,4)}, s{sA} offen offset:16")
    A(f"buffer_load_dwordx4 v[24:27], v10, {sr(S_X,4)}, s{sA} offen offset:1792")
    A(f"buffer_load_dwordx4 v[28:31], v10, {sr(S_X,4)}, s{sA} offen offset:1808")
    A("v_mov_b32 v12, 0")
    A(f"v_lshlrev_b32 v13, 2, v2")
    A(f"v_add_u32 v13, {L_FLAG}, v13")
    A("ds_write_b32 v13, v12")
    A(f"s_add_u32 s{sA}, s{sA}, {L_XN}")
    A(f"v_add_u32 v9, s{sA}, v9")
    A("s_waitcnt lgkmcnt(0)")
    A("s_barrier")
    A("s_waitcnt vmcnt(0)")
    stamp(5, 'q')
    keep = A.L; A.L = []
    layernorm(16, 16, 32, 48, 64, 15, False); l1 = A.L; A.L = []
    layernorm(24, 16, 80, 96, 112, 15, False); l2 = A.L; A.L = keep
    assert len(l1) == len(l2)
    for x, y in zip(l1, l2):
        if x.strip().startswith("s_nop"):
            A.L.append("  s_nop 0")
        elif x.strip().startswith("s_mov"):
            A.L.append(x)
        else:
            A.L.append(x); A.L.append(y)
    A("v_cmp_lt_f32 vcc, 0, v15")
    A(f"s_and_saveexec_b64 s[{sEX}:{sEX+1}], vcc")
    A("ds_write_b128 v9, v[16:19]")
    A("ds_write_b128 v9, v[20:23] offset:16")
    A("ds_write_b128 v9, v[24:27] offset:1792")
    A("ds_write_b128 v9, v[28:31] offset:1808")
    A(f"s_mov_b64 exec, s[{sEX}:{sEX+1}]")
    A(f"v_mov_b32 v9, {L_FLAG+16}")
    lds_inc(9, 10)
    stamp(6, 'q')
    A("s_branch L_hb2")

    A.lab("L_h0")
    A("v_lshrrev_b32 v13, 1, v0")
    A("v_lshlrev_b32 v13, 13, v13")
    A("v_and_b32 v14, 1, v0")
    A("v_lshl_add_u32 v13, v14, 4, v13")
    A(f"s_lshl_b32 s{sT1}, s{sT2}, 5")
    for i in range(14):
        A(f"s_mov_b32 m0, {L_WQ + i*1024}")
        A(f"s_add_u32 s{sCNT}, s{sT1}, {i*32*8192}")
        if not nowq: A(f"buffer_load_dwordx4 v13, {sr(S_WQ,4)}, s{sCNT} offen {wf} lds")
    A("s_barrier")
    A("v_lshrrev_b32 v12, 2, v2")
    A("v_lshl_add_u32 v12, v3, 3, v12")
    A("v_lshlrev_b32 v12, 5, v12")
    A("v_and_b32 v13, 3, v2")
    A("v_lshl_add_u32 v12, v13, 3, v12")
    A("v_and_b32 v13, 7, v2")
    A("v_mul_u32_u24 v13, 896, v13")
    A("v_lshl_add_u32 v13, v3, 4, v13")
    A("v_lshlrev_b32 v14, 13, v2")
    A("v_lshl_add_u32 v14, v3, 3, v14")
    A("s_waitcnt vmcnt(0)")
    stamp(5, 'q')
    for kk in range(14):
        r = 80 + 4 * kk
        A(f"ds_read_b64_tr_b16 {vr(r,2)}, v12 offset:{L_WQ + kk*1024}")
        A(f"ds_read_b64_tr_b16 {vr(r+2,2)}, v12 offset:{L_WQ + kk*1024+128}")
        if kk == 6: A("s_waitcnt lgkmcnt(0)")
    A("s_waitcnt lgkmcnt(0)")
    A(f"v_mov_b32 v15, {L_FLAG+16}")
    lds_wait(15, 16, 3, sleep=0)
    stamp(6, 'q')
    for kk in range(14):
        A(f"ds_read_b128 {vr(144+4*kk,4)}, v13 offset:{L_XN + kk*64}")
    for kk in range(14):
        A(f"s_waitcnt lgkmcnt({13-kk})")
        c = "0" if kk == 0 else "v[24:27]"
        A(f"v_mfma_f32_16x16x32_bf16 v[24:27], {vr(80+4*kk,4)}, {vr(144+4*kk,4)}, {c}")
    A("s_mov_b32 exec_lo, 0x00ff00ff")
    A("s_mov_b32 exec_hi, 0x00ff00ff")
    A("s_nop 5")
    A("v_cvt_pk_bf16_f32 v28, v24, v25")
    A("v_cvt_pk_bf16_f32 v29, v26, v27")
    guard([28, 29])
    A(f"buffer_store_dwordx2 v[28:29], v14, {sr(S_WS,4)}, s{sT1} offen sc1")
    A("s_mov_b64 exec, -1")
    stamp(7, 'q')
    A("s_branch L_hb2")

    A.lab("L_h3")
    for k in range(4): A(f"v_mov_b32 v{24+k}, -1")
    A("v_lshrrev_b32 v14, 1, v0")
    A("v_lshlrev_b32 v14, 13, v14")
    A("v_and_b32 v15, 1, v0")
    A("v_lshl_add_u32 v14, v15, 4, v14")
    A(f"s_lshl_b32 s{sT1}, s{sT2}, 5")
    A("s_mov_b64 exec, 0xffff")
    A(f"buffer_store_dwordx4 v[24:27], v14, {sr(S_WS,4)}, s{sT1} offen sc1")
    A("s_mov_b64 exec, -1")
    A("v_lshlrev_b32 v14, 4, v0")
    A(f"s_lshl_b32 s{sA}, s{sLID}, 7")
    A(f"s_add_u32 s{sA}, s{sA}, {WS_ML}")
    A("s_mov_b64 exec, 0xff")
    A(f"buffer_store_dwordx4 v[24:27], v14, {sr(S_WS,4)}, s{sA} offen sc1")
    A("s_mov_b64 exec, -1")
    A(f"s_lshl_b32 s{sT1}, s{sLID}, 11")
    A(f"s_add_u32 s{sT1}, s{sT1}, {WS_OB1}")
    for k in range(2):
        A(f"buffer_store_dwordx4 v[24:27], v14, {sr(S_WS,4)}, s{sT1} offen offset:{k*1024} sc1")
    A(f"s_lshl_b32 s{sT1}, s{sLID}, 9")
    A(f"s_add_u32 s{sT1}, s{sT1}, {WS_OB2}")
    A("s_mov_b32 exec_hi, 0")
    A(f"buffer_store_dwordx4 v[24:27], v14, {sr(S_WS,4)}, s{sT1} offen sc1")
    A("s_mov_b64 exec, -1")
    lab = A.newlab("L_noclr3")
    A(f"s_cmp_ge_u32 s{sF}, 28")
    A(f"s_cbranch_scc1 {lab}")
    A(f"s_lshl_b32 s{sT1}, s{sB}, 5")
    A(f"s_add_u32 s{sT1}, s{sT1}, s{sF}")
    A(f"s_lshl_b32 s{sT1}, s{sT1}, 11")
    A(f"s_add_u32 s{sT1}, s{sT1}, {WS_OB3}")
    for k in range(2):
        A(f"buffer_store_dwordx4 v[24:27], v14, {sr(S_WS,4)}, s{sT1} offen offset:{k*1024} sc1")
    A.lab(lab)
    A("s_barrier")
    A("v_mov_b32 v12, 1")
    A("v_mov_b32 v13, 0")
    A("v_mov_b32 v15, 1")
    A(f"s_lshl_b32 s{sD}, s{sHKV}, 5")
    A("v_lshrrev_b32 v16, 2, v0")
    A("v_lshlrev_b32 v16, 5, v16")
    A("v_and_b32 v17, 3, v0")
    A("v_add_u32 v16, v16, v17")
    A("v_lshlrev_b32 v16, 7, v16")
    A("v_lshlrev_b32 v17, 7, v0")
    A("s_waitcnt vmcnt(0)")
    stamp(5, 'q')
    A("s_mov_b64 exec, 1")
    A(f"buffer_atomic_add v12, v13, {sr(S_DBG,4)}, s{sD} offen sc0 sc1")
    A("s_mov_b64 exec, -1")
    A(f"v_mov_b32 v18, {L_FLAG+16}")
    lds_inc(18, 19)
    A("s_waitcnt vmcnt(0)")
    A(f"v_readfirstlane_b32 s{sBq}, v12")
    A("s_nop 3")
    A(f"s_and_b32 s{sBq}, s{sBq}, 31")
    A(f"s_cmp_lg_u32 s{sBq}, 31")
    A("s_cbranch_scc1 L_notlast")
    A(f"s_lshl_b32 s{sD}, s{sHKV}, 9")
    A(f"s_add_u32 s{sD}, s{sD}, {WS_ML+64}")
    A("s_mov_b32 exec_hi, 0")
    A(f"buffer_store_dword v15, v16, {sr(S_WS,4)}, s{sD} offen sc1")
    A("v_mov_b32 v12, 1")
    A("s_mov_b64 exec, 1")
    A(f"buffer_atomic_add v12, v13, {sr(S_DBG,4)}, 0 offen offset:16 sc0 sc1")
    A("s_mov_b64 exec, -1")
    A("s_waitcnt vmcnt(0)")
    A(f"v_readfirstlane_b32 s{sBq}, v12")
    A("s_nop 3")
    A(f"s_and_b32 s{sBq}, s{sBq}, 7")
    A(f"s_cmp_lg_u32 s{sBq}, 7")
    A("s_cbranch_scc1 L_notlast")
    for k in range(4):
        A(f"s_mov_b32 s{sD}, {WS_ML + 96 + k*8192}")
        A(f"buffer_store_dword v15, v17, {sr(S_WS,4)}, s{sD} offen sc1")
    A.lab("L_notlast")
    stamp(6, 'q')
    poll([f"buffer_load_dword v18, v13, {sr(S_WS,4)}, s{sA} offen offset:64 sc1"], [18], 19, spin)
    stamp(7, 'q')
    A(f"s_lshl_b32 s{sD}, s{sB}, 13")
    A(f"s_lshl_b32 s{sBq}, s{sHKV}, 10")
    A(f"s_add_u32 s{sD}, s{sD}, s{sBq}")
    A(f"v_add_u32 v12, {L_QF}, v14")
    poll([f"buffer_load_dwordx4 v[16:19], v14, {sr(S_WS,4)}, s{sD} offen sc1"], [16, 17, 18, 19], 24, spin)
    A("ds_write_b128 v12, v[16:19]")
    A("s_waitcnt lgkmcnt(0)")
    stamp(8, 'q')
    A("s_barrier")
    poll([f"buffer_load_dword v18, v13, {sr(S_WS,4)}, s{sA} offen offset:96 sc1"], [18], 19, spin)
    A("s_branch L_hw")

    A.lab("L_hb2")
    A("s_barrier")
    A.lab("L_hw")
    A("s_load_dwordx2 s[16:17], s[0:1], 0")
    A("s_load_dwordx2 s[24:25], s[0:1], 32")
    A("s_load_dwordx4 s[20:23], s[0:1], 48")
    A("s_load_dwordx2 s[18:19], s[0:1], 64")
    A("s_load_dwordx4 s[64:67], s[0:1], 72")
    A("s_waitcnt lgkmcnt(0)")
    srd(S_X, 16, 7168)
    srd(S_WO, 24, 4096 * 896)
    srd(S_B2, 64, 896)
    srd(S_OUT, 66, 7168)
    srd(S_W1, 20, 448 * 3584)
    srd(S_B1, 22, 3584)
    srd(S_W2, 18, 1792 * 896)

    def pace():
        A(f"s_waitcnt vmcnt({wpace-1})")
    A("v_and_b32 v12, 31, v0")
    A("v_lshlrev_b32 v12, 3, v12")
    A(f"s_mul_i32 s{sD}, s{sB}, 896")
    A(f"s_lshl_b32 s{sA}, s{sW}, 8")
    A(f"s_add_u32 s{sD}, s{sD}, s{sA}")
    A(f"buffer_load_dwordx2 v[64:65], v12, {sr(S_X,4)}, s{sD} offen")
    A("v_lshlrev_b32 v12, 3, v3")
    A(f"s_lshl_b32 s{sD}, s{sF}, 7")
    A(f"s_lshl_b32 s{sA}, s{sW}, 5")
    A(f"s_add_u32 s{sD}, s{sD}, s{sA}")
    A(f"buffer_load_dwordx2 v[66:67], v12, {sr(S_B1,4)}, s{sD} offen")
    A("v_and_b32 v12, 7, v0")
    A("v_lshlrev_b32 v12, 2, v12")
    A(f"s_lshl_b32 s{sD}, s{sF}, 5")
    A(f"buffer_load_dword v68, v12, {sr(S_B2,4)}, s{sD} offen")
    A("v_lshrrev_b32 v8, 2, v2")
    A("v_lshl_add_u32 v8, v3, 3, v8")
    A("v_and_b32 v9, 3, v2")
    A(f"s_cmp_ge_u32 s{sF}, 28")
    A("s_cbranch_scc1 L_noffn")
    if E > 8:
        A(f"v_mov_b32 v13, {L_FLAG+20}")
        lds_wait(13, 14, 4)
    A("v_lshrrev_b32 v12, 3, v0")
    A("v_mul_u32_u24 v12, 3584, v12")
    A("v_and_b32 v13, 7, v0")
    A("v_lshl_add_u32 v12, v13, 4, v12")
    A(f"s_mul_i32 s{sA}, s{sW}, {14*8*3584}")
    A(f"s_lshl_b32 s{sD}, s{sF}, 7")
    A(f"s_add_u32 s{sA}, s{sA}, s{sD}")
    A(f"s_mul_i32 s{sBq}, s{sW}, {14*1024}")
    for u in range(14):
        pace()
        A(f"s_add_u32 m0, s{sBq}, {L_W1S + u*1024}")
        A(f"s_add_u32 s{sD}, s{sA}, {u*8*3584}")
        if not now: A(f"buffer_load_dwordx4 v12, {sr(S_W1,4)}, s{sD} offen {wf} lds")
    if E:
        A(f"v_mov_b32 v13, {L_FLAG+20}")
        lds_wait(13, 14, 4)
    A("v_lshlrev_b32 v12, 4, v0")
    A(f"s_mul_i32 s{sA}, s{sF}, 57344")
    A(f"s_add_u32 s{sA}, s{sA}, s{sBq}")
    for u in range(14):
        pace()
        A(f"s_add_u32 m0, s{sBq}, {L_W2S + u*1024}")
        A(f"s_add_u32 s{sD}, s{sA}, {u*1024}")
        if not now: A(f"buffer_load_dwordx4 v12, {sr(S_W2,4)}, s{sD} offen {wf} lds")
    A("s_waitcnt vmcnt(0)")
    A(f"v_mov_b32 v12, {L_FLAG+8}")
    lds_inc(12, 13)
    lds_wait(12, 13, 4)
    A("v_lshlrev_b32 v12, 7, v8")
    A("v_lshl_add_u32 v12, v9, 3, v12")
    A(f"s_lshl_b32 s{sA}, s{sW}, 5")
    A(f"v_add_u32 v12, s{sA}, v12")
    for ks in range(14):
        A(f"ds_read_b64_tr_b16 {vr(vW1+4*ks,2)}, v12 offset:{L_W1S + ks*4096}")
        A(f"ds_read_b64_tr_b16 {vr(vW1+4*ks+2,2)}, v12 offset:{L_W1S + ks*4096 + 512}")
        if ks % 6 == 5: A("s_waitcnt lgkmcnt(0)")
    A("s_waitcnt lgkmcnt(0)")
    A("v_mul_u32_u24 v12, 896, v8")
    A("v_lshl_add_u32 v12, v9, 3, v12")
    A(f"s_mul_i32 s{sA}, s{sW}, 224")
    A(f"s_add_u32 s{sA}, s{sA}, {L_W2S}")
    A(f"v_add_u32 v12, s{sA}, v12")
    for j in range(7):
        for ks in range(2):
            r = vW2 + 4 * (2 * j + ks)
            A(f"ds_read_b64_tr_b16 {vr(r,2)}, v12 offset:{ks*28672 + j*32}")
            A(f"ds_read_b64_tr_b16 {vr(r+2,2)}, v12 offset:{ks*28672 + 3584 + j*32}")
        if j % 3 == 2: A("s_waitcnt lgkmcnt(0)")
    A("s_waitcnt lgkmcnt(0)")
    A(f"v_mov_b32 v12, {L_FLAG+12}")
    lds_inc(12, 13)
    lds_wait(12, 13, 4)
    A.lab("L_noffn")
    if E:
        A(f"v_mov_b32 v13, {L_FLAG+20}")
        lds_wait(13, 14, 4)
    A("v_lshlrev_b32 v12, 1, v3")
    A("v_xor_b32 v12, v12, v2")
    A("v_xor_b32 v13, 8, v12")
    A(f"s_cmp_eq_u32 s{sS}, 3")
    A(f"s_cselect_b32 s{sD}, 8, 16")
    A(f"v_cmp_gt_u32 s[20:21], s{sD}, v12")
    A(f"v_cmp_gt_u32 s[22:23], s{sD}, v13")
    A("v_mul_u32_u24 v14, 896, v3")
    A("v_lshl_add_u32 v12, v12, 4, v14")
    A("v_lshl_add_u32 v13, v13, 4, v14")
    A(f"s_lshl_b32 s{sA}, s{sHKV}, 9")
    A(f"s_mul_i32 s{sD}, s{sW}, 160")
    A(f"s_add_u32 s{sA}, s{sA}, s{sD}")
    A(f"s_mul_i32 s{sA}, s{sA}, 896")
    A(f"s_lshl_b32 s{sD}, s{sS}, 8")
    A(f"s_add_u32 s{sA}, s{sA}, s{sD}")
    A(f"s_mul_i32 s{sBq}, s{sW}, {40*1024}")
    for tt in range(40):
        if tt == 8:
            A(f"s_cmp_eq_u32 s{sW}, 3")
            A("s_cbranch_scc1 L_wodone")
        pace()
        if tt % 2 == 0: A(f"s_mov_b64 exec, s[{22 if (tt>>1)&1 else 20}:{23 if (tt>>1)&1 else 21}]")
        A(f"s_add_u32 m0, s{sBq}, {L_WO + tt*1024}")
        A(f"s_add_u32 s{sD}, s{sA}, {tt*4*896}")
        if not now: A(f"buffer_load_dwordx4 v{13 if (tt>>1)&1 else 12}, {sr(S_WO,4)}, s{sD} offen {wf} lds")
    A.lab("L_wodone")
    if touch:
        A("s_mov_b64 exec, 1")
        A(f"buffer_load_dword v14, v3, {sr(S_OUT,4)}, 0 offen")
    A("s_mov_b64 exec, -1")
    A("s_waitcnt vmcnt(0)")
    stamp(9)
    A(f"s_cmp_lg_u32 s{sW}, 3")
    A("s_cbranch_scc1 L_nostat")
    A(f"v_mov_b32 v12, {L_FLAG}")
    lds_wait(12, 13, 4, sleep=4)
    A("v_and_b32 v14, 1, v0")
    A("v_lshlrev_b32 v15, 3, v14")
    A(f"v_add_u32 v12, {L_STAT}, v15")
    for w in range(4): A(f"ds_read_b64 {vr(16+2*w,2)}, v12 offset:{w*16}")
    A("s_waitcnt lgkmcnt(0)")
    A("v_max_f32 v24, v16, v18")
    A("v_max3_f32 v24, v20, v22, v24")
    for w in range(4):
        A(f"v_sub_f32 v{28+w}, v{16+2*w}, v24")
        A(f"v_mul_f32 v{28+w}, s{sC}, v{28+w}")
        A(f"v_exp_f32 v{28+w}, v{28+w}")
    A("s_nop 0")
    A("v_mul_f32 v25, v28, v17")
    for w in range(1, 4): A(f"v_fma_f32 v25, v{28+w}, v{17+2*w}, v25")
    guard([24, 25])
    A(f"s_lshl_b32 s{sD}, s{sLID}, 7")
    A(f"s_add_u32 s{sD}, s{sD}, {WS_ML}")
    A("s_mov_b64 exec, 3")
    A(f"buffer_store_dwordx2 v[24:25], v15, {sr(S_WS,4)}, s{sD} offen sc1")
    A("s_mov_b64 exec, -1")
    for p in range(1, 4): A(f"s_xor_b32 s{20+p}, s{sD}, {p*128}")
    poll([f"buffer_load_dwordx2 {vr(32+2*(p-1),2)}, v15, {sr(S_WS,4)}, s{20+p} offen sc1" for p in range(1, 4)],
         range(32, 38), 12, spin)
    A("v_max_f32 v46, v24, v32")
    A("v_max3_f32 v46, v34, v36, v46")
    Ms = [24, 32, 34, 36]; Ls = [25, 33, 35, 37]
    for k in range(4):
        A(f"v_sub_f32 v{48+k}, v{Ms[k]}, v46")
        A(f"v_mul_f32 v{48+k}, s{sC}, v{48+k}")
        A(f"v_exp_f32 v{48+k}, v{48+k}")
    A("s_nop 0")
    A(f"v_mul_f32 v47, v48, v{Ls[0]}")
    for k in range(1, 4): A(f"v_fma_f32 v47, v{48+k}, v{Ls[k]}, v47")
    A("v_rcp_f32 v52, v47")
    A("s_nop 0")
    A("v_fma_f32 v53, -v47, v52, 1.0")
    A("v_fma_f32 v52, v53, v52, v52")
    for w in range(4):
        A(f"v_sub_f32 v{28+w}, v{16+2*w}, v46")
        A(f"v_mul_f32 v{28+w}, s{sC}, v{28+w}")
        A(f"v_exp_f32 v{28+w}, v{28+w}")
    A(f"v_mul_f32 v53, s{sC}, v46")
    A("v_sub_f32 v53, 0, v53")
    A("v_lshlrev_b32 v12, 2, v14")
    A(f"v_add_u32 v12, {L_F}, v12")
    for w in range(4): A(f"ds_write_b32 v12, v{28+w} offset:{w*8}")
    A("ds_write_b32 v12, v53 offset:32")
    A("ds_write_b32 v12, v52 offset:40")
    A(f"v_mov_b32 v12, {L_FLAG+4}")
    lds_inc(12, 13)
    A("s_waitcnt lgkmcnt(0)")
    A.lab("L_nostat")
    stamp(10)
    A("v_cmp_gt_u32 vcc, 56, v0")
    A("v_mov_b32 v11, 1.0")
    A("v_lshlrev_b32 v70, 16, v64")
    A("v_cndmask_b32 v11, 0, v11, vcc")
    A("v_and_b32 v71, 0xffff0000, v64")
    A("v_lshlrev_b32 v72, 16, v65")
    A("v_and_b32 v73, 0xffff0000, v65")
    A("v_lshlrev_b32 v74, 16, v66")
    A("v_and_b32 v75, 0xffff0000, v66")
    A("v_lshlrev_b32 v76, 16, v67")
    A("v_and_b32 v77, 0xffff0000, v67")
    A("v_lshlrev_b32 v78, 16, v68")
    A("v_and_b32 v79, 0xffff0000, v68")
    class skipdry:
        def __enter__(self):
            if dry:
                self.lab = A.newlab("L_sk")
                A(f"s_cmp_lg_u32 s{sDRY}, 0")
                A(f"s_cbranch_scc1 {self.lab}")
        def __exit__(self, *a):
            if dry: A.lab(self.lab)
    def tbar():
        with skipdry(): A("s_barrier")
    if dry:
        A(f"s_cmp_eq_u32 s{sW}, 0")
        A(f"s_cselect_b32 s{sDRY}, 1, 0")
    A.lab("L_tail")
    A(f"v_mov_b32 v12, {L_FLAG+4}")
    with skipdry():
        lds_wait(12, 13, 1, sleep=8)
    A(f"s_lshr_b32 s{sA}, s{sW}, 1")
    A(f"s_lshl_b32 s{sA}, s{sA}, 2")
    A(f"s_add_u32 s{sA}, s{sA}, {L_F}")
    A(f"v_mov_b32 v12, s{sA}")
    A("ds_read_b32 v64, v12 offset:40")
    A("v_and_b32 v14, 31, v0")
    A("v_lshlrev_b32 v14, 4, v14")
    A(f"s_lshl_b32 s{sA}, s{sW}, 9")
    A("v_lshrrev_b32 v13, 5, v0")
    A("v_lshl_add_u32 v12, v13, 12, v14")
    A(f"s_add_u32 s{sD}, s{sA}, {L_PART}")
    A(f"v_add_u32 v12, s{sD}, v12")
    A(f"s_lshl_b32 s{sD}, s{sLID}, 11")
    A(f"s_add_u32 s{sD}, s{sD}, {WS_OB1}")
    A(f"s_add_u32 s{sD}, s{sD}, s{sA}")
    A(f"s_and_b32 s{sBq}, s{sLID}, 3")
    A(f"s_xor_b32 s20, s{sBq}, 1")
    A(f"s_xor_b32 s21, s{sBq}, 2")
    A(f"s_xor_b32 s22, s{sBq}, 3")
    for k in range(3): A(f"s_lshl_b32 s{20+k}, s{20+k}, 11")
    A("v_cmp_eq_u32 vcc, 0, v13")
    A("v_mov_b32 v16, s20")
    A("v_mov_b32 v17, s21")
    A("v_mov_b32 v18, s22")
    A("v_cndmask_b32 v16, v18, v16, vcc")
    A("v_add_u32 v65, v16, v14")
    A("v_add_u32 v66, v17, v14")
    A(f"s_andn2_b32 s{sBq}, s{sD}, 0x1800")
    A("v_lshrrev_b32 v15, 1, v14")
    A(f"s_lshl_b32 s{sA}, s{sW}, 8")
    A(f"s_add_u32 s{sA}, s{sA}, {L_OBF}")
    A(f"v_add_u32 v15, s{sA}, v15")
    A("s_waitcnt lgkmcnt(0)")
    tbar()
    stamp(1)
    A("ds_read_b128 v[16:19], v12")
    A("ds_read_b128 v[20:23], v12 offset:2048")
    A("s_waitcnt lgkmcnt(0)")
    for k in range(4): A(f"v_add_f32 v{16+k}, v{16+k}, v{20+k}")
    for k in range(4): A(f"v_mov_b32 v{20+k}, v{16+k}")
    A("s_nop 0")
    for k in range(4): A(f"v_permlane32_swap_b32 v{16+k}, v{20+k}")
    A("s_nop 0")
    for k in range(4): A(f"v_add_f32 v{24+k}, v{16+k}, v{20+k}")
    guard(range(24, 28))
    with skipdry():
        A("s_mov_b32 exec_hi, 0")
        A(f"buffer_store_dwordx4 v[24:27], v14, {sr(S_WS,4)}, s{sD} offen sc1")
        A("s_mov_b64 exec, -1")

    A.lab("L_t3pre")
    A("v_lshrrev_b32 v4, 2, v2")
    A("v_and_b32 v5, 1, v3")
    A("v_lshl_or_b32 v5, v5, 2, v4")
    A(f"v_xor_b32 v5, s{sWAVE}, v5")
    A("v_lshlrev_b32 v5, 5, v5")
    A("v_and_b32 v6, 3, v2")
    A("v_lshl_add_u32 v5, v6, 3, v5")
    A("v_lshl_add_u32 v4, v3, 3, v4")
    A("v_lshl_add_u32 v5, v4, 8, v5")
    A("v_add_u32 v6, 0x10000, v5")
    for ks in range(16):
        b = 5 if ks < 8 else 6
        A(f"ds_read_b64_tr_b16 {vr(vY+4*ks,2)}, v{b} offset:{(ks%8)*8192}")
        A(f"ds_read_b64_tr_b16 {vr(vY+4*ks+2,2)}, v{b} offset:{(ks%8)*8192 + 1024}")
        if ks % 6 == 5: A("s_waitcnt lgkmcnt(2)")
    A("v_lshlrev_b32 v7, 4, v3")
    A(f"v_add_u32 v4, {L_OBF}, v7")
    A(f"s_lshl_b32 s{sT1}, s{sLID}, 9")
    A(f"s_add_u32 s{sT1}, s{sT1}, {WS_OB2}")
    A(f"s_lshl_b32 s{sT2}, s{sWAVE}, 6")
    A(f"s_add_u32 s{sT1}, s{sT1}, s{sT2}")
    A("s_mov_b32 s26, 0x00010001")
    A("s_mov_b32 s27, 0x00010001")
    A(f"s_cmp_ge_u32 s{sWAVE}, 4")
    A("s_cbranch_scc1 L_t3")
    for k in range(4): A(f"v_mov_b32 v{vX+4+k}, 0")
    if ack: A("s_waitcnt vmcnt(0)")
    with skipdry():
        poll([f"buffer_load_dwordx4 {vr(vX,4)}, v65, {sr(S_WS,4)}, s{sBq} offen sc1",
              "s_mov_b32 exec_hi, 0",
              f"buffer_load_dwordx4 {vr(vX+4,4)}, v66, {sr(S_WS,4)}, s{sBq} offen sc1",
              "s_mov_b64 exec, -1"], range(vX, vX + 8), 12, spin)
    stamp(2)
    for k in range(4): A(f"v_add_f32 v{16+k}, v{vX+k}, v{vX+4+k}")
    for k in range(4): A(f"v_mov_b32 v{20+k}, v{16+k}")
    A("s_nop 0")
    for k in range(4): A(f"v_permlane32_swap_b32 v{16+k}, v{20+k}")
    for k in range(4): A(f"v_add_f32 v{24+k}, v{24+k}, v{16+k}")
    for k in range(4): A(f"v_add_f32 v{24+k}, v{24+k}, v{20+k}")
    for k in range(4): A(f"v_mul_f32 v{24+k}, v{24+k}, v64")
    A("v_cvt_pk_bf16_f32 v24, v24, v25")
    A("v_cvt_pk_bf16_f32 v25, v26, v27")
    A("ds_write_b64 v15, v[24:25]")
    A.lab("L_t3")
    A("s_waitcnt lgkmcnt(0)")
    tbar()
    for ks in range(8): A(f"ds_read_b128 {vr(vX+4*ks,4)}, v4 offset:{ks*64}")
    for ks in range(16):
        A(f"s_waitcnt lgkmcnt({min(7, 15-ks)})")
        c = "0" if ks == 0 else "v[16:19]"
        A(f"v_mfma_f32_16x16x32_bf16 v[16:19], {vr(vY+4*ks,4)}, {vr(vX+4*(ks%8),4)}, {c}")
        if ks < 8: A(f"ds_read_b128 {vr(vX+4*ks,4)}, v4 offset:{(ks+8)*64}")
    A("s_mov_b64 exec, s[26:27]")
    A("s_nop 6")
    guard(range(16, 20))
    with skipdry():
        A(f"buffer_store_dwordx4 v[16:19], v7, {sr(S_WS,4)}, s{sT1} offen sc1")
    A("s_mov_b64 exec, -1")
    stamp(8, 't')
    A(f"s_cmp_ge_u32 s{sWAVE}, 4")
    A("s_cbranch_scc1 L_send")
    A(f"s_cmp_ge_u32 s{sF}, 28")
    A("s_cbranch_scc1 L_fin")
    A("v_lshl_add_u32 v12, v13, 13, v14")
    A(f"s_lshl_b32 s{sD}, s{sB}, 5")
    A(f"s_add_u32 s{sD}, s{sD}, s{sW}")
    A(f"s_lshl_b32 s{sD}, s{sD}, 9")
    A(f"s_add_u32 s{sD}, s{sD}, {WS_OB2}")
    A(f"s_add_u32 s{sBq}, s{sD}, 4096")
    A("v_lshrrev_b32 v15, 1, v14")
    A(f"s_lshl_b32 s{sA}, s{sW}, 8")
    A(f"s_add_u32 s{sA}, s{sA}, {L_H}")
    A(f"v_add_u32 v15, s{sA}, v15")
    A("v_lshlrev_b32 v10, 4, v0")
    A(f"s_lshl_b32 s{sA}, s{sW}, 10")
    A(f"s_add_u32 s{sA}, s{sA}, {L_XN2}")
    A(f"v_add_u32 v4, s{sA}, v10")
    A(f"v_add_u32 v10, {L_H}, v10")
    A(f"v_add_u32 v6, {L_R2}, v7")
    A(f"v_add_u32 v5, s{sA}, v7")
    A("v_lshl_add_u32 v8, v2, 6, v7")
    A("v_lshlrev_b32 v7, 3, v3")
    A(f"s_lshl_b32 s{sA}, s{sW}, 5")
    A(f"s_add_u32 s{sA}, s{sA}, {L_R2}")
    A(f"v_add_u32 v7, s{sA}, v7")
    for k in range(56): A(f"v_mov_b32 v{vY+k}, 0")
    if ack: A("s_waitcnt vmcnt(0)")
    with skipdry():
        poll([f"buffer_load_dwordx4 {vr(vX,4)}, v12, {sr(S_WS,4)}, s{sD} offen sc1",
              f"buffer_load_dwordx4 {vr(vX+4,4)}, v12, {sr(S_WS,4)}, s{sD} offen offset:2048 sc1",
              f"buffer_load_dwordx4 {vr(vX+8,4)}, v12, {sr(S_WS,4)}, s{sBq} offen sc1",
              f"buffer_load_dwordx4 {vr(vX+12,4)}, v12, {sr(S_WS,4)}, s{sBq} offen offset:2048 sc1"],
             range(vX, vX + 16), 16, spin)
    stamp(3)
    for k in range(4): A(f"v_add_f32 v{16+k}, v{vX+k}, v{vX+4+k}")
    for k in range(4): A(f"v_add_f32 v{20+k}, v{vX+8+k}, v{vX+12+k}")
    for k in range(4): A(f"v_add_f32 v{16+k}, v{16+k}, v{20+k}")
    for k in range(4): A(f"v_mov_b32 v{20+k}, v{16+k}")
    A("s_nop 0")
    for k in range(4): A(f"v_permlane32_swap_b32 v{16+k}, v{20+k}")
    A("s_nop 0")
    for k in range(4): A(f"v_add_f32 v{16+k}, v{16+k}, v{20+k}")
    A("v_cvt_pk_bf16_f32 v20, v16, v17")
    A("v_cvt_pk_bf16_f32 v21, v18, v19")
    A("v_lshlrev_b32 v16, 16, v20")
    A("v_and_b32 v17, 0xffff0000, v20")
    A("v_lshlrev_b32 v18, 16, v21")
    A("v_and_b32 v19, 0xffff0000, v21")
    for k in range(4): A(f"v_add_f32 v{16+k}, v{16+k}, v{70+k}")
    A("v_cvt_pk_bf16_f32 v20, v16, v17")
    A("v_cvt_pk_bf16_f32 v21, v18, v19")
    A("ds_write_b64 v15, v[20:21]")
    for k in range(4): A(f"v_mov_b32 v{16+k}, 0")
    A("s_waitcnt lgkmcnt(0)")
    tbar()
    A("s_mov_b32 exec_hi, 0x00ffffff")
    A("ds_read_b128 v[16:19], v10")
    A("s_mov_b64 exec, -1")
    A("s_waitcnt lgkmcnt(0)")
    layernorm(16, 8, 20, 32, 28, 11, True)
    A("ds_write_b128 v4, v[16:19]")
    A("s_waitcnt lgkmcnt(0)")
    stamp(5, 't')
    for ks in range(8): A(f"ds_read_b128 {vr(vX+4*ks,4)}, v5 offset:{ks*64}")
    for ks in range(14):
        nout = min(14, ks + 8) - ks - 1
        A(f"s_waitcnt lgkmcnt({nout})")
        c = "0" if ks == 0 else "v[16:19]"
        A(f"v_mfma_f32_16x16x32_bf16 v[16:19], {vr(vW1+4*ks,4)}, {vr(vX+4*(ks%8),4)}, {c}")
        if ks + 8 < 14: A(f"ds_read_b128 {vr(vX+4*ks,4)}, v5 offset:{(ks+8)*64}")
    A(f"s_lshl_b32 s{sD}, s{sB}, 5")
    A(f"s_add_u32 s{sD}, s{sD}, s{sF}")
    A(f"s_lshl_b32 s{sD}, s{sD}, 11")
    A(f"s_add_u32 s{sD}, s{sD}, {WS_OB3}")
    A(f"s_mul_i32 s{sA}, s{sW}, 448")
    A(f"s_add_u32 s{sD}, s{sD}, s{sA}")
    A("s_mov_b32 s24, 0x007f007f")
    A("s_mov_b32 s25, 0x007f007f")
    A("v_cvt_pk_bf16_f32 v20, v16, v17")
    A("v_cvt_pk_bf16_f32 v21, v18, v19")
    A("v_lshlrev_b32 v16, 16, v20")
    A("v_and_b32 v17, 0xffff0000, v20")
    A("v_lshlrev_b32 v18, 16, v21")
    A("v_and_b32 v19, 0xffff0000, v21")
    for k in range(4): A(f"v_add_f32 v{16+k}, v{16+k}, v{74+k}")
    A("v_cvt_pk_bf16_f32 v20, v16, v17")
    A("v_cvt_pk_bf16_f32 v21, v18, v19")
    A("v_lshlrev_b32 v16, 16, v20")
    A("v_and_b32 v17, 0xffff0000, v20")
    A("v_lshlrev_b32 v18, 16, v21")
    A("v_and_b32 v19, 0xffff0000, v21")
    for k in range(4): A(f"v_max_f32 v{16+k}, 0, v{16+k}")
    for k in range(4): A(f"v_mul_f32 v{16+k}, v{16+k}, v{16+k}")
    A("v_cvt_pk_bf16_f32 v20, v16, v17")
    A("v_cvt_pk_bf16_f32 v21, v18, v19")
    A("ds_write_b64 v7, v[20:21]")
    A("s_waitcnt lgkmcnt(0)")
    tbar()
    stamp(6, 't')
    for j in range(7):
        A(f"s_lshl_b64 exec, s[26:27], {j}")
        for ks in range(2):
            A(f"ds_read_b128 {vr(vY+4*(2*j+ks),4)}, v6 offset:{ks*64}")
    A("s_mov_b64 exec, -1")
    for q in range(14):
        A(f"s_waitcnt lgkmcnt({13-q})")
        c = "0" if q == 0 else "v[16:19]"
        A(f"v_mfma_f32_16x16x32_bf16 v[16:19], {vr(vW2+4*q,4)}, {vr(vY+4*q,4)}, {c}")
    A("s_mov_b64 exec, s[24:25]")
    A("s_nop 6")
    guard(range(16, 20))
    with skipdry():
        A(f"buffer_store_dwordx4 v[16:19], v8, {sr(S_WS,4)}, s{sD} offen sc1")
    A("s_mov_b64 exec, -1")
    stamp(7, 't')
    A(f"s_cmp_lg_u32 s{sW}, 0")
    A("s_cbranch_scc1 L_fin")
    A("v_lshrrev_b32 v12, 3, v0")
    A("v_lshlrev_b32 v12, 11, v12")
    A("v_and_b32 v13, 7, v0")
    A("v_lshl_add_u32 v12, v13, 3, v12")
    A(f"s_lshl_b32 s{sD}, s{sB}, 16")
    A(f"s_add_u32 s{sD}, s{sD}, {WS_OB3}")
    A(f"s_lshl_b32 s{sA}, s{sF}, 6")
    A(f"s_add_u32 s{sD}, s{sD}, s{sA}")
    for k in range(4): A(f"s_add_u32 s{20+k}, s{sD}, {k*16384}")
    A(f"v_mov_b32 v{vX+6}, 0")
    A(f"v_mov_b32 v{vX+7}, 0")
    A("v_lshlrev_b32 v13, 2, v13")
    A(f"s_lshl_b32 s{sA}, s{sF}, 5")
    A(f"s_add_u32 s{sBq}, s{sA}, {L_H}")
    A(f"v_add_u32 v14, s{sBq}, v13")
    A("ds_read_b32 v28, v14")
    A(f"s_mul_i32 s{sD}, s{sB}, 896")
    A(f"s_add_u32 s{sD}, s{sD}, s{sA}")
    A("s_waitcnt lgkmcnt(0)")
    A("v_lshlrev_b32 v29, 16, v28")
    A("v_and_b32 v28, 0xffff0000, v28")
    if ack: A("s_waitcnt vmcnt(0)")
    loads = [f"buffer_load_dwordx2 {vr(vX+2*k,2)}, v12, {sr(S_WS,4)}, s{20+k} offen sc1" for k in range(3)]
    loads += ["s_mov_b32 exec_hi, 0",
              f"buffer_load_dwordx2 {vr(vX+6,2)}, v12, {sr(S_WS,4)}, s23 offen sc1",
              "s_mov_b64 exec, -1"]
    with skipdry():
        poll(loads, range(vX, vX + 8), 15, spin)
    stamp(4)
    A(f"v_add_f32 v16, v{vX}, v{vX+2}")
    A(f"v_add_f32 v18, v{vX+1}, v{vX+3}")
    A(f"v_add_f32 v17, v{vX+4}, v{vX+6}")
    A(f"v_add_f32 v19, v{vX+5}, v{vX+7}")
    A("v_add_f32 v16, v16, v17")
    A("v_add_f32 v18, v18, v19")
    A("s_nop 0")
    A(f"v_add_f32_dpp v16, v16, v16 row_ror:8 {DPPM}")
    A(f"v_add_f32_dpp v18, v18, v18 row_ror:8 {DPPM}")
    for sw in ("v_permlane16_swap_b32", "v_permlane32_swap_b32"):
        A("v_mov_b32 v17, v16")
        A("v_mov_b32 v19, v18")
        A("s_nop 1")
        A(f"{sw} v16, v17")
        A(f"{sw} v18, v19")
        A("s_nop 1")
        A("v_add_f32 v16, v16, v17")
        A("v_add_f32 v18, v18, v19")
    A("v_cvt_pk_bf16_f32 v16, v16, v18")
    A("v_lshlrev_b32 v17, 16, v16")
    A("v_and_b32 v16, 0xffff0000, v16")
    A("v_add_f32 v17, v17, v78")
    A("v_add_f32 v16, v16, v79")
    A("v_cvt_pk_bf16_f32 v16, v17, v16")
    A("v_lshlrev_b32 v17, 16, v16")
    A("v_and_b32 v16, 0xffff0000, v16")
    A("v_add_f32 v17, v17, v29")
    A("v_add_f32 v16, v16, v28")
    A("v_cvt_pk_bf16_f32 v16, v17, v16")
    A("s_mov_b64 exec, 0xff")
    with skipdry():
        A(f"buffer_store_dword v16, v13, {sr(S_OUT,4)}, s{sD} offen")
    A("s_mov_b64 exec, -1")
    A.lab("L_fin")
    if dry:
        A(f"s_cmp_eq_u32 s{sDRY}, 0")
        A("s_cbranch_scc1 L_fin2")
        A(f"s_mov_b32 s{sDRY}, 0")
        A("s_waitcnt lgkmcnt(0)")
        A("s_branch L_tail")
        A.lab("L_fin2")
    if stamps:
        A("s_waitcnt vmcnt(0)")
        stamp(11)
        dump_stamps(12)
        A("s_endpgm")
    A.lab("L_send")
    if stamps:
        dump_stamps(11)
    A.lab("L_end")
    A("s_endpgm")

    tail = []
    tail.append('.section .rodata,"a"')
    tail.append(".p2align 6")
    tail.append(f".amdhsa_kernel {KN}")
    tail.append("  .amdhsa_next_free_vgpr 256")
    tail.append("  .amdhsa_next_free_sgpr 102")
    tail.append("  .amdhsa_accum_offset 256")
    tail.append("  .amdhsa_group_segment_fixed_size 0")
    tail.append("  .amdhsa_kernarg_size 104")
    tail.append("  .amdhsa_user_sgpr_count 2")
    tail.append("  .amdhsa_user_sgpr_kernarg_segment_ptr 1")
    tail.append("  .amdhsa_system_sgpr_workgroup_id_x 1")
    tail.append("  .amdhsa_float_denorm_mode_32 3")
    tail.append(".end_amdhsa_kernel")
    return "\n".join(hdr + A.L + tail) + "\n"

if __name__ == "__main__":
    kw = eval("dict(%s)" % (sys.argv[2] if len(sys.argv) > 2 else ""))
    open(sys.argv[1], "w").write(gen(**kw))
```

```python
import sys, struct

KN = "sequential_preLN__gqa_block_cached__dense_activation_squared_relu__decode_kernel"

def f32(x):
    return struct.unpack("<I", struct.pack("<f", x))[0]

TAG = 0x5A17C0DE
LOG2E_16 = 1.4426950408889634 / 16.0

WS_Q = 0x0
WS_OB1 = 0x10000
WS_ML = 0x90000
WS_OB2 = 0xA0000
WS_OB3 = 0xC0000
WS_SC = 0x140000
WS_ST = 0x600000
WS_SIZE = 0x800000

L_WO = 0
L_W1S = 0
L_W2S = 65536
L_WQ = 0
L_XN = 16384
L_S = 131072
L_QF = L_S
L_PART = L_S + 1024
L_STAT = L_S + 9216
L_F = L_S + 9280
L_FLAG = L_S + 9344
L_OBF = L_S + 9472
L_H = L_S + 10496
L_XN2 = L_S + 11520
L_R2 = L_S + 15616
LDS_SIZE = L_S + 15872

class G:
    def __init__(self):
        self.L = []
        self.nlab = 0
    def __call__(self, s):
        self.L.append("  " + s)
    def lab(self, name):
        self.L.append(name + ":")
    def newlab(self, p="L"):
        self.nlab += 1
        return f"{p}_{self.nlab}"
    def c(self, s):
        self.L.append("  ; " + s)

def vr(a, n=1):
    return f"v{a}" if n == 1 else f"v[{a}:{a+n-1}]"
def sr(a, n=1):
    return f"s{a}" if n == 1 else f"s[{a}:{a+n-1}]"

DPPM = "row_mask:0xf bank_mask:0xf"

def gen(RG0=20, RS=6, stamps=False, spin=1 << 20, dry=False, wpace=6, PP=4, E=8, now=0, kf='nt', vf='nt', wf='', LAG=None, D=3, NPOOL=8, mix=1, ack=1, RSP=4, nowq=0, noext=0, touch=0, dbgt=0):
    A = G()
    hdr = []
    hdr.append(f"; @launch grid=(256,1,1) block=(512,1,1) lds={LDS_SIZE}")
    hdr.append('.amdgcn_target "amdgcn-amd-amdhsa--gfx950"')
    hdr.append(".text")
    hdr.append(f".globl {KN}")
    hdr.append(".p2align 8")
    hdr.append(f".type {KN},@function")
    hdr.append(f"{KN}:")

    S_K, S_V, S_X, S_WQ, S_WO, S_W1, S_B1, S_W2, S_B2, S_OUT, S_DBG, S_WS = [44 + 4 * i for i in range(12)]
    sWAVE = 3
    sHKV, sB, sS, sLID, sI = 4, 5, 6, 7, 8
    sSPIN, sT1, sT2, sDRY = 9, 10, 11, 12
    sF, sC, sCNT = 13, 14, 15
    sA, sBq, sCq, sD = 16, 17, 18, 19
    sEX = 42
    sST = 92

    def slot(idx):
        return sST + 2 * idx if idx < 5 else 28 + 2 * (idx - 5)
    def stamp(idx, grp=None):
        if stamps and (grp is None or grp == stamps):
            A(f"s_memrealtime s[{slot(idx)}:{slot(idx)+1}]")
    def dump_stamps(n):
        A("s_waitcnt lgkmcnt(0)")
        A(f"s_lshl_b32 s{sT1}, s2, 3")
        A(f"s_add_u32 s{sT1}, s{sT1}, s{sWAVE}")
        A(f"s_lshl_b32 s{sT1}, s{sT1}, 6")
        A(f"s_add_u32 s{sT1}, s{sT1}, {WS_ST}")
        A("v_mov_b32 v20, 0")
        A("v_cmp_eq_u32 vcc, 0, v0")
        A(f"s_and_saveexec_b64 s[{sEX}:{sEX+1}], vcc")
        for k in range(n):
            A(f"v_mov_b32 v21, s{slot(k)}")
            A(f"buffer_store_dword v21, v20, {sr(S_WS,4)}, s{sT1} offen offset:{4*k}")

    def srd(dst, ptr, size):
        A(f"s_mov_b32 s{dst}, s{ptr}")
        A(f"s_mov_b32 s{dst+1}, s{ptr+1}")
        A(f"s_mov_b32 s{dst+2}, {hex(size)}")
        A(f"s_mov_b32 s{dst+3}, 0x20000")

    def rbf(v):
        A(f"v_cvt_pk_bf16_f32 v{v}, v{v}, v{v}")
        A(f"v_and_b32 v{v}, 0xffff0000, v{v}")

    def reduce_lanes(v, t, full, op="add"):
        for m in ("quad_perm:[1,0,3,2]", "quad_perm:[2,3,0,1]", "row_half_mirror", "row_mirror"):
            A("s_nop 1")
            A(f"v_{op}_f32_dpp v{v}, v{v}, v{v} {m} {DPPM}")
        sw = ["v_permlane16_swap_b32"] + (["v_permlane32_swap_b32"] if full else [])
        for s_ in sw:
            A(f"v_mov_b32 v{t}, v{v}")
            A("s_nop 1")
            A(f"{s_} v{v}, v{t}")
            A("s_nop 1")
            A(f"v_{op}_f32 v{v}, v{v}, v{t}")

    def tree_add(dst, regs, tmp):
        cur = list(regs); k = 0
        while len(cur) > 1:
            nxt = []
            for a in range(0, len(cur) - 1, 2):
                d = dst if len(cur) == 2 else tmp + k
                if len(cur) != 2: k += 1
                A(f"v_add_f32 v{d}, v{cur[a]}, v{cur[a+1]}")
                nxt.append(d)
            if len(cur) & 1: nxt.append(cur[-1])
            cur = nxt

    def div448(v, t):
        A(f"v_mul_f32 v{t}, {hex(f32(1.0/448.0))}, v{v}")
        A(f"v_fma_f32 v{v}, v{t}, s{sT2}, v{v}")
        A(f"v_fma_f32 v{v}, v{v}, s{sT1}, v{t}")

    def layernorm(src, E, f, d, t, vvalid, full):
        A(f"s_mov_b32 s{sT1}, {hex(f32(1.0/448.0))}")
        A(f"s_mov_b32 s{sT2}, {hex(f32(-448.0))}")
        for k in range(E // 2):
            A(f"v_lshlrev_b32 v{f+2*k}, 16, v{src+k}")
            A(f"v_and_b32 v{f+2*k+1}, 0xffff0000, v{src+k}")
        tree_add(t, range(f, f + E), d)
        reduce_lanes(t, t + 1, full)
        div448(t, t + 1)
        for k in range(E): A(f"v_sub_f32 v{d+k}, v{f+k}, v{t}")
        for k in range(E // 2): A(f"v_mul_f32 v{d+k}, v{d+k}, v{d+k}")
        for k in range(E // 2): A(f"v_fma_f32 v{d+k}, v{d+E//2+k}, v{d+E//2+k}, v{d+k}")
        tree_add(t + 2, range(d, d + E // 2), d + E // 2)
        A(f"v_cvt_pk_bf16_f32 v{t}, v{t}, v{t}")
        A(f"v_mul_f32 v{t+2}, v{t+2}, v{vvalid}")
        A(f"v_and_b32 v{t}, 0xffff0000, v{t}")
        fill = [f"v_sub_f32 v{f+k}, v{f+k}, v{t}" for k in range(E)]
        fill += [f"v_cvt_pk_bf16_f32 v{src+k}, v{f+2*k}, v{f+2*k+1}" for k in range(E // 2)]
        for k in range(E // 2):
            fill.append(f"v_lshlrev_b32 v{f+2*k}, 16, v{src+k}")
            fill.append(f"v_and_b32 v{f+2*k+1}, 0xffff0000, v{src+k}")
        def F(n):
            for _ in range(n):
                if fill: A(fill.pop(0))
                else: A("s_nop 0")
        v = t + 2
        for m in ("quad_perm:[1,0,3,2]", "quad_perm:[2,3,0,1]", "row_half_mirror", "row_mirror"):
            F(2)
            A(f"v_add_f32_dpp v{v}, v{v}, v{v} {m} {DPPM}")
        sw = ["v_permlane16_swap_b32"] + (["v_permlane32_swap_b32"] if full else [])
        for s_ in sw:
            A(f"v_mov_b32 v{t+1}, v{v}")
            F(2)
            A(f"{s_} v{v}, v{t+1}")
            F(2)
            A(f"v_add_f32 v{v}, v{v}, v{t+1}")
        div448(v, t + 1)
        rbf(v)
        A(f"v_add_f32 v{v}, {hex(f32(1e-5))}, v{v}")
        rbf(v)
        A(f"v_sqrt_f32 v{v}, v{v}")
        F(1)
        rbf(v)
        A(f"v_rcp_f32 v{v}, v{v}")
        while fill: A(fill.pop(0))
        A("s_nop 0")
        for k in range(E): A(f"v_mul_f32 v{f+k}, v{f+k}, v{v}")
        for k in range(E // 2):
            A(f"v_cvt_pk_bf16_f32 v{src+k}, v{f+2*k}, v{f+2*k+1}")

    def lds_wait(addr_v, tmp, target, sleep=2):
        lp = A.newlab("L_lw"); dn = A.newlab("L_lwd")
        A(f"s_mov_b32 s{sCNT}, {spin}")
        A.lab(lp)
        A(f"ds_read_b32 v{tmp}, v{addr_v}")
        A("s_waitcnt lgkmcnt(0)")
        A(f"v_cmp_gt_u32 vcc, {target}, v{tmp}")
        A(f"s_cbranch_vccz {dn}")
        if sleep: A(f"s_sleep {sleep}")
        A(f"s_sub_u32 s{sCNT}, s{sCNT}, 1")
        A(f"s_cmp_lg_u32 s{sCNT}, 0")
        A(f"s_cbranch_scc1 {lp}")
        A.lab(dn)

    def lds_inc(addr_v, tmp):
        A(f"v_mov_b32 v{tmp}, 1")
        A("s_mov_b64 exec, 1")
        A(f"ds_add_u32 v{addr_v}, v{tmp}")
        A("s_mov_b64 exec, -1")

    def poll(loads, regs, t0, cnt_src):
        lp = A.newlab("L_p"); dn = A.newlab("L_pd")
        A(f"s_mov_b32 s{sCNT}, {cnt_src}")
        A.lab(lp)
        for x in loads: A(x)
        A("s_waitcnt vmcnt(0)")
        regs = list(regs)
        if len(regs) == 1:
            A(f"v_cmp_eq_u32 vcc, -1, v{regs[0]}")
        else:
            if len(regs) == 2:
                A(f"v_max_u32 v{t0}, v{regs[0]}, v{regs[1]}"); rest = []
            else:
                A(f"v_max3_u32 v{t0}, v{regs[0]}, v{regs[1]}, v{regs[2]}"); rest = regs[3:]
            while rest:
                if len(rest) >= 2:
                    A(f"v_max3_u32 v{t0}, v{t0}, v{rest[0]}, v{rest[1]}"); rest = rest[2:]
                else:
                    A(f"v_max_u32 v{t0}, v{t0}, v{rest[0]}"); rest = rest[1:]
            A(f"v_cmp_eq_u32 vcc, -1, v{t0}")
        A(f"s_cbranch_vccz {dn}")
        A(f"s_sub_u32 s{sCNT}, s{sCNT}, 1")
        A(f"s_cmp_lg_u32 s{sCNT}, 0")
        A(f"s_cbranch_scc1 {lp}")
        A.lab(dn)
    def guard(regs):
        for r in regs: A(f"v_min_u32 v{r}, -2, v{r}")

    A("s_cmp_ge_u32 s2, 256")
    A("s_cbranch_scc1 L_end")
    A("s_load_dwordx16 s[16:31], s[0:1], 0")
    A("s_load_dwordx8 s[32:39], s[0:1], 64")
    A("s_load_dwordx2 s[40:41], s[0:1], 96")
    stamp(0)
    A("v_lshrrev_b32 v1, 6, v0")
    A("v_and_b32 v0, 63, v0")
    A(f"v_readfirstlane_b32 s{sWAVE}, v1")
    A(f"s_lshr_b32 s{sT1}, s2, 3")
    A(f"s_lshr_b32 s{sB}, s{sT1}, 2")
    A(f"s_and_b32 s{sS}, s{sT1}, 3")
    if mix:
        A(f"s_add_u32 s{sT2}, s{sS}, 1")
        A(f"s_mul_i32 s{sT2}, s{sT2}, s{sS}")
        A(f"s_lshr_b32 s{sT2}, s{sT2}, 1")
        A(f"s_sub_u32 s{sHKV}, s2, s{sT2}")
        A(f"s_and_b32 s{sHKV}, s{sHKV}, 7")
    else:
        A(f"s_and_b32 s{sHKV}, s2, 7")
    A(f"s_lshl_b32 s{sI}, s{sHKV}, 2")
    A(f"s_add_u32 s{sI}, s{sI}, s{sS}")
    A(f"s_lshl_b32 s{sLID}, s{sB}, 5")
    A(f"s_add_u32 s{sLID}, s{sLID}, s{sI}")
    A(f"s_add_u32 s{sF}, s{sI}, 3")
    A(f"s_lshr_b32 s{sF}, s{sF}, 3")
    A(f"s_sub_u32 s{sF}, s{sI}, s{sF}")
    A(f"s_and_b32 s{sT2}, s{sI}, 7")
    A(f"s_cmp_eq_u32 s{sT2}, 4")
    A(f"s_cselect_b32 s{sF}, 99, s{sF}")
    A(f"s_mov_b32 s{sC}, {hex(f32(LOG2E_16))}")
    A(f"s_mov_b32 s{sDRY}, 0")
    A("v_and_b32 v2, 15, v0")
    A("v_lshrrev_b32 v3, 4, v0")
    A(f"s_cmp_lt_u32 s{sWAVE}, 4")
    A("s_cbranch_scc1 L_helper")

    vOFF = 1
    vMAX, vL, vNMC = 11, 12, 13
    vT = 14
    vQ = 16
    vO = 32
    vA = 40
    vU = 48
    vSC = 56
    vP = 88
    vRING = 96
    sW = 9
    sBASE, sOFF, sSEL0, sSEL1 = 22, 23, 24, 25
    A.c("stream wave")
    A(f"s_sub_u32 s{sW}, s{sWAVE}, 4")
    A(f"s_lshl_b32 s{sT1}, s{sB}, 3")
    A(f"s_add_u32 s{sT1}, s{sT1}, s{sHKV}")
    A(f"s_lshl_b32 s{sT1}, s{sT1}, 21")
    A(f"s_lshl_b32 s{sT2}, s{sS}, 19")
    A(f"s_add_u32 s{sT1}, s{sT1}, s{sT2}")
    A(f"s_lshl_b32 s{sT2}, s{sW}, 11")
    A(f"s_add_u32 s{sCNT}, s{sT1}, s{sT2}")
    A(f"v_lshlrev_b32 v{vOFF}, 9, v3")
    A(f"v_lshl_add_u32 v{vOFF}, v2, 4, v{vOFF}")
    A("s_waitcnt lgkmcnt(0)")
    srd(S_K, 18, 0x8000000)
    srd(S_V, 20, 0x8000000)
    A(f"s_mov_b32 s{sBASE}, s{sCNT}")

    NG = 64
    NST = 2 * NG - 2 * NPOOL
    vmlog = []
    def after_n(key):
        idx = max(k for k, v in enumerate(vmlog) if v == key)
        return min(63, len(vmlog) - 1 - idx)
    issued = [0]
    L_EXT = 131072 - 4 * E * 2048
    sEXT = 21
    def is_ext(j): return RG0 <= j < RG0 + E
    def slot_of(j):
        assert not is_ext(j)
        return vRING + 8 * ((j if j < RG0 else j - E) % RG0)
    def issue(j):
        s = S_K if j < NG else S_V
        off = (j % NG) * 8192
        out = []
        fl = kf if j < NG else vf
        out.append(f"s_add_u32 s{sOFF}, s{sBASE}, {off}")
        if is_ext(j):
            e = j - RG0
            out.append(f"s_add_u32 m0, s{sEXT}, {e*2048}")
            out.append("s_nop 0")
            out.append(f"buffer_load_dwordx4 v{vOFF}, {sr(s,4)}, s{sOFF} offen {fl} lds")
            out.append(f"s_add_u32 m0, s{sEXT}, {e*2048 + 1024 - 256}")
            out.append("s_nop 0")
            out.append(f"buffer_load_dwordx4 v{vOFF}, {sr(s,4)}, s{sOFF} offen offset:256 {fl} lds")
        else:
            r = slot_of(j)
            out.append(f"buffer_load_dwordx4 {vr(r,4)}, v{vOFF}, {sr(s,4)}, s{sOFF} offen {fl}")
            out.append(f"buffer_load_dwordx4 {vr(r+4,4)}, v{vOFF}, {sr(s,4)}, s{sOFF} offen offset:256 {fl}")
        issued[0] = j + 1
        vmlog.append(("g", j)); vmlog.append(("g", j))
        return out
    A(f"s_mul_i32 s{sEXT}, s{sW}, {E*2048}")
    A(f"s_add_u32 s{sEXT}, s{sEXT}, {L_EXT}")
    for j in range(RSP):
        for x in issue(j): A(x)
    if touch:
        A("s_mov_b64 exec, 1")
        A(f"buffer_load_dword v9, v{vOFF}, {sr(S_V,4)}, s{sBASE} offen {vf}")
        A("s_mov_b64 exec, -1")
        vmlog.append(("touch", 0))
    srd(S_WS, 40, WS_SIZE)
    A("v_and_b32 v8, 7, v2")
    A("v_and_b32 v11, 1, v8")
    A("v_mov_b32 v12, 0xffff")
    A("v_lshlrev_b32 v11, 4, v11")
    A("v_lshlrev_b32 v12, v11, v12")
    A("v_lshrrev_b32 v11, 1, v8")
    for k in range(4):
        A(f"v_cmp_eq_u32 vcc, {k}, v11")
        A("s_nop 1")
        A(f"v_cndmask_b32 v{4+k}, 0, v12, vcc")
    A(f"s_mov_b32 s{sSEL0}, 0x01000100")
    A(f"s_mov_b32 s{sSEL1}, 0x03020302")
    A("s_barrier")
    for j in range(RSP, RG0 + E):
        A(f"s_waitcnt vmcnt({2*(RSP-1)})")
        if j == RSP: stamp(5)
        if j == 16: stamp(6)
        for x in issue(j): A(x)
    A("v_lshlrev_b32 v8, 4, v0")
    A(f"v_add_u32 v8, s{sEXT}, v8")
    for k in range(8): A(f"v_mov_b32 v{vO+k}, 0")
    A(f"v_mov_b32 v{vMAX}, 0xff800000")
    A(f"v_mov_b32 v{vL}, 0")
    A(f"v_lshrrev_b32 v{vT}, 3, v2")
    A(f"v_lshlrev_b32 v{vT}, 9, v{vT}")
    A(f"v_lshl_add_u32 v{vT}, v2, 4, v{vT}")
    A(f"v_xor_b32 v{vT+1}, 512, v{vT}")
    A(f"v_add_u32 v{vT}, {L_QF}, v{vT}")
    A(f"v_add_u32 v{vT+1}, {L_QF}, v{vT+1}")
    stamp(4)
    A("s_barrier")
    stamp(1)
    A(f"ds_read_b128 {vr(vQ,4)}, v{vT}")
    A(f"ds_read_b128 {vr(vQ+4,4)}, v{vT} offset:256")
    A(f"ds_read_b128 {vr(vQ+8,4)}, v{vT+1}")
    A(f"ds_read_b128 {vr(vQ+12,4)}, v{vT+1} offset:256")
    A("s_waitcnt lgkmcnt(0)")

    if LAG is None: LAG = RS + 2
    consumed = set()
    nstep = [0]
    def prev_occupant(j):
        if j < RG0: return None
        return j - RG0 - E if j - RG0 - E < RG0 and j < 2 * RG0 + E else j - RG0
    def after_step(groups):
        out = []
        for g_ in groups: consumed.add(g_)
        nstep[0] += 1
        lag = issued[0] - len(consumed)
        if lag >= LAG:
            want = len(groups) if nstep[0] * len(groups) <= RS else max(1, len(groups) // 2) if len(groups) > 1 else (nstep[0] & 1)
        else:
            want = LAG - lag
        for _ in range(want):
            j = issued[0]
            if j >= NST: break
            if prev_occupant(j) not in consumed: break
            assert slot_of(prev_occupant(j)) == slot_of(j)
            out.append(f"s_waitcnt vmcnt({2*(RS-1)})")
            out += issue(j)
        return out

    def merge(X, Y, every=3):
        out = []; yi = 0
        for k, x in enumerate(X):
            out.append(x)
            if (k + 1) % every == 0 and yi < len(Y):
                out.append(Y[yi]); yi += 1
        assert yi == len(Y)
        return out

    Yprev = []
    regp = [p for p in range(NG // 2) if not is_ext(2 * p)]
    extp = [p for p in range(NG // 2) if is_ext(2 * p)]
    order = []
    for k, p in enumerate(regp):
        order.append(p)
        if k >= 1 and extp: order.append(extp.pop(0))
    next_ext = [p for p in order if is_ext(2 * p)]
    def ext_read(p):
        e = 2 * p - RG0
        return [f"ds_read_b128 {vr(vA,4)}, v8 offset:{e*2048}",
                f"ds_read_b128 {vr(vA+4,4)}, v8 offset:{e*2048+1024}",
                f"ds_read_b128 {vr(vP,4)}, v8 offset:{e*2048+2048}",
                f"ds_read_b128 {vr(vP+4,4)}, v8 offset:{e*2048+3072}"]
    for oi, p in enumerate(order):
        ga, gb = 2 * p, 2 * p + 1
        ub = vU + 4 * (oi & 1)
        ua_, wa_, ub_, wb_ = ub, ub + 1, ub + 2, ub + 3
        if is_ext(ga):
            ra, rb = vA, vP
            A("s_waitcnt lgkmcnt(0)")
        else:
            ra, rb = slot_of(ga), slot_of(gb)
            assert issued[0] > gb
            n_after = after_n(("g", gb))
            nxt = order[oi + 1] if oi + 1 < len(order) else None
            if nxt is not None and is_ext(2 * nxt):
                n_after = min(n_after, after_n(("g", 2 * nxt + 1)))
                A(f"s_waitcnt vmcnt({n_after})")
                for x in ext_read(nxt): A(x)
            else:
                A(f"s_waitcnt vmcnt({n_after})")
        X = []
        for e in range(8):
            for (acc, r, q) in ((ua_, ra, vQ + e), (wa_, ra, vQ + 8 + e), (ub_, rb, vQ + e), (wb_, rb, vQ + 8 + e)):
                src2 = "0" if e == 0 else f"v{acc}"
                X.append(f"v_dot2_f32_bf16 v{acc}, v{r+e}, v{q}, {src2}")
        for x in merge(X, Yprev): A(x)
        for x in after_step([ga, gb]): A(x)
        if E and p == next_ext[-1]:
            A(f"v_mov_b32 v8, {L_FLAG+20}")
            lds_inc(8, 9)
        Y = []
        Y.append(f"v_add_f32_dpp v{ua_}, v{wa_}, v{ua_} row_ror:8 {DPPM}")
        Y.append(f"v_add_f32_dpp v{ub_}, v{wb_}, v{ub_} row_ror:8 {DPPM}")
        for m in ("quad_perm:[1,0,3,2]", "quad_perm:[2,3,0,1]", "row_half_mirror"):
            Y.append(f"v_add_f32_dpp v{ua_}, v{ua_}, v{ua_} {m} {DPPM}")
            Y.append(f"v_add_f32_dpp v{ub_}, v{ub_}, v{ub_} {m} {DPPM}")
        Y.append(f"v_cvt_pk_bf16_f32 v{vSC+p}, v{ua_}, v{ub_}")
        Y.append(f"v_max3_f32 v{vMAX}, v{ua_}, v{ub_}, v{vMAX}")
        Yprev = Y
    A("s_nop 2")
    for y in Yprev:
        A(y); A("s_nop 1")
    for s_ in ("v_permlane16_swap_b32", "v_permlane32_swap_b32"):
        A(f"v_mov_b32 v{vT}, v{vMAX}")
        A("s_nop 1")
        A(f"{s_} v{vMAX}, v{vT}")
        A("s_nop 1")
        A(f"v_max_f32 v{vMAX}, v{vMAX}, v{vT}")
    rbf(vMAX)
    A(f"v_mul_f32 v{vNMC}, s{sC}, v{vMAX}")
    A(f"v_sub_f32 v{vNMC}, 0, v{vNMC}")
    stamp(2)

    def ppair(pi):
        sc = vSC + pi
        a, b = vP + 2, vP + 3
        return [f"v_lshlrev_b32 v{a}, 16, v{sc}",
                f"v_and_b32 v{b}, 0xffff0000, v{sc}",
                f"v_fma_f32 v{a}, v{a}, s{sC}, v{vNMC}",
                f"v_fma_f32 v{b}, v{b}, s{sC}, v{vNMC}",
                f"v_exp_f32 v{a}, v{a}",
                f"v_exp_f32 v{b}, v{b}",
                f"v_add_f32 v{vL}, v{vL}, v{a}",
                f"v_cvt_pk_bf16_f32 v{sc}, v{a}, v{b}",
                f"v_add_f32 v{vL}, v{vL}, v{b}"]
    def abuild(i):
        a = vA + 4 * (i & 1)
        t = vP + (i & 1)
        sc = vSC + (i >> 1)
        out = [f"v_perm_b32 v{t}, v{sc}, v{sc}, s{sSEL1 if i & 1 else sSEL0}"]
        for k in range(4): out.append(f"v_and_b32 v{a+k}, v{4+k}, v{t}")
        return out
    assert NPOOL % 4 == 0 and NPOOL <= 16
    A("v_lshrrev_b32 v16, 3, v2")
    A("v_lshl_add_u32 v16, v3, 1, v16")
    A("v_lshlrev_b32 v16, 6, v16")
    A(f"s_lshl_b32 s{sT1}, s{sLID}, 11")
    A(f"s_lshl_b32 s{sT2}, s{sW}, 9")
    A(f"s_add_u32 s{sT1}, s{sT1}, s{sT2}")
    A(f"s_add_u32 s{sT1}, s{sT1}, {WS_SC}")
    A("s_mov_b32 exec_lo, 0x01010101")
    A("s_mov_b32 exec_hi, 0x01010101")
    for k in range(NPOOL // 4):
        A(f"buffer_store_dwordx4 {vr(vSC+32-NPOOL+4*k,4)}, v16, {sr(S_WS,4)}, s{sT1} offen offset:{16*k} sc1")
        vmlog.append(("st", 0))
    A("s_mov_b64 exec, -1")
    NR = D + 1
    vAT = 48
    vS = 20
    assert NR <= 8
    vZ = 17
    sTK = 26
    sGV = 27
    sGS = 28 if not stamps else 18
    sSELP = 72
    sTKT, sA0, sA1 = 68, 69, 70
    A(f"v_mov_b32 v{vZ}, 0")
    A(f"s_andn2_b32 s{sT1}, s{sLID}, 3")
    A(f"s_lshl_b32 s{sTK}, s{sT1}, 7")
    A(f"s_add_u32 s{sTK}, s{sTK}, {WS_ML + 112}")
    A(f"s_lshl_b32 s{sGS}, s{sT1}, 11")
    A(f"s_add_u32 s{sGS}, s{sGS}, {WS_SC}")
    A(f"s_lshl_b32 s{sGV}, s{sB}, 3")
    A(f"s_add_u32 s{sGV}, s{sGV}, s{sHKV}")
    A(f"s_lshl_b32 s{sGV}, s{sGV}, 21")
    A(f"s_add_u32 s{sGV}, s{sGV}, {(NG - 2*NPOOL) * 8192}")
    dslot = [slot_of(NST - RG0 + k) for k in range(2 * NR)]
    dprev = [NST - RG0 + k for k in range(2 * NR)]
    def atomic(k):
        vmlog.append(("at", k))
        return [f"v_mov_b32 v{vAT + k % NR}, 1",
                "s_mov_b64 exec, 1",
                f"buffer_atomic_add v{vAT + k % NR}, v{vZ}, {sr(S_WS,4)}, s{sTK} offen sc0 sc1",
                "s_mov_b64 exec, -1"]
    def ticket_read(k):
        return [f"v_readfirstlane_b32 s{sTKT}, v{vAT + (k - (D-1)) % NR}", "s_nop 3", f"s_add_u32 s{sTKT}, s{sTKT}, 1"]
    def dissue(k, guard):
        pos = k % NR
        o = []
        o.append(f"s_lshr_b32 s{sA0}, s{sTKT}, 4")
        o.append(f"s_and_b32 s{sA1}, s{sTKT}, 15")
        o.append(f"s_lshl_b32 s{sOFF}, s{sA1}, 9")
        o.append(f"s_lshl2_add_u32 s{sOFF}, s{sA0}, s{sOFF}")
        o.append(f"s_add_u32 s{sOFF}, s{sOFF}, s{sGS}")
        o.append(f"s_lshl_b32 s{sA0}, s{sA0}, 14")
        o.append(f"s_add_u32 s{sA0}, s{sA0}, s{sGV}")
        o.append(f"s_and_b32 s{sT1}, s{sA1}, 3")
        o.append(f"s_lshl_b32 s{sT1}, s{sT1}, 11")
        o.append(f"s_add_u32 s{sA0}, s{sA0}, s{sT1}")
        o.append(f"s_lshr_b32 s{sA1}, s{sA1}, 2")
        o.append(f"s_lshl_b32 s{sA1}, s{sA1}, 19")
        o.append(f"s_add_u32 s{sA0}, s{sA0}, s{sA1}")
        if guard:
            o.append(f"s_cmp_lt_u32 s{sTKT}, {16*NPOOL}")
            o.append(f"s_cselect_b32 s{sA0}, s{sA0}, 0x7ff00000")
            o.append(f"s_cselect_b32 s{sOFF}, s{sOFF}, 0x7ff00000")
            o.append(f"s_cselect_b32 s{sSELP+2*pos}, s{sSEL0}, 0x0c0c0c0c")
            o.append(f"s_cselect_b32 s{sSELP+2*pos+1}, s{sSEL1}, 0x0c0c0c0c")
        else:
            o.append(f"s_mov_b32 s{sSELP+2*pos}, s{sSEL0}")
            o.append(f"s_mov_b32 s{sSELP+2*pos+1}, s{sSEL1}")
        o.append(f"s_add_u32 s{sA1}, s{sA0}, 8192")
        o += atomic(k)
        o.append(f"buffer_load_dword v{vS+pos}, v16, {sr(S_WS,4)}, s{sOFF} offen sc1")
        ra, rb = dslot[2*pos], dslot[2*pos+1]
        o.append(f"buffer_load_dwordx4 {vr(ra,4)}, v{vOFF}, {sr(S_V,4)}, s{sA0} offen {vf}")
        o.append(f"buffer_load_dwordx4 {vr(ra+4,4)}, v{vOFF}, {sr(S_V,4)}, s{sA0} offen offset:256 {vf}")
        o.append(f"buffer_load_dwordx4 {vr(rb,4)}, v{vOFF}, {sr(S_V,4)}, s{sA1} offen {vf}")
        o.append(f"buffer_load_dwordx4 {vr(rb+4,4)}, v{vOFF}, {sr(S_V,4)}, s{sA1} offen offset:256 {vf}")
        for _ in range(5): vmlog.append(("d", k))
        return o
    def dconsume(k):
        pos = k % NR
        sc = vS + pos
        a, b = vP + 2, vP + 3
        ra, rb = dslot[2*pos], dslot[2*pos+1]
        o = [f"v_lshlrev_b32 v{a}, 16, v{sc}",
             f"v_and_b32 v{b}, 0xffff0000, v{sc}",
             f"v_fma_f32 v{a}, v{a}, s{sC}, v{vNMC}",
             f"v_fma_f32 v{b}, v{b}, s{sC}, v{vNMC}",
             f"v_exp_f32 v{a}, v{a}",
             f"v_exp_f32 v{b}, v{b}",
             "s_nop 0",
             f"v_cvt_pk_bf16_f32 v{a}, v{a}, v{b}",
             f"v_perm_b32 v{vP}, v{a}, v{a}, s{sSELP+2*pos}",
             f"v_perm_b32 v{vP+1}, v{a}, v{a}, s{sSELP+2*pos+1}"]
        for k_ in range(4): o.append(f"v_and_b32 v{vA+k_}, v{4+k_}, v{vP}")
        for k_ in range(4): o.append(f"v_and_b32 v{vA+4+k_}, v{4+k_}, v{vP+1}")
        o.append(f"v_mfma_f32_16x16x32_bf16 {vr(vO,4)}, {vr(vA,4)}, {vr(ra,4)}, {vr(vO,4)}")
        o.append(f"v_mfma_f32_16x16x32_bf16 {vr(vO+4,4)}, {vr(vA,4)}, {vr(ra+4,4)}, {vr(vO+4,4)}")
        o.append(f"v_mfma_f32_16x16x32_bf16 {vr(vO,4)}, {vr(vA+4,4)}, {vr(rb,4)}, {vr(vO,4)}")
        o.append(f"v_mfma_f32_16x16x32_bf16 {vr(vO+4,4)}, {vr(vA+4,4)}, {vr(rb+4,4)}, {vr(vO+4,4)}")
        return o

    for x in ppair(0): A(x)
    for x in abuild(0): A(x)
    nextp = [1]
    LDONE = (31 + PP - 1) // PP - 1
    NV = NST - NG
    first_dyn_i = NV - LAG
    ev = {}
    for n_, k in enumerate(range(-(D-1), 0)):
        ev.setdefault(first_dyn_i - 2 * (D - 1) + 2 * n_, []).append(("at", k))
    for k in range(D):
        ev.setdefault(min(NV - 1, first_dyn_i + (2 * k * 3) // D), []).append(("d", k))
    for i in range(NV):
        gi = NG + i
        r = slot_of(gi)
        a = vA + 4 * (i & 1)
        assert issued[0] > gi
        if nextp[0] < 32:
            for _ in range(PP):
                if nextp[0] < 32:
                    for x in ppair(nextp[0]): A(x)
                    nextp[0] += 1
        else:
            A("s_nop 0")
        A(f"s_waitcnt vmcnt({after_n(('g', gi))})")
        A(f"v_mfma_f32_16x16x32_bf16 {vr(vO,4)}, {vr(a,4)}, {vr(r,4)}, {vr(vO,4)}")
        A(f"v_mfma_f32_16x16x32_bf16 {vr(vO+4,4)}, {vr(a,4)}, {vr(r+4,4)}, {vr(vO+4,4)}")
        for x in after_step([gi]): A(x)
        if i == 16: stamp(9)
        if i == 32: stamp(10)
        for (kind, k) in ev.get(i, []):
            if kind == "at":
                for x in atomic(k): A(x)
            else:
                assert issued[0] == NST
                assert dprev[2*(k%NR)] in consumed and dprev[2*(k%NR)+1] in consumed
                if k == 0:
                    A(f"v_mov_b32 v18, {L_FLAG+4}")
                    lds_wait(18, 19, 1)
                    A("ds_read_b32 v28, v29")
                    A("ds_read_b32 v30, v31")
                A(f"s_waitcnt vmcnt({min(after_n(('at', k-(D-1))), 2*(RS-1))})")
                for x in ticket_read(k): A(x)
                if k == 0: A(f"s_mov_b32 s71, s{sTKT}")
                for x in dissue(k, True): A(x)
        if i + 1 < NV:
            for x in abuild(i + 1): A(x)
        if i == LDONE:
            assert nextp[0] == 32
            for s_ in ("v_permlane16_swap_b32", "v_permlane32_swap_b32"):
                A(f"v_mov_b32 v{vT}, v{vL}")
                A("s_nop 1")
                A(f"{s_} v{vL}, v{vT}")
                A("s_nop 1")
                A(f"v_add_f32 v{vL}, v{vL}, v{vT}")
            A(f"v_and_b32 v{vT}, 8, v2")
            A(f"s_lshl_b32 s{sT1}, s{sW}, 4")
            A(f"s_add_u32 s{sT1}, s{sT1}, {L_STAT}")
            A(f"v_add_u32 v{vT}, s{sT1}, v{vT}")
            A(f"v_mov_b32 v{vP+4}, v{vMAX}")
            A(f"v_mov_b32 v{vP+5}, v{vL}")
            A(f"ds_write_b64 v{vT}, {vr(vP+4,2)}")
            A(f"v_mov_b32 v{vT}, {L_FLAG}")
            A(f"s_waitcnt vmcnt({after_n(('st', 0))})")
            lds_inc(vT, vT + 1)
            A("v_lshrrev_b32 v10, 1, v3")
            A("v_lshlrev_b32 v29, 2, v10")
            A("v_lshlrev_b32 v10, 10, v10")
            A("v_lshl_add_u32 v10, v2, 5, v10")
            A("v_and_b32 v18, 1, v3")
            A("v_lshl_add_u32 v10, v18, 4, v10")
            A(f"s_lshl_b32 s{sT1}, s{sW}, 11")
            A(f"s_add_u32 s{sT1}, s{sT1}, {L_PART}")
            A(f"v_add_u32 v10, s{sT1}, v10")
            A(f"s_lshl_b32 s{sT1}, s{sW}, 3")
            A(f"s_add_u32 s{sT1}, s{sT1}, {L_F}")
            A(f"v_add_u32 v29, s{sT1}, v29")
            A("v_lshrrev_b32 v31, 3, v2")
            A("v_lshlrev_b32 v31, 2, v31")
            A(f"v_add_u32 v31, {L_F+32}, v31")
    stamp(7)
    A("s_waitcnt lgkmcnt(0)")
    A(f"v_mov_b32 v{vNMC}, v30")
    A("s_nop 5")
    for k in range(8): A(f"v_mul_f32 v{vO+k}, v{vO+k}, v28")
    A(f"s_cmp_ge_u32 s71, {16*NPOOL}")
    A("s_cbranch_scc1 L_vdone")
    pat = []
    for k in range(1, D): pat += [("at", k)] + [("d", k)] * 5
    assert vmlog[-len(pat):] == pat, vmlog[-20:]
    WN = 6 * D - 7
    A.lab("L_dloop")
    for u in range(NR):
        k = D + u
        A(f"s_waitcnt vmcnt({WN})")
        for x in ticket_read(k): A(x)
        A(f"s_cmp_ge_u32 s{sTKT}, {16*NPOOL}")
        A(f"s_cbranch_scc1 L_drain{u}")
        for x in dissue(k, False): A(x)
        for x in dconsume(k - D): A(x)
    A("s_branch L_dloop")
    for u in range(NR):
        k = D + u
        A.lab(f"L_drain{u}")
        for n_ in range(D):
            if n_ > 0: A(f"s_waitcnt vmcnt({6*(D-1-n_)})")
            for x in dconsume(k - D + n_): A(x)
        if u < NR - 1: A("s_branch L_vdone")
    A.lab("L_vdone")
    A("s_nop 7")
    A(f"ds_write_b128 v10, {vr(vO,4)}")
    A(f"ds_write_b128 v10, {vr(vO+4,4)} offset:512")
    A("s_waitcnt vmcnt(0) lgkmcnt(0)")
    stamp(3)
    A("s_barrier")
    A("s_branch L_t3pre")

    A.lab("L_helper")
    sW = sWAVE
    vTH = 1
    vX = 32
    vY = 80
    vW1 = 144
    vW2 = 200
    A(f"s_lshl_b32 s{sT1}, s{sW}, 6")
    A(f"v_add_u32 v{vTH}, s{sT1}, v0")
    A(f"s_lshl_b32 s{sT2}, s{sI}, 3")
    A(f"s_add_u32 s{sT2}, s{sT2}, s{sB}")
    A("s_waitcnt lgkmcnt(0)")
    srd(S_WS, 40, WS_SIZE)
    srd(S_WQ, 22, 448 * 8192)
    srd(S_DBG, 38, 256)
    A(f"s_cmp_eq_u32 s{sW}, 0")
    A("s_cbranch_scc1 L_h0")
    A(f"s_cmp_eq_u32 s{sW}, 3")
    A("s_cbranch_scc1 L_h3")
    srd(S_X, 16, 7168)
    A("v_and_b32 v8, 31, v0")
    A("v_lshrrev_b32 v9, 5, v0")
    A("v_mul_u32_u24 v9, 896, v9")
    A("v_lshl_add_u32 v9, v8, 5, v9")
    A("v_cmp_gt_u32 vcc, 28, v8")
    A("v_mov_b32 v10, 0x7fffff00")
    A(f"s_sub_u32 s{sA}, s{sW}, 1")
    A(f"s_mul_i32 s{sA}, s{sA}, 3584")
    A("v_cndmask_b32 v10, v10, v9, vcc")
    A("v_mov_b32 v15, 1.0")
    A("v_cndmask_b32 v15, 0, v15, vcc")
    A(f"buffer_load_dwordx4 v[16:19], v10, {sr(S_X,4)}, s{sA} offen")
    A(f"buffer_load_dwordx4 v[20:23], v10, {sr(S_X,4)}, s{sA} offen offset:16")
    A(f"buffer_load_dwordx4 v[24:27], v10, {sr(S_X,4)}, s{sA} offen offset:1792")
    A(f"buffer_load_dwordx4 v[28:31], v10, {sr(S_X,4)}, s{sA} offen offset:1808")
    A("v_mov_b32 v12, 0")
    A(f"v_lshlrev_b32 v13, 2, v2")
    A(f"v_add_u32 v13, {L_FLAG}, v13")
    A("ds_write_b32 v13, v12")
    A(f"s_add_u32 s{sA}, s{sA}, {L_XN}")
    A(f"v_add_u32 v9, s{sA}, v9")
    A("s_waitcnt lgkmcnt(0)")
    A("s_barrier")
    A("s_waitcnt vmcnt(0)")
    stamp(5, 'q')
    keep = A.L; A.L = []
    layernorm(16, 16, 32, 48, 64, 15, False); l1 = A.L; A.L = []
    layernorm(24, 16, 80, 96, 112, 15, False); l2 = A.L; A.L = keep
    assert len(l1) == len(l2)
    for x, y in zip(l1, l2):
        if x.strip().startswith("s_nop"):
            A.L.append("  s_nop 0")
        elif x.strip().startswith("s_mov"):
            A.L.append(x)
        else:
            A.L.append(x); A.L.append(y)
    A("v_cmp_lt_f32 vcc, 0, v15")
    A(f"s_and_saveexec_b64 s[{sEX}:{sEX+1}], vcc")
    A("ds_write_b128 v9, v[16:19]")
    A("ds_write_b128 v9, v[20:23] offset:16")
    A("ds_write_b128 v9, v[24:27] offset:1792")
    A("ds_write_b128 v9, v[28:31] offset:1808")
    A(f"s_mov_b64 exec, s[{sEX}:{sEX+1}]")
    A(f"v_mov_b32 v9, {L_FLAG+16}")
    lds_inc(9, 10)
    stamp(6, 'q')
    A("s_branch L_hb2")

    A.lab("L_h0")
    A("v_lshrrev_b32 v13, 1, v0")
    A("v_lshlrev_b32 v13, 13, v13")
    A("v_and_b32 v14, 1, v0")
    A("v_lshl_add_u32 v13, v14, 4, v13")
    A(f"s_lshl_b32 s{sT1}, s{sT2}, 5")
    for i in range(14):
        A(f"s_mov_b32 m0, {L_WQ + i*1024}")
        A(f"s_add_u32 s{sCNT}, s{sT1}, {i*32*8192}")
        if not nowq: A(f"buffer_load_dwordx4 v13, {sr(S_WQ,4)}, s{sCNT} offen {wf} lds")
    A("s_barrier")
    A("v_lshrrev_b32 v12, 2, v2")
    A("v_lshl_add_u32 v12, v3, 3, v12")
    A("v_lshlrev_b32 v12, 5, v12")
    A("v_and_b32 v13, 3, v2")
    A("v_lshl_add_u32 v12, v13, 3, v12")
    A("v_and_b32 v13, 7, v2")
    A("v_mul_u32_u24 v13, 896, v13")
    A("v_lshl_add_u32 v13, v3, 4, v13")
    A("v_lshlrev_b32 v14, 13, v2")
    A("v_lshl_add_u32 v14, v3, 3, v14")
    A("s_waitcnt vmcnt(0)")
    stamp(5, 'q')
    for kk in range(14):
        r = 80 + 4 * kk
        A(f"ds_read_b64_tr_b16 {vr(r,2)}, v12 offset:{L_WQ + kk*1024}")
        A(f"ds_read_b64_tr_b16 {vr(r+2,2)}, v12 offset:{L_WQ + kk*1024+128}")
        if kk == 6: A("s_waitcnt lgkmcnt(0)")
    A("s_waitcnt lgkmcnt(0)")
    A(f"v_mov_b32 v15, {L_FLAG+16}")
    lds_wait(15, 16, 3, sleep=0)
    stamp(6, 'q')
    for kk in range(14):
        A(f"ds_read_b128 {vr(144+4*kk,4)}, v13 offset:{L_XN + kk*64}")
    for kk in range(14):
        A(f"s_waitcnt lgkmcnt({13-kk})")
        c = "0" if kk == 0 else "v[24:27]"
        A(f"v_mfma_f32_16x16x32_bf16 v[24:27], {vr(80+4*kk,4)}, {vr(144+4*kk,4)}, {c}")
    A("s_mov_b32 exec_lo, 0x00ff00ff")
    A("s_mov_b32 exec_hi, 0x00ff00ff")
    A("s_nop 5")
    A("v_cvt_pk_bf16_f32 v28, v24, v25")
    A("v_cvt_pk_bf16_f32 v29, v26, v27")
    guard([28, 29])
    A(f"buffer_store_dwordx2 v[28:29], v14, {sr(S_WS,4)}, s{sT1} offen sc1")
    A("s_mov_b64 exec, -1")
    stamp(7, 'q')
    A("s_branch L_hb2")

    A.lab("L_h3")
    for k in range(4): A(f"v_mov_b32 v{24+k}, -1")
    A("v_lshrrev_b32 v14, 1, v0")
    A("v_lshlrev_b32 v14, 13, v14")
    A("v_and_b32 v15, 1, v0")
    A("v_lshl_add_u32 v14, v15, 4, v14")
    A(f"s_lshl_b32 s{sT1}, s{sT2}, 5")
    A("s_mov_b64 exec, 0xffff")
    A(f"buffer_store_dwordx4 v[24:27], v14, {sr(S_WS,4)}, s{sT1} offen sc1")
    A("s_mov_b64 exec, -1")
    A("v_lshlrev_b32 v14, 4, v0")
    A(f"s_lshl_b32 s{sA}, s{sLID}, 7")
    A(f"s_add_u32 s{sA}, s{sA}, {WS_ML}")
    A("s_mov_b64 exec, 0xff")
    A(f"buffer_store_dwordx4 v[24:27], v14, {sr(S_WS,4)}, s{sA} offen sc1")
    A("s_mov_b64 exec, -1")
    A(f"s_lshl_b32 s{sT1}, s{sLID}, 11")
    A(f"s_add_u32 s{sT1}, s{sT1}, {WS_OB1}")
    for k in range(2):
        A(f"buffer_store_dwordx4 v[24:27], v14, {sr(S_WS,4)}, s{sT1} offen offset:{k*1024} sc1")
    A(f"s_lshl_b32 s{sT1}, s{sLID}, 9")
    A(f"s_add_u32 s{sT1}, s{sT1}, {WS_OB2}")
    A("s_mov_b32 exec_hi, 0")
    A(f"buffer_store_dwordx4 v[24:27], v14, {sr(S_WS,4)}, s{sT1} offen sc1")
    A("s_mov_b64 exec, -1")
    lab = A.newlab("L_noclr3")
    A(f"s_cmp_ge_u32 s{sF}, 28")
    A(f"s_cbranch_scc1 {lab}")
    A(f"s_lshl_b32 s{sT1}, s{sB}, 5")
    A(f"s_add_u32 s{sT1}, s{sT1}, s{sF}")
    A(f"s_lshl_b32 s{sT1}, s{sT1}, 11")
    A(f"s_add_u32 s{sT1}, s{sT1}, {WS_OB3}")
    for k in range(2):
        A(f"buffer_store_dwordx4 v[24:27], v14, {sr(S_WS,4)}, s{sT1} offen offset:{k*1024} sc1")
    A.lab(lab)
    A("s_barrier")
    A("v_mov_b32 v12, 1")
    A("v_mov_b32 v13, 0")
    A("v_mov_b32 v15, 1")
    A(f"s_lshl_b32 s{sD}, s{sHKV}, 5")
    A("v_lshrrev_b32 v16, 2, v0")
    A("v_lshlrev_b32 v16, 5, v16")
    A("v_and_b32 v17, 3, v0")
    A("v_add_u32 v16, v16, v17")
    A("v_lshlrev_b32 v16, 7, v16")
    A("v_lshlrev_b32 v17, 7, v0")
    A("s_waitcnt vmcnt(0)")
    stamp(5, 'q')
    A("s_mov_b64 exec, 1")
    A(f"buffer_atomic_add v12, v13, {sr(S_DBG,4)}, s{sD} offen sc0 sc1")
    A("s_mov_b64 exec, -1")
    A(f"v_mov_b32 v18, {L_FLAG+16}")
    lds_inc(18, 19)
    A("s_waitcnt vmcnt(0)")
    A(f"v_readfirstlane_b32 s{sBq}, v12")
    A("s_nop 3")
    A(f"s_and_b32 s{sBq}, s{sBq}, 31")
    A(f"s_cmp_lg_u32 s{sBq}, 31")
    A("s_cbranch_scc1 L_notlast")
    A(f"s_lshl_b32 s{sD}, s{sHKV}, 9")
    A(f"s_add_u32 s{sD}, s{sD}, {WS_ML+64}")
    A("s_mov_b32 exec_hi, 0")
    A(f"buffer_store_dword v15, v16, {sr(S_WS,4)}, s{sD} offen sc1")
    A("v_mov_b32 v12, 1")
    A("s_mov_b64 exec, 1")
    A(f"buffer_atomic_add v12, v13, {sr(S_DBG,4)}, 0 offen offset:16 sc0 sc1")
    A("s_mov_b64 exec, -1")
    A("s_waitcnt vmcnt(0)")
    A(f"v_readfirstlane_b32 s{sBq}, v12")
    A("s_nop 3")
    A(f"s_and_b32 s{sBq}, s{sBq}, 7")
    A(f"s_cmp_lg_u32 s{sBq}, 7")
    A("s_cbranch_scc1 L_notlast")
    for k in range(4):
        A(f"s_mov_b32 s{sD}, {WS_ML + 96 + k*8192}")
        A(f"buffer_store_dword v15, v17, {sr(S_WS,4)}, s{sD} offen sc1")
    A.lab("L_notlast")
    stamp(6, 'q')
    poll([f"buffer_load_dword v18, v13, {sr(S_WS,4)}, s{sA} offen offset:64 sc1"], [18], 19, spin)
    stamp(7, 'q')
    A(f"s_lshl_b32 s{sD}, s{sB}, 13")
    A(f"s_lshl_b32 s{sBq}, s{sHKV}, 10")
    A(f"s_add_u32 s{sD}, s{sD}, s{sBq}")
    A(f"v_add_u32 v12, {L_QF}, v14")
    poll([f"buffer_load_dwordx4 v[16:19], v14, {sr(S_WS,4)}, s{sD} offen sc1"], [16, 17, 18, 19], 24, spin)
    A("ds_write_b128 v12, v[16:19]")
    A("s_waitcnt lgkmcnt(0)")
    stamp(8, 'q')
    A("s_barrier")
    poll([f"buffer_load_dword v18, v13, {sr(S_WS,4)}, s{sA} offen offset:96 sc1"], [18], 19, spin)
    A("s_branch L_hw")

    A.lab("L_hb2")
    A("s_barrier")
    A.lab("L_hw")
    A("s_load_dwordx2 s[16:17], s[0:1], 0")
    A("s_load_dwordx2 s[24:25], s[0:1], 32")
    A("s_load_dwordx4 s[20:23], s[0:1], 48")
    A("s_load_dwordx2 s[18:19], s[0:1], 64")
    A("s_load_dwordx4 s[64:67], s[0:1], 72")
    A("s_waitcnt lgkmcnt(0)")
    srd(S_X, 16, 7168)
    srd(S_WO, 24, 4096 * 896)
    srd(S_B2, 64, 896)
    srd(S_OUT, 66, 7168)
    srd(S_W1, 20, 448 * 3584)
    srd(S_B1, 22, 3584)
    srd(S_W2, 18, 1792 * 896)

    def pace():
        A(f"s_waitcnt vmcnt({wpace-1})")
    A("v_and_b32 v12, 31, v0")
    A("v_lshlrev_b32 v12, 3, v12")
    A(f"s_mul_i32 s{sD}, s{sB}, 896")
    A(f"s_lshl_b32 s{sA}, s{sW}, 8")
    A(f"s_add_u32 s{sD}, s{sD}, s{sA}")
    A(f"buffer_load_dwordx2 v[64:65], v12, {sr(S_X,4)}, s{sD} offen")
    A("v_lshlrev_b32 v12, 3, v3")
    A(f"s_lshl_b32 s{sD}, s{sF}, 7")
    A(f"s_lshl_b32 s{sA}, s{sW}, 5")
    A(f"s_add_u32 s{sD}, s{sD}, s{sA}")
    A(f"buffer_load_dwordx2 v[66:67], v12, {sr(S_B1,4)}, s{sD} offen")
    A("v_and_b32 v12, 7, v0")
    A("v_lshlrev_b32 v12, 2, v12")
    A(f"s_lshl_b32 s{sD}, s{sF}, 5")
    A(f"buffer_load_dword v68, v12, {sr(S_B2,4)}, s{sD} offen")
    A("v_lshrrev_b32 v8, 2, v2")
    A("v_lshl_add_u32 v8, v3, 3, v8")
    A("v_and_b32 v9, 3, v2")
    A(f"s_cmp_ge_u32 s{sF}, 28")
    A("s_cbranch_scc1 L_noffn")
    if E > 8:
        A(f"v_mov_b32 v13, {L_FLAG+20}")
        lds_wait(13, 14, 4)
    A("v_lshrrev_b32 v12, 3, v0")
    A("v_mul_u32_u24 v12, 3584, v12")
    A("v_and_b32 v13, 7, v0")
    A("v_lshl_add_u32 v12, v13, 4, v12")
    A(f"s_mul_i32 s{sA}, s{sW}, {14*8*3584}")
    A(f"s_lshl_b32 s{sD}, s{sF}, 7")
    A(f"s_add_u32 s{sA}, s{sA}, s{sD}")
    A(f"s_mul_i32 s{sBq}, s{sW}, {14*1024}")
    for u in range(14):
        pace()
        A(f"s_add_u32 m0, s{sBq}, {L_W1S + u*1024}")
        A(f"s_add_u32 s{sD}, s{sA}, {u*8*3584}")
        if not now: A(f"buffer_load_dwordx4 v12, {sr(S_W1,4)}, s{sD} offen {wf} lds")
    if E:
        A(f"v_mov_b32 v13, {L_FLAG+20}")
        lds_wait(13, 14, 4)
    A("v_lshlrev_b32 v12, 4, v0")
    A(f"s_mul_i32 s{sA}, s{sF}, 57344")
    A(f"s_add_u32 s{sA}, s{sA}, s{sBq}")
    for u in range(14):
        pace()
        A(f"s_add_u32 m0, s{sBq}, {L_W2S + u*1024}")
        A(f"s_add_u32 s{sD}, s{sA}, {u*1024}")
        if not now: A(f"buffer_load_dwordx4 v12, {sr(S_W2,4)}, s{sD} offen {wf} lds")
    A("s_waitcnt vmcnt(0)")
    A(f"v_mov_b32 v12, {L_FLAG+8}")
    lds_inc(12, 13)
    lds_wait(12, 13, 4)
    A("v_lshlrev_b32 v12, 7, v8")
    A("v_lshl_add_u32 v12, v9, 3, v12")
    A(f"s_lshl_b32 s{sA}, s{sW}, 5")
    A(f"v_add_u32 v12, s{sA}, v12")
    for ks in range(14):
        A(f"ds_read_b64_tr_b16 {vr(vW1+4*ks,2)}, v12 offset:{L_W1S + ks*4096}")
        A(f"ds_read_b64_tr_b16 {vr(vW1+4*ks+2,2)}, v12 offset:{L_W1S + ks*4096 + 512}")
        if ks % 6 == 5: A("s_waitcnt lgkmcnt(0)")
    A("s_waitcnt lgkmcnt(0)")
    A("v_mul_u32_u24 v12, 896, v8")
    A("v_lshl_add_u32 v12, v9, 3, v12")
    A(f"s_mul_i32 s{sA}, s{sW}, 224")
    A(f"s_add_u32 s{sA}, s{sA}, {L_W2S}")
    A(f"v_add_u32 v12, s{sA}, v12")
    for j in range(7):
        for ks in range(2):
            r = vW2 + 4 * (2 * j + ks)
            A(f"ds_read_b64_tr_b16 {vr(r,2)}, v12 offset:{ks*28672 + j*32}")
            A(f"ds_read_b64_tr_b16 {vr(r+2,2)}, v12 offset:{ks*28672 + 3584 + j*32}")
        if j % 3 == 2: A("s_waitcnt lgkmcnt(0)")
    A("s_waitcnt lgkmcnt(0)")
    A(f"v_mov_b32 v12, {L_FLAG+12}")
    lds_inc(12, 13)
    lds_wait(12, 13, 4)
    A.lab("L_noffn")
    if E:
        A(f"v_mov_b32 v13, {L_FLAG+20}")
        lds_wait(13, 14, 4)
    A("v_lshlrev_b32 v12, 1, v3")
    A("v_xor_b32 v12, v12, v2")
    A("v_xor_b32 v13, 8, v12")
    A(f"s_cmp_eq_u32 s{sS}, 3")
    A(f"s_cselect_b32 s{sD}, 8, 16")
    A(f"v_cmp_gt_u32 s[20:21], s{sD}, v12")
    A(f"v_cmp_gt_u32 s[22:23], s{sD}, v13")
    A("v_mul_u32_u24 v14, 896, v3")
    A("v_lshl_add_u32 v12, v12, 4, v14")
    A("v_lshl_add_u32 v13, v13, 4, v14")
    A(f"s_lshl_b32 s{sA}, s{sHKV}, 9")
    A(f"s_mul_i32 s{sD}, s{sW}, 160")
    A(f"s_add_u32 s{sA}, s{sA}, s{sD}")
    A(f"s_mul_i32 s{sA}, s{sA}, 896")
    A(f"s_lshl_b32 s{sD}, s{sS}, 8")
    A(f"s_add_u32 s{sA}, s{sA}, s{sD}")
    A(f"s_mul_i32 s{sBq}, s{sW}, {40*1024}")
    for tt in range(40):
        if tt == 8:
            A(f"s_cmp_eq_u32 s{sW}, 3")
            A("s_cbranch_scc1 L_wodone")
        pace()
        if tt % 2 == 0: A(f"s_mov_b64 exec, s[{22 if (tt>>1)&1 else 20}:{23 if (tt>>1)&1 else 21}]")
        A(f"s_add_u32 m0, s{sBq}, {L_WO + tt*1024}")
        A(f"s_add_u32 s{sD}, s{sA}, {tt*4*896}")
        if not now: A(f"buffer_load_dwordx4 v{13 if (tt>>1)&1 else 12}, {sr(S_WO,4)}, s{sD} offen {wf} lds")
    A.lab("L_wodone")
    if touch:
        A("s_mov_b64 exec, 1")
        A(f"buffer_load_dword v14, v3, {sr(S_OUT,4)}, 0 offen")
    A("s_mov_b64 exec, -1")
    A("s_waitcnt vmcnt(0)")
    stamp(9)
    A(f"s_cmp_lg_u32 s{sW}, 3")
    A("s_cbranch_scc1 L_nostat")
    A(f"v_mov_b32 v12, {L_FLAG}")
    lds_wait(12, 13, 4, sleep=4)
    A("v_and_b32 v14, 1, v0")
    A("v_lshlrev_b32 v15, 3, v14")
    A(f"v_add_u32 v12, {L_STAT}, v15")
    for w in range(4): A(f"ds_read_b64 {vr(16+2*w,2)}, v12 offset:{w*16}")
    A("s_waitcnt lgkmcnt(0)")
    A("v_max_f32 v24, v16, v18")
    A("v_max3_f32 v24, v20, v22, v24")
    for w in range(4):
        A(f"v_sub_f32 v{28+w}, v{16+2*w}, v24")
        A(f"v_mul_f32 v{28+w}, s{sC}, v{28+w}")
        A(f"v_exp_f32 v{28+w}, v{28+w}")
    A("s_nop 0")
    A("v_mul_f32 v25, v28, v17")
    for w in range(1, 4): A(f"v_fma_f32 v25, v{28+w}, v{17+2*w}, v25")
    guard([24, 25])
    A(f"s_lshl_b32 s{sD}, s{sLID}, 7")
    A(f"s_add_u32 s{sD}, s{sD}, {WS_ML}")
    A("s_mov_b64 exec, 3")
    A(f"buffer_store_dwordx2 v[24:25], v15, {sr(S_WS,4)}, s{sD} offen sc1")
    A("s_mov_b64 exec, -1")
    for p in range(1, 4): A(f"s_xor_b32 s{20+p}, s{sD}, {p*128}")
    poll([f"buffer_load_dwordx2 {vr(32+2*(p-1),2)}, v15, {sr(S_WS,4)}, s{20+p} offen sc1" for p in range(1, 4)],
         range(32, 38), 12, spin)
    A("v_max_f32 v46, v24, v32")
    A("v_max3_f32 v46, v34, v36, v46")
    Ms = [24, 32, 34, 36]; Ls = [25, 33, 35, 37]
    for k in range(4):
        A(f"v_sub_f32 v{48+k}, v{Ms[k]}, v46")
        A(f"v_mul_f32 v{48+k}, s{sC}, v{48+k}")
        A(f"v_exp_f32 v{48+k}, v{48+k}")
    A("s_nop 0")
    A(f"v_mul_f32 v47, v48, v{Ls[0]}")
    for k in range(1, 4): A(f"v_fma_f32 v47, v{48+k}, v{Ls[k]}, v47")
    A("v_rcp_f32 v52, v47")
    A("s_nop 0")
    A("v_fma_f32 v53, -v47, v52, 1.0")
    A("v_fma_f32 v52, v53, v52, v52")
    for w in range(4):
        A(f"v_sub_f32 v{28+w}, v{16+2*w}, v46")
        A(f"v_mul_f32 v{28+w}, s{sC}, v{28+w}")
        A(f"v_exp_f32 v{28+w}, v{28+w}")
    A(f"v_mul_f32 v53, s{sC}, v46")
    A("v_sub_f32 v53, 0, v53")
    A("v_lshlrev_b32 v12, 2, v14")
    A(f"v_add_u32 v12, {L_F}, v12")
    for w in range(4): A(f"ds_write_b32 v12, v{28+w} offset:{w*8}")
    A("ds_write_b32 v12, v53 offset:32")
    A("ds_write_b32 v12, v52 offset:40")
    A(f"v_mov_b32 v12, {L_FLAG+4}")
    lds_inc(12, 13)
    A("s_waitcnt lgkmcnt(0)")
    A.lab("L_nostat")
    stamp(10)
    A("v_cmp_gt_u32 vcc, 56, v0")
    A("v_mov_b32 v11, 1.0")
    A("v_lshlrev_b32 v70, 16, v64")
    A("v_cndmask_b32 v11, 0, v11, vcc")
    A("v_and_b32 v71, 0xffff0000, v64")
    A("v_lshlrev_b32 v72, 16, v65")
    A("v_and_b32 v73, 0xffff0000, v65")
    A("v_lshlrev_b32 v74, 16, v66")
    A("v_and_b32 v75, 0xffff0000, v66")
    A("v_lshlrev_b32 v76, 16, v67")
    A("v_and_b32 v77, 0xffff0000, v67")
    A("v_lshlrev_b32 v78, 16, v68")
    A("v_and_b32 v79, 0xffff0000, v68")
    class skipdry:
        def __enter__(self):
            if dry:
                self.lab = A.newlab("L_sk")
                A(f"s_cmp_lg_u32 s{sDRY}, 0")
                A(f"s_cbranch_scc1 {self.lab}")
        def __exit__(self, *a):
            if dry: A.lab(self.lab)
    def tbar():
        with skipdry(): A("s_barrier")
    if dry:
        A(f"s_cmp_eq_u32 s{sW}, 0")
        A(f"s_cselect_b32 s{sDRY}, 1, 0")
    A.lab("L_tail")
    A(f"v_mov_b32 v12, {L_FLAG+4}")
    with skipdry():
        lds_wait(12, 13, 1, sleep=8)
    A(f"s_lshr_b32 s{sA}, s{sW}, 1")
    A(f"s_lshl_b32 s{sA}, s{sA}, 2")
    A(f"s_add_u32 s{sA}, s{sA}, {L_F}")
    A(f"v_mov_b32 v12, s{sA}")
    A("ds_read_b32 v64, v12 offset:40")
    A("v_and_b32 v14, 31, v0")
    A("v_lshlrev_b32 v14, 4, v14")
    A(f"s_lshl_b32 s{sA}, s{sW}, 9")
    A("v_lshrrev_b32 v13, 5, v0")
    A("v_lshl_add_u32 v12, v13, 12, v14")
    A(f"s_add_u32 s{sD}, s{sA}, {L_PART}")
    A(f"v_add_u32 v12, s{sD}, v12")
    A(f"s_lshl_b32 s{sD}, s{sLID}, 11")
    A(f"s_add_u32 s{sD}, s{sD}, {WS_OB1}")
    A(f"s_add_u32 s{sD}, s{sD}, s{sA}")
    A(f"s_and_b32 s{sBq}, s{sLID}, 3")
    A(f"s_xor_b32 s20, s{sBq}, 1")
    A(f"s_xor_b32 s21, s{sBq}, 2")
    A(f"s_xor_b32 s22, s{sBq}, 3")
    for k in range(3): A(f"s_lshl_b32 s{20+k}, s{20+k}, 11")
    A("v_cmp_eq_u32 vcc, 0, v13")
    A("v_mov_b32 v16, s20")
    A("v_mov_b32 v17, s21")
    A("v_mov_b32 v18, s22")
    A("v_cndmask_b32 v16, v18, v16, vcc")
    A("v_add_u32 v65, v16, v14")
    A("v_add_u32 v66, v17, v14")
    A(f"s_andn2_b32 s{sBq}, s{sD}, 0x1800")
    A("v_lshrrev_b32 v15, 1, v14")
    A(f"s_lshl_b32 s{sA}, s{sW}, 8")
    A(f"s_add_u32 s{sA}, s{sA}, {L_OBF}")
    A(f"v_add_u32 v15, s{sA}, v15")
    A("s_waitcnt lgkmcnt(0)")
    tbar()
    stamp(1)
    A("ds_read_b128 v[16:19], v12")
    A("ds_read_b128 v[20:23], v12 offset:2048")
    A("s_waitcnt lgkmcnt(0)")
    for k in range(4): A(f"v_add_f32 v{16+k}, v{16+k}, v{20+k}")
    for k in range(4): A(f"v_mov_b32 v{20+k}, v{16+k}")
    A("s_nop 0")
    for k in range(4): A(f"v_permlane32_swap_b32 v{16+k}, v{20+k}")
    A("s_nop 0")
    for k in range(4): A(f"v_add_f32 v{24+k}, v{16+k}, v{20+k}")
    guard(range(24, 28))
    with skipdry():
        A("s_mov_b32 exec_hi, 0")
        A(f"buffer_store_dwordx4 v[24:27], v14, {sr(S_WS,4)}, s{sD} offen sc1")
        A("s_mov_b64 exec, -1")

    A.lab("L_t3pre")
    A("v_lshrrev_b32 v4, 2, v2")
    A("v_and_b32 v5, 1, v3")
    A("v_lshl_or_b32 v5, v5, 2, v4")
    A(f"v_xor_b32 v5, s{sWAVE}, v5")
    A("v_lshlrev_b32 v5, 5, v5")
    A("v_and_b32 v6, 3, v2")
    A("v_lshl_add_u32 v5, v6, 3, v5")
    A("v_lshl_add_u32 v4, v3, 3, v4")
    A("v_lshl_add_u32 v5, v4, 8, v5")
    A("v_add_u32 v6, 0x10000, v5")
    for ks in range(16):
        b = 5 if ks < 8 else 6
        A(f"ds_read_b64_tr_b16 {vr(vY+4*ks,2)}, v{b} offset:{(ks%8)*8192}")
        A(f"ds_read_b64_tr_b16 {vr(vY+4*ks+2,2)}, v{b} offset:{(ks%8)*8192 + 1024}")
        if ks % 6 == 5: A("s_waitcnt lgkmcnt(2)")
    A("v_lshlrev_b32 v7, 4, v3")
    A(f"v_add_u32 v4, {L_OBF}, v7")
    A(f"s_lshl_b32 s{sT1}, s{sLID}, 9")
    A(f"s_add_u32 s{sT1}, s{sT1}, {WS_OB2}")
    A(f"s_lshl_b32 s{sT2}, s{sWAVE}, 6")
    A(f"s_add_u32 s{sT1}, s{sT1}, s{sT2}")
    A("s_mov_b32 s26, 0x00010001")
    A("s_mov_b32 s27, 0x00010001")
    A(f"s_cmp_ge_u32 s{sWAVE}, 4")
    A("s_cbranch_scc1 L_t3")
    for k in range(4): A(f"v_mov_b32 v{vX+4+k}, 0")
    if ack: A("s_waitcnt vmcnt(0)")
    with skipdry():
        poll([f"buffer_load_dwordx4 {vr(vX,4)}, v65, {sr(S_WS,4)}, s{sBq} offen sc1",
              "s_mov_b32 exec_hi, 0",
              f"buffer_load_dwordx4 {vr(vX+4,4)}, v66, {sr(S_WS,4)}, s{sBq} offen sc1",
              "s_mov_b64 exec, -1"], range(vX, vX + 8), 12, spin)
    stamp(2)
    for k in range(4): A(f"v_add_f32 v{16+k}, v{vX+k}, v{vX+4+k}")
    for k in range(4): A(f"v_mov_b32 v{20+k}, v{16+k}")
    A("s_nop 0")
    for k in range(4): A(f"v_permlane32_swap_b32 v{16+k}, v{20+k}")
    for k in range(4): A(f"v_add_f32 v{24+k}, v{24+k}, v{16+k}")
    for k in range(4): A(f"v_add_f32 v{24+k}, v{24+k}, v{20+k}")
    for k in range(4): A(f"v_mul_f32 v{24+k}, v{24+k}, v64")
    A("v_cvt_pk_bf16_f32 v24, v24, v25")
    A("v_cvt_pk_bf16_f32 v25, v26, v27")
    A("ds_write_b64 v15, v[24:25]")
    A.lab("L_t3")
    A("s_waitcnt lgkmcnt(0)")
    tbar()
    for ks in range(8): A(f"ds_read_b128 {vr(vX+4*ks,4)}, v4 offset:{ks*64}")
    for ks in range(16):
        A(f"s_waitcnt lgkmcnt({min(7, 15-ks)})")
        c = "0" if ks == 0 else "v[16:19]"
        A(f"v_mfma_f32_16x16x32_bf16 v[16:19], {vr(vY+4*ks,4)}, {vr(vX+4*(ks%8),4)}, {c}")
        if ks < 8: A(f"ds_read_b128 {vr(vX+4*ks,4)}, v4 offset:{(ks+8)*64}")
    A("s_mov_b64 exec, s[26:27]")
    A("s_nop 6")
    guard(range(16, 20))
    with skipdry():
        A(f"buffer_store_dwordx4 v[16:19], v7, {sr(S_WS,4)}, s{sT1} offen sc1")
    A("s_mov_b64 exec, -1")
    stamp(8, 't')
    A(f"s_cmp_ge_u32 s{sWAVE}, 4")
    A("s_cbranch_scc1 L_send")
    A(f"s_cmp_ge_u32 s{sF}, 28")
    A("s_cbranch_scc1 L_fin")
    A("v_lshl_add_u32 v12, v13, 13, v14")
    A(f"s_lshl_b32 s{sD}, s{sB}, 5")
    A(f"s_add_u32 s{sD}, s{sD}, s{sW}")
    A(f"s_lshl_b32 s{sD}, s{sD}, 9")
    A(f"s_add_u32 s{sD}, s{sD}, {WS_OB2}")
    A(f"s_add_u32 s{sBq}, s{sD}, 4096")
    A("v_lshrrev_b32 v15, 1, v14")
    A(f"s_lshl_b32 s{sA}, s{sW}, 8")
    A(f"s_add_u32 s{sA}, s{sA}, {L_H}")
    A(f"v_add_u32 v15, s{sA}, v15")
    A("v_lshlrev_b32 v10, 4, v0")
    A(f"s_lshl_b32 s{sA}, s{sW}, 10")
    A(f"s_add_u32 s{sA}, s{sA}, {L_XN2}")
    A(f"v_add_u32 v4, s{sA}, v10")
    A(f"v_add_u32 v10, {L_H}, v10")
    A(f"v_add_u32 v6, {L_R2}, v7")
    A(f"v_add_u32 v5, s{sA}, v7")
    A("v_lshl_add_u32 v8, v2, 6, v7")
    A("v_lshlrev_b32 v7, 3, v3")
    A(f"s_lshl_b32 s{sA}, s{sW}, 5")
    A(f"s_add_u32 s{sA}, s{sA}, {L_R2}")
    A(f"v_add_u32 v7, s{sA}, v7")
    for k in range(56): A(f"v_mov_b32 v{vY+k}, 0")
    if ack: A("s_waitcnt vmcnt(0)")
    with skipdry():
        poll([f"buffer_load_dwordx4 {vr(vX,4)}, v12, {sr(S_WS,4)}, s{sD} offen sc1",
              f"buffer_load_dwordx4 {vr(vX+4,4)}, v12, {sr(S_WS,4)}, s{sD} offen offset:2048 sc1",
              f"buffer_load_dwordx4 {vr(vX+8,4)}, v12, {sr(S_WS,4)}, s{sBq} offen sc1",
              f"buffer_load_dwordx4 {vr(vX+12,4)}, v12, {sr(S_WS,4)}, s{sBq} offen offset:2048 sc1"],
             range(vX, vX + 16), 16, spin)
    stamp(3)
    for k in range(4): A(f"v_add_f32 v{16+k}, v{vX+k}, v{vX+4+k}")
    for k in range(4): A(f"v_add_f32 v{20+k}, v{vX+8+k}, v{vX+12+k}")
    for k in range(4): A(f"v_add_f32 v{16+k}, v{16+k}, v{20+k}")
    for k in range(4): A(f"v_mov_b32 v{20+k}, v{16+k}")
    A("s_nop 0")
    for k in range(4): A(f"v_permlane32_swap_b32 v{16+k}, v{20+k}")
    A("s_nop 0")
    for k in range(4): A(f"v_add_f32 v{16+k}, v{16+k}, v{20+k}")
    A("v_cvt_pk_bf16_f32 v20, v16, v17")
    A("v_cvt_pk_bf16_f32 v21, v18, v19")
    A("v_lshlrev_b32 v16, 16, v20")
    A("v_and_b32 v17, 0xffff0000, v20")
    A("v_lshlrev_b32 v18, 16, v21")
    A("v_and_b32 v19, 0xffff0000, v21")
    for k in range(4): A(f"v_add_f32 v{16+k}, v{16+k}, v{70+k}")
    A("v_cvt_pk_bf16_f32 v20, v16, v17")
    A("v_cvt_pk_bf16_f32 v21, v18, v19")
    A("ds_write_b64 v15, v[20:21]")
    for k in range(4): A(f"v_mov_b32 v{16+k}, 0")
    A("s_waitcnt lgkmcnt(0)")
    tbar()
    A("s_mov_b32 exec_hi, 0x00ffffff")
    A("ds_read_b128 v[16:19], v10")
    A("s_mov_b64 exec, -1")
    A("s_waitcnt lgkmcnt(0)")
    layernorm(16, 8, 20, 32, 28, 11, True)
    A("ds_write_b128 v4, v[16:19]")
    A("s_waitcnt lgkmcnt(0)")
    stamp(5, 't')
    for ks in range(8): A(f"ds_read_b128 {vr(vX+4*ks,4)}, v5 offset:{ks*64}")
    for ks in range(14):
        nout = min(14, ks + 8) - ks - 1
        A(f"s_waitcnt lgkmcnt({nout})")
        c = "0" if ks == 0 else "v[16:19]"
        A(f"v_mfma_f32_16x16x32_bf16 v[16:19], {vr(vW1+4*ks,4)}, {vr(vX+4*(ks%8),4)}, {c}")
        if ks + 8 < 14: A(f"ds_read_b128 {vr(vX+4*ks,4)}, v5 offset:{(ks+8)*64}")
    A(f"s_lshl_b32 s{sD}, s{sB}, 5")
    A(f"s_add_u32 s{sD}, s{sD}, s{sF}")
    A(f"s_lshl_b32 s{sD}, s{sD}, 11")
    A(f"s_add_u32 s{sD}, s{sD}, {WS_OB3}")
    A(f"s_mul_i32 s{sA}, s{sW}, 448")
    A(f"s_add_u32 s{sD}, s{sD}, s{sA}")
    A("s_mov_b32 s24, 0x007f007f")
    A("s_mov_b32 s25, 0x007f007f")
    A("v_cvt_pk_bf16_f32 v20, v16, v17")
    A("v_cvt_pk_bf16_f32 v21, v18, v19")
    A("v_lshlrev_b32 v16, 16, v20")
    A("v_and_b32 v17, 0xffff0000, v20")
    A("v_lshlrev_b32 v18, 16, v21")
    A("v_and_b32 v19, 0xffff0000, v21")
    for k in range(4): A(f"v_add_f32 v{16+k}, v{16+k}, v{74+k}")
    A("v_cvt_pk_bf16_f32 v20, v16, v17")
    A("v_cvt_pk_bf16_f32 v21, v18, v19")
    A("v_lshlrev_b32 v16, 16, v20")
    A("v_and_b32 v17, 0xffff0000, v20")
    A("v_lshlrev_b32 v18, 16, v21")
    A("v_and_b32 v19, 0xffff0000, v21")
    for k in range(4): A(f"v_max_f32 v{16+k}, 0, v{16+k}")
    for k in range(4): A(f"v_mul_f32 v{16+k}, v{16+k}, v{16+k}")
    A("v_cvt_pk_bf16_f32 v20, v16, v17")
    A("v_cvt_pk_bf16_f32 v21, v18, v19")
    A("ds_write_b64 v7, v[20:21]")
    A("s_waitcnt lgkmcnt(0)")
    tbar()
    stamp(6, 't')
    for j in range(7):
        A(f"s_lshl_b64 exec, s[26:27], {j}")
        for ks in range(2):
            A(f"ds_read_b128 {vr(vY+4*(2*j+ks),4)}, v6 offset:{ks*64}")
    A("s_mov_b64 exec, -1")
    for q in range(14):
        A(f"s_waitcnt lgkmcnt({13-q})")
        c = "0" if q == 0 else "v[16:19]"
        A(f"v_mfma_f32_16x16x32_bf16 v[16:19], {vr(vW2+4*q,4)}, {vr(vY+4*q,4)}, {c}")
    A("s_mov_b64 exec, s[24:25]")
    A("s_nop 6")
    guard(range(16, 20))
    with skipdry():
        A(f"buffer_store_dwordx4 v[16:19], v8, {sr(S_WS,4)}, s{sD} offen sc1")
    A("s_mov_b64 exec, -1")
    stamp(7, 't')
    A(f"s_cmp_lg_u32 s{sW}, 0")
    A("s_cbranch_scc1 L_fin")
    A("v_lshrrev_b32 v12, 3, v0")
    A("v_lshlrev_b32 v12, 11, v12")
    A("v_and_b32 v13, 7, v0")
    A("v_lshl_add_u32 v12, v13, 3, v12")
    A(f"s_lshl_b32 s{sD}, s{sB}, 16")
    A(f"s_add_u32 s{sD}, s{sD}, {WS_OB3}")
    A(f"s_lshl_b32 s{sA}, s{sF}, 6")
    A(f"s_add_u32 s{sD}, s{sD}, s{sA}")
    for k in range(4): A(f"s_add_u32 s{20+k}, s{sD}, {k*16384}")
    A(f"v_mov_b32 v{vX+6}, 0")
    A(f"v_mov_b32 v{vX+7}, 0")
    A("v_lshlrev_b32 v13, 2, v13")
    A(f"s_lshl_b32 s{sA}, s{sF}, 5")
    A(f"s_add_u32 s{sBq}, s{sA}, {L_H}")
    A(f"v_add_u32 v14, s{sBq}, v13")
    A("ds_read_b32 v28, v14")
    A(f"s_mul_i32 s{sD}, s{sB}, 896")
    A(f"s_add_u32 s{sD}, s{sD}, s{sA}")
    A("s_waitcnt lgkmcnt(0)")
    A("v_lshlrev_b32 v29, 16, v28")
    A("v_and_b32 v28, 0xffff0000, v28")
    if ack: A("s_waitcnt vmcnt(0)")
    loads = [f"buffer_load_dwordx2 {vr(vX+2*k,2)}, v12, {sr(S_WS,4)}, s{20+k} offen sc1" for k in range(3)]
    loads += ["s_mov_b32 exec_hi, 0",
              f"buffer_load_dwordx2 {vr(vX+6,2)}, v12, {sr(S_WS,4)}, s23 offen sc1",
              "s_mov_b64 exec, -1"]
    with skipdry():
        poll(loads, range(vX, vX + 8), 15, spin)
    stamp(4)
    A(f"v_add_f32 v16, v{vX}, v{vX+2}")
    A(f"v_add_f32 v18, v{vX+1}, v{vX+3}")
    A(f"v_add_f32 v17, v{vX+4}, v{vX+6}")
    A(f"v_add_f32 v19, v{vX+5}, v{vX+7}")
    A("v_add_f32 v16, v16, v17")
    A("v_add_f32 v18, v18, v19")
    A("s_nop 0")
    A(f"v_add_f32_dpp v16, v16, v16 row_ror:8 {DPPM}")
    A(f"v_add_f32_dpp v18, v18, v18 row_ror:8 {DPPM}")
    for sw in ("v_permlane16_swap_b32", "v_permlane32_swap_b32"):
        A("v_mov_b32 v17, v16")
        A("v_mov_b32 v19, v18")
        A("s_nop 1")
        A(f"{sw} v16, v17")
        A(f"{sw} v18, v19")
        A("s_nop 1")
        A("v_add_f32 v16, v16, v17")
        A("v_add_f32 v18, v18, v19")
    A("v_cvt_pk_bf16_f32 v16, v16, v18")
    A("v_lshlrev_b32 v17, 16, v16")
    A("v_and_b32 v16, 0xffff0000, v16")
    A("v_add_f32 v17, v17, v78")
    A("v_add_f32 v16, v16, v79")
    A("v_cvt_pk_bf16_f32 v16, v17, v16")
    A("v_lshlrev_b32 v17, 16, v16")
    A("v_and_b32 v16, 0xffff0000, v16")
    A("v_add_f32 v17, v17, v29")
    A("v_add_f32 v16, v16, v28")
    A("v_cvt_pk_bf16_f32 v16, v17, v16")
    A("s_mov_b64 exec, 0xff")
    with skipdry():
        A(f"buffer_store_dword v16, v13, {sr(S_OUT,4)}, s{sD} offen")
    A("s_mov_b64 exec, -1")
    A.lab("L_fin")
    if dry:
        A(f"s_cmp_eq_u32 s{sDRY}, 0")
        A("s_cbranch_scc1 L_fin2")
        A(f"s_mov_b32 s{sDRY}, 0")
        A("s_waitcnt lgkmcnt(0)")
        A("s_branch L_tail")
        A.lab("L_fin2")
    if stamps:
        A("s_waitcnt vmcnt(0)")
        stamp(11)
        if dbgt:
            A("s_waitcnt lgkmcnt(0)")
            A("v_mov_b32 v20, 0")
            A("s_mov_b64 exec, 1")
            A(f"s_not_b32 s{sT1}, s{slot(0)}")
            A(f"v_mov_b32 v21, s{sT1}")
            A(f"buffer_atomic_umax v21, v20, {sr(S_DBG,4)}, 0 offen offset:4 sc1")
            for w_, k in ((2, 0), (3, 9), (5, 1), (6, 2), (7, 11)):
                A(f"v_mov_b32 v{22+w_}, s{slot(k)}")
                A(f"buffer_atomic_umax v{22+w_}, v20, {sr(S_DBG,4)}, 0 offen offset:{4*w_} sc1")
            A("s_mov_b64 exec, -1")
        dump_stamps(12)
        A("s_endpgm")
    A.lab("L_send")
    if stamps:
        dump_stamps(11)
    A.lab("L_end")
    A("s_endpgm")

    tail = []
    tail.append('.section .rodata,"a"')
    tail.append(".p2align 6")
    tail.append(f".amdhsa_kernel {KN}")
    tail.append("  .amdhsa_next_free_vgpr 256")
    tail.append("  .amdhsa_next_free_sgpr 102")
    tail.append("  .amdhsa_accum_offset 256")
    tail.append("  .amdhsa_group_segment_fixed_size 0")
    tail.append("  .amdhsa_kernarg_size 104")
    tail.append("  .amdhsa_user_sgpr_count 2")
    tail.append("  .amdhsa_user_sgpr_kernarg_segment_ptr 1")
    tail.append("  .amdhsa_system_sgpr_workgroup_id_x 1")
    tail.append("  .amdhsa_float_denorm_mode_32 3")
    tail.append(".end_amdhsa_kernel")
    return "\n".join(hdr + A.L + tail) + "\n"

if __name__ == "__main__":
    kw = eval("dict(%s)" % (sys.argv[2] if len(sys.argv) > 2 else ""))
    open(sys.argv[1], "w").write(gen(**kw))
```

```python
import sys, struct

KN = "sequential_preLN__gqa_block_cached__dense_activation_squared_relu__decode_kernel"

def f32(x):
    return struct.unpack("<I", struct.pack("<f", x))[0]

TAG = 0x5A17C0DE
LOG2E_16 = 1.4426950408889634 / 16.0

WS_Q = 0x0
WS_OB1 = 0x10000
WS_ML = 0x90000
WS_OB2 = 0xA0000
WS_OB3 = 0xC0000
WS_SC = 0x140000
WS_ST = 0x600000
WS_SIZE = 0x800000

L_WO = 0
L_W1S = 0
L_W2S = 65536
L_WQ = 0
L_XN = 16384
L_S = 131072
L_QF = L_S
L_PART = L_S + 1024
L_STAT = L_S + 9216
L_F = L_S + 9280
L_FLAG = L_S + 9344
L_OBF = L_S + 9472
L_H = L_S + 10496
L_XN2 = L_S + 11520
L_R2 = L_S + 15616
LDS_SIZE = L_S + 15872

class G:
    def __init__(self):
        self.L = []
        self.nlab = 0
    def __call__(self, s):
        self.L.append("  " + s)
    def lab(self, name):
        self.L.append(name + ":")
    def newlab(self, p="L"):
        self.nlab += 1
        return f"{p}_{self.nlab}"
    def c(self, s):
        self.L.append("  ; " + s)

def vr(a, n=1):
    return f"v{a}" if n == 1 else f"v[{a}:{a+n-1}]"
def sr(a, n=1):
    return f"s{a}" if n == 1 else f"s[{a}:{a+n-1}]"

DPPM = "row_mask:0xf bank_mask:0xf"

def gen(RG0=20, RS=6, stamps=False, spin=1 << 20, dry=False, wpace=6, PP=4, E=8, now=0, kf='nt', vf='nt', wf='', LAG=None, D=3, NPOOL=8, mix=1, ack=1, RSP=4, nowq=0, noext=0, touch=0, dbgt=0):
    A = G()
    hdr = []
    hdr.append(f"; @launch grid=(256,1,1) block=(512,1,1) lds={LDS_SIZE}")
    hdr.append('.amdgcn_target "amdgcn-amd-amdhsa--gfx950"')
    hdr.append(".text")
    hdr.append(f".globl {KN}")
    hdr.append(".p2align 8")
    hdr.append(f".type {KN},@function")
    hdr.append(f"{KN}:")

    S_K, S_V, S_X, S_WQ, S_WO, S_W1, S_B1, S_W2, S_B2, S_OUT, S_DBG, S_WS = [44 + 4 * i for i in range(12)]
    sWAVE = 3
    sHKV, sB, sS, sLID, sI = 4, 5, 6, 7, 8
    sSPIN, sT1, sT2, sDRY = 9, 10, 11, 12
    sF, sC, sCNT = 13, 14, 15
    sA, sBq, sCq, sD = 16, 17, 18, 19
    sEX = 42
    sST = 92

    def slot(idx):
        return sST + 2 * idx if idx < 5 else 28 + 2 * (idx - 5)
    def stamp(idx, grp=None):
        if stamps and (grp is None or grp == stamps):
            A(f"s_memrealtime s[{slot(idx)}:{slot(idx)+1}]")
    def dump_stamps(n):
        A("s_waitcnt lgkmcnt(0)")
        A(f"s_lshl_b32 s{sT1}, s2, 3")
        A(f"s_add_u32 s{sT1}, s{sT1}, s{sWAVE}")
        A(f"s_lshl_b32 s{sT1}, s{sT1}, 6")
        A(f"s_add_u32 s{sT1}, s{sT1}, {WS_ST}")
        A("v_mov_b32 v20, 0")
        A("v_cmp_eq_u32 vcc, 0, v0")
        A(f"s_and_saveexec_b64 s[{sEX}:{sEX+1}], vcc")
        for k in range(n):
            A(f"v_mov_b32 v21, s{slot(k)}")
            A(f"buffer_store_dword v21, v20, {sr(S_WS,4)}, s{sT1} offen offset:{4*k}")

    def srd(dst, ptr, size):
        A(f"s_mov_b32 s{dst}, s{ptr}")
        A(f"s_mov_b32 s{dst+1}, s{ptr+1}")
        A(f"s_mov_b32 s{dst+2}, {hex(size)}")
        A(f"s_mov_b32 s{dst+3}, 0x20000")

    def rbf(v):
        A(f"v_cvt_pk_bf16_f32 v{v}, v{v}, v{v}")
        A(f"v_and_b32 v{v}, 0xffff0000, v{v}")

    def reduce_lanes(v, t, full, op="add"):
        for m in ("quad_perm:[1,0,3,2]", "quad_perm:[2,3,0,1]", "row_half_mirror", "row_mirror"):
            A("s_nop 1")
            A(f"v_{op}_f32_dpp v{v}, v{v}, v{v} {m} {DPPM}")
        sw = ["v_permlane16_swap_b32"] + (["v_permlane32_swap_b32"] if full else [])
        for s_ in sw:
            A(f"v_mov_b32 v{t}, v{v}")
            A("s_nop 1")
            A(f"{s_} v{v}, v{t}")
            A("s_nop 1")
            A(f"v_{op}_f32 v{v}, v{v}, v{t}")

    def tree_add(dst, regs, tmp):
        cur = list(regs); k = 0
        while len(cur) > 1:
            nxt = []
            for a in range(0, len(cur) - 1, 2):
                d = dst if len(cur) == 2 else tmp + k
                if len(cur) != 2: k += 1
                A(f"v_add_f32 v{d}, v{cur[a]}, v{cur[a+1]}")
                nxt.append(d)
            if len(cur) & 1: nxt.append(cur[-1])
            cur = nxt

    def div448(v, t):
        A(f"v_mul_f32 v{t}, {hex(f32(1.0/448.0))}, v{v}")
        A(f"v_fma_f32 v{v}, v{t}, s{sT2}, v{v}")
        A(f"v_fma_f32 v{v}, v{v}, s{sT1}, v{t}")

    def layernorm(src, E, f, d, t, vvalid, full):
        A(f"s_mov_b32 s{sT1}, {hex(f32(1.0/448.0))}")
        A(f"s_mov_b32 s{sT2}, {hex(f32(-448.0))}")
        for k in range(E // 2):
            A(f"v_lshlrev_b32 v{f+2*k}, 16, v{src+k}")
            A(f"v_and_b32 v{f+2*k+1}, 0xffff0000, v{src+k}")
        tree_add(t, range(f, f + E), d)
        reduce_lanes(t, t + 1, full)
        div448(t, t + 1)
        for k in range(E): A(f"v_sub_f32 v{d+k}, v{f+k}, v{t}")
        for k in range(E // 2): A(f"v_mul_f32 v{d+k}, v{d+k}, v{d+k}")
        for k in range(E // 2): A(f"v_fma_f32 v{d+k}, v{d+E//2+k}, v{d+E//2+k}, v{d+k}")
        tree_add(t + 2, range(d, d + E // 2), d + E // 2)
        A(f"v_cvt_pk_bf16_f32 v{t}, v{t}, v{t}")
        A(f"v_mul_f32 v{t+2}, v{t+2}, v{vvalid}")
        A(f"v_and_b32 v{t}, 0xffff0000, v{t}")
        fill = [f"v_sub_f32 v{f+k}, v{f+k}, v{t}" for k in range(E)]
        fill += [f"v_cvt_pk_bf16_f32 v{src+k}, v{f+2*k}, v{f+2*k+1}" for k in range(E // 2)]
        for k in range(E // 2):
            fill.append(f"v_lshlrev_b32 v{f+2*k}, 16, v{src+k}")
            fill.append(f"v_and_b32 v{f+2*k+1}, 0xffff0000, v{src+k}")
        def F(n):
            for _ in range(n):
                if fill: A(fill.pop(0))
                else: A("s_nop 0")
        v = t + 2
        for m in ("quad_perm:[1,0,3,2]", "quad_perm:[2,3,0,1]", "row_half_mirror", "row_mirror"):
            F(2)
            A(f"v_add_f32_dpp v{v}, v{v}, v{v} {m} {DPPM}")
        sw = ["v_permlane16_swap_b32"] + (["v_permlane32_swap_b32"] if full else [])
        for s_ in sw:
            A(f"v_mov_b32 v{t+1}, v{v}")
            F(2)
            A(f"{s_} v{v}, v{t+1}")
            F(2)
            A(f"v_add_f32 v{v}, v{v}, v{t+1}")
        div448(v, t + 1)
        rbf(v)
        A(f"v_add_f32 v{v}, {hex(f32(1e-5))}, v{v}")
        rbf(v)
        A(f"v_sqrt_f32 v{v}, v{v}")
        F(1)
        rbf(v)
        A(f"v_rcp_f32 v{v}, v{v}")
        while fill: A(fill.pop(0))
        A("s_nop 0")
        for k in range(E): A(f"v_mul_f32 v{f+k}, v{f+k}, v{v}")
        for k in range(E // 2):
            A(f"v_cvt_pk_bf16_f32 v{src+k}, v{f+2*k}, v{f+2*k+1}")

    def lds_wait(addr_v, tmp, target, sleep=2):
        lp = A.newlab("L_lw"); dn = A.newlab("L_lwd")
        A(f"s_mov_b32 s{sCNT}, {spin}")
        A.lab(lp)
        A(f"ds_read_b32 v{tmp}, v{addr_v}")
        A("s_waitcnt lgkmcnt(0)")
        A(f"v_cmp_gt_u32 vcc, {target}, v{tmp}")
        A(f"s_cbranch_vccz {dn}")
        if sleep: A(f"s_sleep {sleep}")
        A(f"s_sub_u32 s{sCNT}, s{sCNT}, 1")
        A(f"s_cmp_lg_u32 s{sCNT}, 0")
        A(f"s_cbranch_scc1 {lp}")
        A.lab(dn)

    def lds_inc(addr_v, tmp):
        A(f"v_mov_b32 v{tmp}, 1")
        A("s_mov_b64 exec, 1")
        A(f"ds_add_u32 v{addr_v}, v{tmp}")
        A("s_mov_b64 exec, -1")

    def poll(loads, regs, t0, cnt_src):
        lp = A.newlab("L_p"); dn = A.newlab("L_pd")
        A(f"s_mov_b32 s{sCNT}, {cnt_src}")
        A.lab(lp)
        for x in loads: A(x)
        A("s_waitcnt vmcnt(0)")
        regs = list(regs)
        if len(regs) == 1:
            A(f"v_cmp_eq_u32 vcc, -1, v{regs[0]}")
        else:
            if len(regs) == 2:
                A(f"v_max_u32 v{t0}, v{regs[0]}, v{regs[1]}"); rest = []
            else:
                A(f"v_max3_u32 v{t0}, v{regs[0]}, v{regs[1]}, v{regs[2]}"); rest = regs[3:]
            while rest:
                if len(rest) >= 2:
                    A(f"v_max3_u32 v{t0}, v{t0}, v{rest[0]}, v{rest[1]}"); rest = rest[2:]
                else:
                    A(f"v_max_u32 v{t0}, v{t0}, v{rest[0]}"); rest = rest[1:]
            A(f"v_cmp_eq_u32 vcc, -1, v{t0}")
        A(f"s_cbranch_vccz {dn}")
        A(f"s_sub_u32 s{sCNT}, s{sCNT}, 1")
        A(f"s_cmp_lg_u32 s{sCNT}, 0")
        A(f"s_cbranch_scc1 {lp}")
        A.lab(dn)
    def guard(regs):
        for r in regs: A(f"v_min_u32 v{r}, -2, v{r}")

    A("s_cmp_ge_u32 s2, 256")
    A("s_cbranch_scc1 L_end")
    A("s_load_dwordx16 s[16:31], s[0:1], 0")
    A("s_load_dwordx8 s[32:39], s[0:1], 64")
    A("s_load_dwordx2 s[40:41], s[0:1], 96")
    stamp(0)
    A("v_lshrrev_b32 v1, 6, v0")
    A("v_and_b32 v0, 63, v0")
    A(f"v_readfirstlane_b32 s{sWAVE}, v1")
    A(f"s_lshr_b32 s{sT1}, s2, 3")
    A(f"s_lshr_b32 s{sB}, s{sT1}, 2")
    A(f"s_and_b32 s{sS}, s{sT1}, 3")
    if mix:
        A(f"s_add_u32 s{sT2}, s{sS}, 1")
        A(f"s_mul_i32 s{sT2}, s{sT2}, s{sS}")
        A(f"s_lshr_b32 s{sT2}, s{sT2}, 1")
        A(f"s_sub_u32 s{sHKV}, s2, s{sT2}")
        A(f"s_and_b32 s{sHKV}, s{sHKV}, 7")
    else:
        A(f"s_and_b32 s{sHKV}, s2, 7")
    A(f"s_lshl_b32 s{sI}, s{sHKV}, 2")
    A(f"s_add_u32 s{sI}, s{sI}, s{sS}")
    A(f"s_lshl_b32 s{sLID}, s{sB}, 5")
    A(f"s_add_u32 s{sLID}, s{sLID}, s{sI}")
    A(f"s_add_u32 s{sF}, s{sI}, 3")
    A(f"s_lshr_b32 s{sF}, s{sF}, 3")
    A(f"s_sub_u32 s{sF}, s{sI}, s{sF}")
    A(f"s_and_b32 s{sT2}, s{sI}, 7")
    A(f"s_cmp_eq_u32 s{sT2}, 4")
    A(f"s_cselect_b32 s{sF}, 99, s{sF}")
    A(f"s_mov_b32 s{sC}, {hex(f32(LOG2E_16))}")
    A(f"s_mov_b32 s{sDRY}, 0")
    A("v_and_b32 v2, 15, v0")
    A("v_lshrrev_b32 v3, 4, v0")
    A(f"s_cmp_lt_u32 s{sWAVE}, 4")
    A("s_cbranch_scc1 L_helper")

    vOFF = 1
    vMAX, vL, vNMC = 11, 12, 13
    vT = 14
    vQ = 16
    vO = 32
    vA = 40
    vU = 48
    vSC = 56
    vP = 88
    vRING = 96
    sW = 9
    sBASE, sOFF, sSEL0, sSEL1 = 22, 23, 24, 25
    A.c("stream wave")
    A(f"s_sub_u32 s{sW}, s{sWAVE}, 4")
    A(f"s_lshl_b32 s{sT1}, s{sB}, 3")
    A(f"s_add_u32 s{sT1}, s{sT1}, s{sHKV}")
    A(f"s_lshl_b32 s{sT1}, s{sT1}, 21")
    A(f"s_lshl_b32 s{sT2}, s{sS}, 19")
    A(f"s_add_u32 s{sT1}, s{sT1}, s{sT2}")
    A(f"s_lshl_b32 s{sT2}, s{sW}, 11")
    A(f"s_add_u32 s{sCNT}, s{sT1}, s{sT2}")
    A(f"v_lshlrev_b32 v{vOFF}, 9, v3")
    A(f"v_lshl_add_u32 v{vOFF}, v2, 4, v{vOFF}")
    A("s_waitcnt lgkmcnt(0)")
    srd(S_K, 18, 0x8000000)
    srd(S_V, 20, 0x8000000)
    A(f"s_mov_b32 s{sBASE}, s{sCNT}")

    NG = 64
    NST = 2 * NG - 2 * NPOOL
    vmlog = []
    def after_n(key):
        idx = max(k for k, v in enumerate(vmlog) if v == key)
        return min(63, len(vmlog) - 1 - idx)
    issued = [0]
    L_EXT = 131072 - 4 * E * 2048
    sEXT = 21
    def is_ext(j): return RG0 <= j < RG0 + E
    def slot_of(j):
        assert not is_ext(j)
        return vRING + 8 * ((j if j < RG0 else j - E) % RG0)
    def issue(j):
        s = S_K if j < NG else S_V
        off = (j % NG) * 8192
        out = []
        fl = kf if j < NG else vf
        out.append(f"s_add_u32 s{sOFF}, s{sBASE}, {off}")
        if is_ext(j):
            e = j - RG0
            out.append(f"s_add_u32 m0, s{sEXT}, {e*2048}")
            out.append("s_nop 0")
            out.append(f"buffer_load_dwordx4 v{vOFF}, {sr(s,4)}, s{sOFF} offen {fl} lds")
            out.append(f"s_add_u32 m0, s{sEXT}, {e*2048 + 1024 - 256}")
            out.append("s_nop 0")
            out.append(f"buffer_load_dwordx4 v{vOFF}, {sr(s,4)}, s{sOFF} offen offset:256 {fl} lds")
        else:
            r = slot_of(j)
            out.append(f"buffer_load_dwordx4 {vr(r,4)}, v{vOFF}, {sr(s,4)}, s{sOFF} offen {fl}")
            out.append(f"buffer_load_dwordx4 {vr(r+4,4)}, v{vOFF}, {sr(s,4)}, s{sOFF} offen offset:256 {fl}")
        issued[0] = j + 1
        vmlog.append(("g", j)); vmlog.append(("g", j))
        return out
    A(f"s_mul_i32 s{sEXT}, s{sW}, {E*2048}")
    A(f"s_add_u32 s{sEXT}, s{sEXT}, {L_EXT}")
    for j in range(RSP):
        for x in issue(j): A(x)
    if touch:
        A("s_mov_b64 exec, 1")
        A(f"buffer_load_dword v9, v{vOFF}, {sr(S_V,4)}, s{sBASE} offen {vf}")
        A("s_mov_b64 exec, -1")
        vmlog.append(("touch", 0))
    srd(S_WS, 40, WS_SIZE)
    A("v_and_b32 v8, 7, v2")
    A("v_and_b32 v11, 1, v8")
    A("v_mov_b32 v12, 0xffff")
    A("v_lshlrev_b32 v11, 4, v11")
    A("v_lshlrev_b32 v12, v11, v12")
    A("v_lshrrev_b32 v11, 1, v8")
    for k in range(4):
        A(f"v_cmp_eq_u32 vcc, {k}, v11")
        A("s_nop 1")
        A(f"v_cndmask_b32 v{4+k}, 0, v12, vcc")
    A(f"s_mov_b32 s{sSEL0}, 0x01000100")
    A(f"s_mov_b32 s{sSEL1}, 0x03020302")
    A("s_barrier")
    for j in range(RSP, RG0 + E):
        A(f"s_waitcnt vmcnt({2*(RSP-1)})")
        if j == RSP: stamp(5)
        if j == 16: stamp(6)
        for x in issue(j): A(x)
    A("v_lshlrev_b32 v8, 4, v0")
    A(f"v_add_u32 v8, s{sEXT}, v8")
    for k in range(8): A(f"v_mov_b32 v{vO+k}, 0")
    A(f"v_mov_b32 v{vMAX}, 0xff800000")
    A(f"v_mov_b32 v{vL}, 0")
    A(f"v_lshrrev_b32 v{vT}, 3, v2")
    A(f"v_lshlrev_b32 v{vT}, 9, v{vT}")
    A(f"v_lshl_add_u32 v{vT}, v2, 4, v{vT}")
    A(f"v_xor_b32 v{vT+1}, 512, v{vT}")
    A(f"v_add_u32 v{vT}, {L_QF}, v{vT}")
    A(f"v_add_u32 v{vT+1}, {L_QF}, v{vT+1}")
    stamp(4)
    A("s_barrier")
    stamp(1)
    A(f"ds_read_b128 {vr(vQ,4)}, v{vT}")
    A(f"ds_read_b128 {vr(vQ+4,4)}, v{vT} offset:256")
    A(f"ds_read_b128 {vr(vQ+8,4)}, v{vT+1}")
    A(f"ds_read_b128 {vr(vQ+12,4)}, v{vT+1} offset:256")
    A("s_waitcnt lgkmcnt(0)")

    if LAG is None: LAG = RS + 2
    consumed = set()
    nstep = [0]
    def prev_occupant(j):
        if j < RG0: return None
        return j - RG0 - E if j - RG0 - E < RG0 and j < 2 * RG0 + E else j - RG0
    def after_step(groups):
        out = []
        for g_ in groups: consumed.add(g_)
        nstep[0] += 1
        lag = issued[0] - len(consumed)
        if lag >= LAG:
            want = len(groups) if nstep[0] * len(groups) <= RS else max(1, len(groups) // 2) if len(groups) > 1 else (nstep[0] & 1)
        else:
            want = LAG - lag
        for _ in range(want):
            j = issued[0]
            if j >= NST: break
            if prev_occupant(j) not in consumed: break
            assert slot_of(prev_occupant(j)) == slot_of(j)
            out.append(f"s_waitcnt vmcnt({2*(RS-1)})")
            out += issue(j)
        return out

    def merge(X, Y, every=3):
        out = []; yi = 0
        for k, x in enumerate(X):
            out.append(x)
            if (k + 1) % every == 0 and yi < len(Y):
                out.append(Y[yi]); yi += 1
        assert yi == len(Y)
        return out

    Yprev = []
    regp = [p for p in range(NG // 2) if not is_ext(2 * p)]
    extp = [p for p in range(NG // 2) if is_ext(2 * p)]
    order = []
    for k, p in enumerate(regp):
        order.append(p)
        if k >= 1 and extp: order.append(extp.pop(0))
    next_ext = [p for p in order if is_ext(2 * p)]
    def ext_read(p):
        e = 2 * p - RG0
        return [f"ds_read_b128 {vr(vA,4)}, v8 offset:{e*2048}",
                f"ds_read_b128 {vr(vA+4,4)}, v8 offset:{e*2048+1024}",
                f"ds_read_b128 {vr(vP,4)}, v8 offset:{e*2048+2048}",
                f"ds_read_b128 {vr(vP+4,4)}, v8 offset:{e*2048+3072}"]
    for oi, p in enumerate(order):
        ga, gb = 2 * p, 2 * p + 1
        ub = vU + 4 * (oi & 1)
        ua_, wa_, ub_, wb_ = ub, ub + 1, ub + 2, ub + 3
        if is_ext(ga):
            ra, rb = vA, vP
            A("s_waitcnt lgkmcnt(0)")
        else:
            ra, rb = slot_of(ga), slot_of(gb)
            assert issued[0] > gb
            n_after = after_n(("g", gb))
            nxt = order[oi + 1] if oi + 1 < len(order) else None
            if nxt is not None and is_ext(2 * nxt):
                n_after = min(n_after, after_n(("g", 2 * nxt + 1)))
                A(f"s_waitcnt vmcnt({n_after})")
                for x in ext_read(nxt): A(x)
            else:
                A(f"s_waitcnt vmcnt({n_after})")
        X = []
        for e in range(8):
            for (acc, r, q) in ((ua_, ra, vQ + e), (wa_, ra, vQ + 8 + e), (ub_, rb, vQ + e), (wb_, rb, vQ + 8 + e)):
                src2 = "0" if e == 0 else f"v{acc}"
                X.append(f"v_dot2_f32_bf16 v{acc}, v{r+e}, v{q}, {src2}")
        for x in merge(X, Yprev): A(x)
        for x in after_step([ga, gb]): A(x)
        if E and p == next_ext[-1]:
            A(f"v_mov_b32 v8, {L_FLAG+20}")
            lds_inc(8, 9)
        Y = []
        Y.append(f"v_add_f32_dpp v{ua_}, v{wa_}, v{ua_} row_ror:8 {DPPM}")
        Y.append(f"v_add_f32_dpp v{ub_}, v{wb_}, v{ub_} row_ror:8 {DPPM}")
        for m in ("quad_perm:[1,0,3,2]", "quad_perm:[2,3,0,1]", "row_half_mirror"):
            Y.append(f"v_add_f32_dpp v{ua_}, v{ua_}, v{ua_} {m} {DPPM}")
            Y.append(f"v_add_f32_dpp v{ub_}, v{ub_}, v{ub_} {m} {DPPM}")
        Y.append(f"v_cvt_pk_bf16_f32 v{vSC+p}, v{ua_}, v{ub_}")
        Y.append(f"v_max3_f32 v{vMAX}, v{ua_}, v{ub_}, v{vMAX}")
        Yprev = Y
    A("s_nop 2")
    for y in Yprev:
        A(y); A("s_nop 1")
    for s_ in ("v_permlane16_swap_b32", "v_permlane32_swap_b32"):
        A(f"v_mov_b32 v{vT}, v{vMAX}")
        A("s_nop 1")
        A(f"{s_} v{vMAX}, v{vT}")
        A("s_nop 1")
        A(f"v_max_f32 v{vMAX}, v{vMAX}, v{vT}")
    rbf(vMAX)
    A(f"v_mul_f32 v{vNMC}, s{sC}, v{vMAX}")
    A(f"v_sub_f32 v{vNMC}, 0, v{vNMC}")
    stamp(2)

    def ppair(pi):
        sc = vSC + pi
        a, b = vP + 2, vP + 3
        return [f"v_lshlrev_b32 v{a}, 16, v{sc}",
                f"v_and_b32 v{b}, 0xffff0000, v{sc}",
                f"v_fma_f32 v{a}, v{a}, s{sC}, v{vNMC}",
                f"v_fma_f32 v{b}, v{b}, s{sC}, v{vNMC}",
                f"v_exp_f32 v{a}, v{a}",
                f"v_exp_f32 v{b}, v{b}",
                f"v_add_f32 v{vL}, v{vL}, v{a}",
                f"v_cvt_pk_bf16_f32 v{sc}, v{a}, v{b}",
                f"v_add_f32 v{vL}, v{vL}, v{b}"]
    def abuild(i):
        a = vA + 4 * (i & 1)
        t = vP + (i & 1)
        sc = vSC + (i >> 1)
        out = [f"v_perm_b32 v{t}, v{sc}, v{sc}, s{sSEL1 if i & 1 else sSEL0}"]
        for k in range(4): out.append(f"v_and_b32 v{a+k}, v{4+k}, v{t}")
        return out
    assert NPOOL % 4 == 0 and NPOOL <= 16
    A("v_lshrrev_b32 v16, 3, v2")
    A("v_lshl_add_u32 v16, v3, 1, v16")
    A("v_lshlrev_b32 v16, 6, v16")
    A(f"s_lshl_b32 s{sT1}, s{sLID}, 11")
    A(f"s_lshl_b32 s{sT2}, s{sW}, 9")
    A(f"s_add_u32 s{sT1}, s{sT1}, s{sT2}")
    A(f"s_add_u32 s{sT1}, s{sT1}, {WS_SC}")
    A("s_mov_b32 exec_lo, 0x01010101")
    A("s_mov_b32 exec_hi, 0x01010101")
    for k in range(NPOOL // 4):
        A(f"buffer_store_dwordx4 {vr(vSC+32-NPOOL+4*k,4)}, v16, {sr(S_WS,4)}, s{sT1} offen offset:{16*k} sc1")
        vmlog.append(("st", 0))
    A("s_mov_b64 exec, -1")
    NR = D + 1
    vAT = 48
    vS = 20
    assert NR <= 8
    vZ = 17
    sTK = 26
    sGV = 27
    sGS = 28 if not stamps else 18
    sSELP = 72
    sTKT, sA0, sA1 = 68, 69, 70
    A(f"v_mov_b32 v{vZ}, 0")
    A(f"s_andn2_b32 s{sT1}, s{sLID}, 3")
    A(f"s_lshl_b32 s{sTK}, s{sT1}, 7")
    A(f"s_add_u32 s{sTK}, s{sTK}, {WS_ML + 112}")
    A(f"s_lshl_b32 s{sGS}, s{sT1}, 11")
    A(f"s_add_u32 s{sGS}, s{sGS}, {WS_SC}")
    A(f"s_lshl_b32 s{sGV}, s{sB}, 3")
    A(f"s_add_u32 s{sGV}, s{sGV}, s{sHKV}")
    A(f"s_lshl_b32 s{sGV}, s{sGV}, 21")
    A(f"s_add_u32 s{sGV}, s{sGV}, {(NG - 2*NPOOL) * 8192}")
    dslot = [slot_of(NST - RG0 + k) for k in range(2 * NR)]
    dprev = [NST - RG0 + k for k in range(2 * NR)]
    def atomic(k):
        vmlog.append(("at", k))
        return [f"v_mov_b32 v{vAT + k % NR}, 1",
                "s_mov_b64 exec, 1",
                f"buffer_atomic_add v{vAT + k % NR}, v{vZ}, {sr(S_WS,4)}, s{sTK} offen sc0 sc1",
                "s_mov_b64 exec, -1"]
    def ticket_read(k):
        return [f"v_readfirstlane_b32 s{sTKT}, v{vAT + (k - (D-1)) % NR}", "s_nop 3", f"s_add_u32 s{sTKT}, s{sTKT}, 1"]
    def dissue(k, guard):
        pos = k % NR
        o = []
        o.append(f"s_lshr_b32 s{sA0}, s{sTKT}, 4")
        o.append(f"s_and_b32 s{sA1}, s{sTKT}, 15")
        o.append(f"s_lshl_b32 s{sOFF}, s{sA1}, 9")
        o.append(f"s_lshl2_add_u32 s{sOFF}, s{sA0}, s{sOFF}")
        o.append(f"s_add_u32 s{sOFF}, s{sOFF}, s{sGS}")
        o.append(f"s_lshl_b32 s{sA0}, s{sA0}, 14")
        o.append(f"s_add_u32 s{sA0}, s{sA0}, s{sGV}")
        o.append(f"s_and_b32 s{sT1}, s{sA1}, 3")
        o.append(f"s_lshl_b32 s{sT1}, s{sT1}, 11")
        o.append(f"s_add_u32 s{sA0}, s{sA0}, s{sT1}")
        o.append(f"s_lshr_b32 s{sA1}, s{sA1}, 2")
        o.append(f"s_lshl_b32 s{sA1}, s{sA1}, 19")
        o.append(f"s_add_u32 s{sA0}, s{sA0}, s{sA1}")
        if guard:
            o.append(f"s_cmp_lt_u32 s{sTKT}, {16*NPOOL}")
            o.append(f"s_cselect_b32 s{sA0}, s{sA0}, 0x7ff00000")
            o.append(f"s_cselect_b32 s{sOFF}, s{sOFF}, 0x7ff00000")
            o.append(f"s_cselect_b32 s{sSELP+2*pos}, s{sSEL0}, 0x0c0c0c0c")
            o.append(f"s_cselect_b32 s{sSELP+2*pos+1}, s{sSEL1}, 0x0c0c0c0c")
        else:
            o.append(f"s_mov_b32 s{sSELP+2*pos}, s{sSEL0}")
            o.append(f"s_mov_b32 s{sSELP+2*pos+1}, s{sSEL1}")
        o.append(f"s_add_u32 s{sA1}, s{sA0}, 8192")
        o += atomic(k)
        o.append(f"buffer_load_dword v{vS+pos}, v16, {sr(S_WS,4)}, s{sOFF} offen sc1")
        ra, rb = dslot[2*pos], dslot[2*pos+1]
        o.append(f"buffer_load_dwordx4 {vr(ra,4)}, v{vOFF}, {sr(S_V,4)}, s{sA0} offen {vf}")
        o.append(f"buffer_load_dwordx4 {vr(ra+4,4)}, v{vOFF}, {sr(S_V,4)}, s{sA0} offen offset:256 {vf}")
        o.append(f"buffer_load_dwordx4 {vr(rb,4)}, v{vOFF}, {sr(S_V,4)}, s{sA1} offen {vf}")
        o.append(f"buffer_load_dwordx4 {vr(rb+4,4)}, v{vOFF}, {sr(S_V,4)}, s{sA1} offen offset:256 {vf}")
        for _ in range(5): vmlog.append(("d", k))
        return o
    def dconsume(k):
        pos = k % NR
        sc = vS + pos
        a, b = vP + 2, vP + 3
        ra, rb = dslot[2*pos], dslot[2*pos+1]
        o = [f"v_lshlrev_b32 v{a}, 16, v{sc}",
             f"v_and_b32 v{b}, 0xffff0000, v{sc}",
             f"v_fma_f32 v{a}, v{a}, s{sC}, v{vNMC}",
             f"v_fma_f32 v{b}, v{b}, s{sC}, v{vNMC}",
             f"v_exp_f32 v{a}, v{a}",
             f"v_exp_f32 v{b}, v{b}",
             "s_nop 0",
             f"v_cvt_pk_bf16_f32 v{a}, v{a}, v{b}",
             f"v_perm_b32 v{vP}, v{a}, v{a}, s{sSELP+2*pos}",
             f"v_perm_b32 v{vP+1}, v{a}, v{a}, s{sSELP+2*pos+1}"]
        for k_ in range(4): o.append(f"v_and_b32 v{vA+k_}, v{4+k_}, v{vP}")
        for k_ in range(4): o.append(f"v_and_b32 v{vA+4+k_}, v{4+k_}, v{vP+1}")
        o.append(f"v_mfma_f32_16x16x32_bf16 {vr(vO,4)}, {vr(vA,4)}, {vr(ra,4)}, {vr(vO,4)}")
        o.append(f"v_mfma_f32_16x16x32_bf16 {vr(vO+4,4)}, {vr(vA,4)}, {vr(ra+4,4)}, {vr(vO+4,4)}")
        o.append(f"v_mfma_f32_16x16x32_bf16 {vr(vO,4)}, {vr(vA+4,4)}, {vr(rb,4)}, {vr(vO,4)}")
        o.append(f"v_mfma_f32_16x16x32_bf16 {vr(vO+4,4)}, {vr(vA+4,4)}, {vr(rb+4,4)}, {vr(vO+4,4)}")
        return o

    for x in ppair(0): A(x)
    for x in abuild(0): A(x)
    nextp = [1]
    LDONE = (31 + PP - 1) // PP - 1
    NV = NST - NG
    first_dyn_i = NV - LAG
    ev = {}
    for n_, k in enumerate(range(-(D-1), 0)):
        ev.setdefault(first_dyn_i - 2 * (D - 1) + 2 * n_, []).append(("at", k))
    for k in range(D):
        ev.setdefault(min(NV - 1, first_dyn_i + (2 * k * 3) // D), []).append(("d", k))
    for i in range(NV):
        gi = NG + i
        r = slot_of(gi)
        a = vA + 4 * (i & 1)
        assert issued[0] > gi
        if nextp[0] < 32:
            for _ in range(PP):
                if nextp[0] < 32:
                    for x in ppair(nextp[0]): A(x)
                    nextp[0] += 1
        else:
            A("s_nop 0")
        A(f"s_waitcnt vmcnt({after_n(('g', gi))})")
        A(f"v_mfma_f32_16x16x32_bf16 {vr(vO,4)}, {vr(a,4)}, {vr(r,4)}, {vr(vO,4)}")
        A(f"v_mfma_f32_16x16x32_bf16 {vr(vO+4,4)}, {vr(a,4)}, {vr(r+4,4)}, {vr(vO+4,4)}")
        for x in after_step([gi]): A(x)
        if i == 16: stamp(9)
        if i == 32: stamp(10)
        for (kind, k) in ev.get(i, []):
            if kind == "at":
                for x in atomic(k): A(x)
            else:
                assert issued[0] == NST
                assert dprev[2*(k%NR)] in consumed and dprev[2*(k%NR)+1] in consumed
                if k == 0:
                    A(f"v_mov_b32 v18, {L_FLAG+4}")
                    lds_wait(18, 19, 1)
                    A("ds_read_b32 v28, v29")
                    A("ds_read_b32 v30, v31")
                A(f"s_waitcnt vmcnt({min(after_n(('at', k-(D-1))), 2*(RS-1))})")
                for x in ticket_read(k): A(x)
                if k == 0: A(f"s_mov_b32 s71, s{sTKT}")
                for x in dissue(k, True): A(x)
        if i + 1 < NV:
            for x in abuild(i + 1): A(x)
        if i == LDONE:
            assert nextp[0] == 32
            for s_ in ("v_permlane16_swap_b32", "v_permlane32_swap_b32"):
                A(f"v_mov_b32 v{vT}, v{vL}")
                A("s_nop 1")
                A(f"{s_} v{vL}, v{vT}")
                A("s_nop 1")
                A(f"v_add_f32 v{vL}, v{vL}, v{vT}")
            A(f"v_and_b32 v{vT}, 8, v2")
            A(f"s_lshl_b32 s{sT1}, s{sW}, 4")
            A(f"s_add_u32 s{sT1}, s{sT1}, {L_STAT}")
            A(f"v_add_u32 v{vT}, s{sT1}, v{vT}")
            A(f"v_mov_b32 v{vP+4}, v{vMAX}")
            A(f"v_mov_b32 v{vP+5}, v{vL}")
            A(f"ds_write_b64 v{vT}, {vr(vP+4,2)}")
            A(f"v_mov_b32 v{vT}, {L_FLAG}")
            A(f"s_waitcnt vmcnt({after_n(('st', 0))})")
            lds_inc(vT, vT + 1)
            A("v_lshrrev_b32 v10, 1, v3")
            A("v_lshlrev_b32 v29, 2, v10")
            A("v_lshlrev_b32 v10, 10, v10")
            A("v_lshl_add_u32 v10, v2, 5, v10")
            A("v_and_b32 v18, 1, v3")
            A("v_lshl_add_u32 v10, v18, 4, v10")
            A(f"s_lshl_b32 s{sT1}, s{sW}, 11")
            A(f"s_add_u32 s{sT1}, s{sT1}, {L_PART}")
            A(f"v_add_u32 v10, s{sT1}, v10")
            A(f"s_lshl_b32 s{sT1}, s{sW}, 3")
            A(f"s_add_u32 s{sT1}, s{sT1}, {L_F}")
            A(f"v_add_u32 v29, s{sT1}, v29")
            A("v_lshrrev_b32 v31, 3, v2")
            A("v_lshlrev_b32 v31, 2, v31")
            A(f"v_add_u32 v31, {L_F+32}, v31")
    stamp(7)
    A("s_waitcnt lgkmcnt(0)")
    A(f"v_mov_b32 v{vNMC}, v30")
    A("s_nop 5")
    for k in range(8): A(f"v_mul_f32 v{vO+k}, v{vO+k}, v28")
    A(f"s_cmp_ge_u32 s71, {16*NPOOL}")
    A("s_cbranch_scc1 L_vdone")
    pat = []
    for k in range(1, D): pat += [("at", k)] + [("d", k)] * 5
    assert vmlog[-len(pat):] == pat, vmlog[-20:]
    WN = 6 * D - 7
    A.lab("L_dloop")
    for u in range(NR):
        k = D + u
        A(f"s_waitcnt vmcnt({WN})")
        for x in ticket_read(k): A(x)
        A(f"s_cmp_ge_u32 s{sTKT}, {16*NPOOL}")
        A(f"s_cbranch_scc1 L_drain{u}")
        for x in dissue(k, False): A(x)
        for x in dconsume(k - D): A(x)
    A("s_branch L_dloop")
    for u in range(NR):
        k = D + u
        A.lab(f"L_drain{u}")
        for n_ in range(D):
            if n_ > 0: A(f"s_waitcnt vmcnt({6*(D-1-n_)})")
            for x in dconsume(k - D + n_): A(x)
        if u < NR - 1: A("s_branch L_vdone")
    A.lab("L_vdone")
    A("s_nop 7")
    A(f"ds_write_b128 v10, {vr(vO,4)}")
    A(f"ds_write_b128 v10, {vr(vO+4,4)} offset:512")
    A("s_waitcnt vmcnt(0) lgkmcnt(0)")
    stamp(3)
    A("s_barrier")
    A("s_branch L_t3pre")

    A.lab("L_helper")
    sW = sWAVE
    vTH = 1
    vX = 32
    vY = 80
    vW1 = 144
    vW2 = 200
    A(f"s_lshl_b32 s{sT1}, s{sW}, 6")
    A(f"v_add_u32 v{vTH}, s{sT1}, v0")
    A(f"s_lshl_b32 s{sT2}, s{sI}, 3")
    A(f"s_add_u32 s{sT2}, s{sT2}, s{sB}")
    A("s_waitcnt lgkmcnt(0)")
    srd(S_WS, 40, WS_SIZE)
    srd(S_WQ, 22, 448 * 8192)
    srd(S_DBG, 38, 256)
    A(f"s_cmp_eq_u32 s{sW}, 0")
    A("s_cbranch_scc1 L_h0")
    A(f"s_cmp_eq_u32 s{sW}, 3")
    A("s_cbranch_scc1 L_h3")
    srd(S_X, 16, 7168)
    A("v_and_b32 v8, 31, v0")
    A("v_lshrrev_b32 v9, 5, v0")
    A("v_mul_u32_u24 v9, 896, v9")
    A("v_lshl_add_u32 v9, v8, 5, v9")
    A("v_cmp_gt_u32 vcc, 28, v8")
    A("v_mov_b32 v10, 0x7fffff00")
    A(f"s_sub_u32 s{sA}, s{sW}, 1")
    A(f"s_mul_i32 s{sA}, s{sA}, 3584")
    A("v_cndmask_b32 v10, v10, v9, vcc")
    A("v_mov_b32 v15, 1.0")
    A("v_cndmask_b32 v15, 0, v15, vcc")
    A(f"buffer_load_dwordx4 v[16:19], v10, {sr(S_X,4)}, s{sA} offen")
    A(f"buffer_load_dwordx4 v[20:23], v10, {sr(S_X,4)}, s{sA} offen offset:16")
    A(f"buffer_load_dwordx4 v[24:27], v10, {sr(S_X,4)}, s{sA} offen offset:1792")
    A(f"buffer_load_dwordx4 v[28:31], v10, {sr(S_X,4)}, s{sA} offen offset:1808")
    A("v_mov_b32 v12, 0")
    A(f"v_lshlrev_b32 v13, 2, v2")
    A(f"v_add_u32 v13, {L_FLAG}, v13")
    A("ds_write_b32 v13, v12")
    A(f"s_add_u32 s{sA}, s{sA}, {L_XN}")
    A(f"v_add_u32 v9, s{sA}, v9")
    A("s_waitcnt lgkmcnt(0)")
    A("s_barrier")
    A("s_waitcnt vmcnt(0)")
    stamp(5, 'q')
    keep = A.L; A.L = []
    layernorm(16, 16, 32, 48, 64, 15, False); l1 = A.L; A.L = []
    layernorm(24, 16, 80, 96, 112, 15, False); l2 = A.L; A.L = keep
    assert len(l1) == len(l2)
    for x, y in zip(l1, l2):
        if x.strip().startswith("s_nop"):
            A.L.append("  s_nop 0")
        elif x.strip().startswith("s_mov"):
            A.L.append(x)
        else:
            A.L.append(x); A.L.append(y)
    A("v_cmp_lt_f32 vcc, 0, v15")
    A(f"s_and_saveexec_b64 s[{sEX}:{sEX+1}], vcc")
    A("ds_write_b128 v9, v[16:19]")
    A("ds_write_b128 v9, v[20:23] offset:16")
    A("ds_write_b128 v9, v[24:27] offset:1792")
    A("ds_write_b128 v9, v[28:31] offset:1808")
    A(f"s_mov_b64 exec, s[{sEX}:{sEX+1}]")
    A(f"v_mov_b32 v9, {L_FLAG+16}")
    lds_inc(9, 10)
    stamp(6, 'q')
    A("s_branch L_hb2")

    A.lab("L_h0")
    A("v_lshrrev_b32 v13, 1, v0")
    A("v_lshlrev_b32 v13, 13, v13")
    A("v_and_b32 v14, 1, v0")
    A("v_lshl_add_u32 v13, v14, 4, v13")
    A(f"s_lshl_b32 s{sT1}, s{sT2}, 5")
    for i in range(14):
        A(f"s_mov_b32 m0, {L_WQ + i*1024}")
        A(f"s_add_u32 s{sCNT}, s{sT1}, {i*32*8192}")
        if not nowq: A(f"buffer_load_dwordx4 v13, {sr(S_WQ,4)}, s{sCNT} offen {wf} lds")
    A("s_barrier")
    A("v_lshrrev_b32 v12, 2, v2")
    A("v_lshl_add_u32 v12, v3, 3, v12")
    A("v_lshlrev_b32 v12, 5, v12")
    A("v_and_b32 v13, 3, v2")
    A("v_lshl_add_u32 v12, v13, 3, v12")
    A("v_and_b32 v13, 7, v2")
    A("v_mul_u32_u24 v13, 896, v13")
    A("v_lshl_add_u32 v13, v3, 4, v13")
    A("v_lshlrev_b32 v14, 13, v2")
    A("v_lshl_add_u32 v14, v3, 3, v14")
    A("s_waitcnt vmcnt(0)")
    stamp(5, 'q')
    for kk in range(14):
        r = 80 + 4 * kk
        A(f"ds_read_b64_tr_b16 {vr(r,2)}, v12 offset:{L_WQ + kk*1024}")
        A(f"ds_read_b64_tr_b16 {vr(r+2,2)}, v12 offset:{L_WQ + kk*1024+128}")
        if kk == 6: A("s_waitcnt lgkmcnt(0)")
    A("s_waitcnt lgkmcnt(0)")
    A(f"v_mov_b32 v15, {L_FLAG+16}")
    lds_wait(15, 16, 3, sleep=0)
    stamp(6, 'q')
    for kk in range(14):
        A(f"ds_read_b128 {vr(144+4*kk,4)}, v13 offset:{L_XN + kk*64}")
    for kk in range(14):
        A(f"s_waitcnt lgkmcnt({13-kk})")
        c = "0" if kk == 0 else "v[24:27]"
        A(f"v_mfma_f32_16x16x32_bf16 v[24:27], {vr(80+4*kk,4)}, {vr(144+4*kk,4)}, {c}")
    A("s_mov_b32 exec_lo, 0x00ff00ff")
    A("s_mov_b32 exec_hi, 0x00ff00ff")
    A("s_nop 5")
    A("v_cvt_pk_bf16_f32 v28, v24, v25")
    A("v_cvt_pk_bf16_f32 v29, v26, v27")
    guard([28, 29])
    A(f"buffer_store_dwordx2 v[28:29], v14, {sr(S_WS,4)}, s{sT1} offen sc1")
    A("s_mov_b64 exec, -1")
    stamp(7, 'q')
    A("s_branch L_hb2")

    A.lab("L_h3")
    for k in range(4): A(f"v_mov_b32 v{24+k}, -1")
    A("v_lshrrev_b32 v14, 1, v0")
    A("v_lshlrev_b32 v14, 13, v14")
    A("v_and_b32 v15, 1, v0")
    A("v_lshl_add_u32 v14, v15, 4, v14")
    A(f"s_lshl_b32 s{sT1}, s{sT2}, 5")
    A("s_mov_b64 exec, 0xffff")
    A(f"buffer_store_dwordx4 v[24:27], v14, {sr(S_WS,4)}, s{sT1} offen sc1")
    A("s_mov_b64 exec, -1")
    A("v_lshlrev_b32 v14, 4, v0")
    A(f"s_lshl_b32 s{sA}, s{sLID}, 7")
    A(f"s_add_u32 s{sA}, s{sA}, {WS_ML}")
    A("s_mov_b64 exec, 0xff")
    A(f"buffer_store_dwordx4 v[24:27], v14, {sr(S_WS,4)}, s{sA} offen sc1")
    A("s_mov_b64 exec, -1")
    A(f"s_lshl_b32 s{sT1}, s{sLID}, 11")
    A(f"s_add_u32 s{sT1}, s{sT1}, {WS_OB1}")
    for k in range(2):
        A(f"buffer_store_dwordx4 v[24:27], v14, {sr(S_WS,4)}, s{sT1} offen offset:{k*1024} sc1")
    A(f"s_lshl_b32 s{sT1}, s{sLID}, 9")
    A(f"s_add_u32 s{sT1}, s{sT1}, {WS_OB2}")
    A("s_mov_b32 exec_hi, 0")
    A(f"buffer_store_dwordx4 v[24:27], v14, {sr(S_WS,4)}, s{sT1} offen sc1")
    A("s_mov_b64 exec, -1")
    lab = A.newlab("L_noclr3")
    A(f"s_cmp_ge_u32 s{sF}, 28")
    A(f"s_cbranch_scc1 {lab}")
    A(f"s_lshl_b32 s{sT1}, s{sB}, 5")
    A(f"s_add_u32 s{sT1}, s{sT1}, s{sF}")
    A(f"s_lshl_b32 s{sT1}, s{sT1}, 11")
    A(f"s_add_u32 s{sT1}, s{sT1}, {WS_OB3}")
    for k in range(2):
        A(f"buffer_store_dwordx4 v[24:27], v14, {sr(S_WS,4)}, s{sT1} offen offset:{k*1024} sc1")
    A.lab(lab)
    A("s_barrier")
    A("v_mov_b32 v12, 1")
    A("v_mov_b32 v13, 0")
    A("v_mov_b32 v15, 1")
    A(f"s_lshl_b32 s{sD}, s{sHKV}, 5")
    A("v_lshrrev_b32 v16, 2, v0")
    A("v_lshlrev_b32 v16, 5, v16")
    A("v_and_b32 v17, 3, v0")
    A("v_add_u32 v16, v16, v17")
    A("v_lshlrev_b32 v16, 7, v16")
    A("v_lshlrev_b32 v17, 7, v0")
    A("s_waitcnt vmcnt(0)")
    stamp(5, 'q')
    A("s_mov_b64 exec, 1")
    A(f"buffer_atomic_add v12, v13, {sr(S_DBG,4)}, s{sD} offen sc0 sc1")
    A("s_mov_b64 exec, -1")
    A(f"v_mov_b32 v18, {L_FLAG+16}")
    lds_inc(18, 19)
    A("s_waitcnt vmcnt(0)")
    A(f"v_readfirstlane_b32 s{sBq}, v12")
    A("s_nop 3")
    A(f"s_and_b32 s{sBq}, s{sBq}, 31")
    A(f"s_cmp_lg_u32 s{sBq}, 31")
    A("s_cbranch_scc1 L_notlast")
    A(f"s_lshl_b32 s{sD}, s{sHKV}, 9")
    A(f"s_add_u32 s{sD}, s{sD}, {WS_ML+64}")
    A("s_mov_b32 exec_hi, 0")
    A(f"buffer_store_dword v15, v16, {sr(S_WS,4)}, s{sD} offen sc1")
    A("v_mov_b32 v12, 1")
    A("s_mov_b64 exec, 1")
    A(f"buffer_atomic_add v12, v13, {sr(S_DBG,4)}, 0 offen offset:16 sc0 sc1")
    A("s_mov_b64 exec, -1")
    A("s_waitcnt vmcnt(0)")
    A(f"v_readfirstlane_b32 s{sBq}, v12")
    A("s_nop 3")
    A(f"s_and_b32 s{sBq}, s{sBq}, 7")
    A(f"s_cmp_lg_u32 s{sBq}, 7")
    A("s_cbranch_scc1 L_notlast")
    for k in range(4):
        A(f"s_mov_b32 s{sD}, {WS_ML + 96 + k*8192}")
        A(f"buffer_store_dword v15, v17, {sr(S_WS,4)}, s{sD} offen sc1")
    A.lab("L_notlast")
    stamp(6, 'q')
    poll([f"buffer_load_dword v18, v13, {sr(S_WS,4)}, s{sA} offen offset:64 sc1"], [18], 19, spin)
    stamp(7, 'q')
    A(f"s_lshl_b32 s{sD}, s{sB}, 13")
    A(f"s_lshl_b32 s{sBq}, s{sHKV}, 10")
    A(f"s_add_u32 s{sD}, s{sD}, s{sBq}")
    A(f"v_add_u32 v12, {L_QF}, v14")
    poll([f"buffer_load_dwordx4 v[16:19], v14, {sr(S_WS,4)}, s{sD} offen sc1"], [16, 17, 18, 19], 24, spin)
    A("ds_write_b128 v12, v[16:19]")
    A("s_waitcnt lgkmcnt(0)")
    stamp(8, 'q')
    A("s_barrier")
    poll([f"buffer_load_dword v18, v13, {sr(S_WS,4)}, s{sA} offen offset:96 sc1"], [18], 19, spin)
    A("s_branch L_hw")

    A.lab("L_hb2")
    A("s_barrier")
    A.lab("L_hw")
    A("s_load_dwordx2 s[16:17], s[0:1], 0")
    A("s_load_dwordx2 s[24:25], s[0:1], 32")
    A("s_load_dwordx4 s[20:23], s[0:1], 48")
    A("s_load_dwordx2 s[18:19], s[0:1], 64")
    A("s_load_dwordx4 s[64:67], s[0:1], 72")
    A("s_waitcnt lgkmcnt(0)")
    srd(S_X, 16, 7168)
    srd(S_WO, 24, 4096 * 896)
    srd(S_B2, 64, 896)
    srd(S_OUT, 66, 7168)
    srd(S_W1, 20, 448 * 3584)
    srd(S_B1, 22, 3584)
    srd(S_W2, 18, 1792 * 896)

    def pace():
        A(f"s_waitcnt vmcnt({wpace-1})")
    A("v_and_b32 v12, 31, v0")
    A("v_lshlrev_b32 v12, 3, v12")
    A(f"s_mul_i32 s{sD}, s{sB}, 896")
    A(f"s_lshl_b32 s{sA}, s{sW}, 8")
    A(f"s_add_u32 s{sD}, s{sD}, s{sA}")
    A(f"buffer_load_dwordx2 v[64:65], v12, {sr(S_X,4)}, s{sD} offen")
    A("v_lshlrev_b32 v12, 3, v3")
    A(f"s_lshl_b32 s{sD}, s{sF}, 7")
    A(f"s_lshl_b32 s{sA}, s{sW}, 5")
    A(f"s_add_u32 s{sD}, s{sD}, s{sA}")
    A(f"buffer_load_dwordx2 v[66:67], v12, {sr(S_B1,4)}, s{sD} offen")
    A("v_and_b32 v12, 7, v0")
    A("v_lshlrev_b32 v12, 2, v12")
    A(f"s_lshl_b32 s{sD}, s{sF}, 5")
    A(f"buffer_load_dword v68, v12, {sr(S_B2,4)}, s{sD} offen")
    A("v_lshrrev_b32 v8, 2, v2")
    A("v_lshl_add_u32 v8, v3, 3, v8")
    A("v_and_b32 v9, 3, v2")
    A(f"s_cmp_ge_u32 s{sF}, 28")
    A("s_cbranch_scc1 L_noffn")
    if E > 8:
        A(f"v_mov_b32 v13, {L_FLAG+20}")
        lds_wait(13, 14, 4)
    A("v_lshrrev_b32 v12, 3, v0")
    A("v_mul_u32_u24 v12, 3584, v12")
    A("v_and_b32 v13, 7, v0")
    A("v_lshl_add_u32 v12, v13, 4, v12")
    A(f"s_mul_i32 s{sA}, s{sW}, {14*8*3584}")
    A(f"s_lshl_b32 s{sD}, s{sF}, 7")
    A(f"s_add_u32 s{sA}, s{sA}, s{sD}")
    A(f"s_mul_i32 s{sBq}, s{sW}, {14*1024}")
    for u in range(14):
        pace()
        A(f"s_add_u32 m0, s{sBq}, {L_W1S + u*1024}")
        A(f"s_add_u32 s{sD}, s{sA}, {u*8*3584}")
        if not now: A(f"buffer_load_dwordx4 v12, {sr(S_W1,4)}, s{sD} offen {wf} lds")
    if E:
        A(f"v_mov_b32 v13, {L_FLAG+20}")
        lds_wait(13, 14, 4)
    A("v_lshlrev_b32 v12, 4, v0")
    A(f"s_mul_i32 s{sA}, s{sF}, 57344")
    A(f"s_add_u32 s{sA}, s{sA}, s{sBq}")
    for u in range(14):
        pace()
        A(f"s_add_u32 m0, s{sBq}, {L_W2S + u*1024}")
        A(f"s_add_u32 s{sD}, s{sA}, {u*1024}")
        if not now: A(f"buffer_load_dwordx4 v12, {sr(S_W2,4)}, s{sD} offen {wf} lds")
    A("s_waitcnt vmcnt(0)")
    A(f"v_mov_b32 v12, {L_FLAG+8}")
    lds_inc(12, 13)
    lds_wait(12, 13, 4)
    A("v_lshlrev_b32 v12, 7, v8")
    A("v_lshl_add_u32 v12, v9, 3, v12")
    A(f"s_lshl_b32 s{sA}, s{sW}, 5")
    A(f"v_add_u32 v12, s{sA}, v12")
    for ks in range(14):
        A(f"ds_read_b64_tr_b16 {vr(vW1+4*ks,2)}, v12 offset:{L_W1S + ks*4096}")
        A(f"ds_read_b64_tr_b16 {vr(vW1+4*ks+2,2)}, v12 offset:{L_W1S + ks*4096 + 512}")
        if ks % 6 == 5: A("s_waitcnt lgkmcnt(0)")
    A("s_waitcnt lgkmcnt(0)")
    A("v_mul_u32_u24 v12, 896, v8")
    A("v_lshl_add_u32 v12, v9, 3, v12")
    A(f"s_mul_i32 s{sA}, s{sW}, 224")
    A(f"s_add_u32 s{sA}, s{sA}, {L_W2S}")
    A(f"v_add_u32 v12, s{sA}, v12")
    for j in range(7):
        for ks in range(2):
            r = vW2 + 4 * (2 * j + ks)
            A(f"ds_read_b64_tr_b16 {vr(r,2)}, v12 offset:{ks*28672 + j*32}")
            A(f"ds_read_b64_tr_b16 {vr(r+2,2)}, v12 offset:{ks*28672 + 3584 + j*32}")
        if j % 3 == 2: A("s_waitcnt lgkmcnt(0)")
    A("s_waitcnt lgkmcnt(0)")
    A(f"v_mov_b32 v12, {L_FLAG+12}")
    lds_inc(12, 13)
    lds_wait(12, 13, 4)
    A.lab("L_noffn")
    if E:
        A(f"v_mov_b32 v13, {L_FLAG+20}")
        lds_wait(13, 14, 4)
    A("v_lshlrev_b32 v12, 1, v3")
    A("v_xor_b32 v12, v12, v2")
    A("v_xor_b32 v13, 8, v12")
    A(f"s_cmp_eq_u32 s{sS}, 3")
    A(f"s_cselect_b32 s{sD}, 8, 16")
    A(f"v_cmp_gt_u32 s[20:21], s{sD}, v12")
    A(f"v_cmp_gt_u32 s[22:23], s{sD}, v13")
    A("v_mul_u32_u24 v14, 896, v3")
    A("v_lshl_add_u32 v12, v12, 4, v14")
    A("v_lshl_add_u32 v13, v13, 4, v14")
    A(f"s_lshl_b32 s{sA}, s{sHKV}, 9")
    A(f"s_mul_i32 s{sD}, s{sW}, 160")
    A(f"s_add_u32 s{sA}, s{sA}, s{sD}")
    A(f"s_mul_i32 s{sA}, s{sA}, 896")
    A(f"s_lshl_b32 s{sD}, s{sS}, 8")
    A(f"s_add_u32 s{sA}, s{sA}, s{sD}")
    A(f"s_mul_i32 s{sBq}, s{sW}, {40*1024}")
    for tt in range(40):
        if tt == 8:
            A(f"s_cmp_eq_u32 s{sW}, 3")
            A("s_cbranch_scc1 L_wodone")
        pace()
        if tt % 2 == 0: A(f"s_mov_b64 exec, s[{22 if (tt>>1)&1 else 20}:{23 if (tt>>1)&1 else 21}]")
        A(f"s_add_u32 m0, s{sBq}, {L_WO + tt*1024}")
        A(f"s_add_u32 s{sD}, s{sA}, {tt*4*896}")
        if not now: A(f"buffer_load_dwordx4 v{13 if (tt>>1)&1 else 12}, {sr(S_WO,4)}, s{sD} offen {wf} lds")
    A.lab("L_wodone")
    if touch:
        A("s_mov_b64 exec, 1")
        A(f"buffer_load_dword v14, v3, {sr(S_OUT,4)}, 0 offen")
    A("s_mov_b64 exec, -1")
    A("s_waitcnt vmcnt(0)")
    stamp(9)
    A(f"s_cmp_lg_u32 s{sW}, 3")
    A("s_cbranch_scc1 L_nostat")
    A(f"v_mov_b32 v12, {L_FLAG}")
    lds_wait(12, 13, 4, sleep=4)
    A("v_and_b32 v14, 1, v0")
    A("v_lshlrev_b32 v15, 3, v14")
    A(f"v_add_u32 v12, {L_STAT}, v15")
    for w in range(4): A(f"ds_read_b64 {vr(16+2*w,2)}, v12 offset:{w*16}")
    A("s_waitcnt lgkmcnt(0)")
    A("v_max_f32 v24, v16, v18")
    A("v_max3_f32 v24, v20, v22, v24")
    for w in range(4):
        A(f"v_sub_f32 v{28+w}, v{16+2*w}, v24")
        A(f"v_mul_f32 v{28+w}, s{sC}, v{28+w}")
        A(f"v_exp_f32 v{28+w}, v{28+w}")
    A("s_nop 0")
    A("v_mul_f32 v25, v28, v17")
    for w in range(1, 4): A(f"v_fma_f32 v25, v{28+w}, v{17+2*w}, v25")
    guard([24, 25])
    A(f"s_lshl_b32 s{sD}, s{sLID}, 7")
    A(f"s_add_u32 s{sD}, s{sD}, {WS_ML}")
    A("s_mov_b64 exec, 3")
    A(f"buffer_store_dwordx2 v[24:25], v15, {sr(S_WS,4)}, s{sD} offen sc1")
    A("s_mov_b64 exec, -1")
    for p in range(1, 4): A(f"s_xor_b32 s{20+p}, s{sD}, {p*128}")
    poll([f"buffer_load_dwordx2 {vr(32+2*(p-1),2)}, v15, {sr(S_WS,4)}, s{20+p} offen sc1" for p in range(1, 4)],
         range(32, 38), 12, spin)
    A("v_max_f32 v46, v24, v32")
    A("v_max3_f32 v46, v34, v36, v46")
    Ms = [24, 32, 34, 36]; Ls = [25, 33, 35, 37]
    for k in range(4):
        A(f"v_sub_f32 v{48+k}, v{Ms[k]}, v46")
        A(f"v_mul_f32 v{48+k}, s{sC}, v{48+k}")
        A(f"v_exp_f32 v{48+k}, v{48+k}")
    A("s_nop 0")
    A(f"v_mul_f32 v47, v48, v{Ls[0]}")
    for k in range(1, 4): A(f"v_fma_f32 v47, v{48+k}, v{Ls[k]}, v47")
    A("v_rcp_f32 v52, v47")
    A("s_nop 0")
    A("v_fma_f32 v53, -v47, v52, 1.0")
    A("v_fma_f32 v52, v53, v52, v52")
    for w in range(4):
        A(f"v_sub_f32 v{28+w}, v{16+2*w}, v46")
        A(f"v_mul_f32 v{28+w}, s{sC}, v{28+w}")
        A(f"v_exp_f32 v{28+w}, v{28+w}")
    A(f"v_mul_f32 v53, s{sC}, v46")
    A("v_sub_f32 v53, 0, v53")
    A("v_lshlrev_b32 v12, 2, v14")
    A(f"v_add_u32 v12, {L_F}, v12")
    for w in range(4): A(f"ds_write_b32 v12, v{28+w} offset:{w*8}")
    A("ds_write_b32 v12, v53 offset:32")
    A("ds_write_b32 v12, v52 offset:40")
    A(f"v_mov_b32 v12, {L_FLAG+4}")
    lds_inc(12, 13)
    A("s_waitcnt lgkmcnt(0)")
    A.lab("L_nostat")
    stamp(10)
    A("v_cmp_gt_u32 vcc, 56, v0")
    A("v_mov_b32 v11, 1.0")
    A("v_lshlrev_b32 v70, 16, v64")
    A("v_cndmask_b32 v11, 0, v11, vcc")
    A("v_and_b32 v71, 0xffff0000, v64")
    A("v_lshlrev_b32 v72, 16, v65")
    A("v_and_b32 v73, 0xffff0000, v65")
    A("v_lshlrev_b32 v74, 16, v66")
    A("v_and_b32 v75, 0xffff0000, v66")
    A("v_lshlrev_b32 v76, 16, v67")
    A("v_and_b32 v77, 0xffff0000, v67")
    A("v_lshlrev_b32 v78, 16, v68")
    A("v_and_b32 v79, 0xffff0000, v68")
    class skipdry:
        def __enter__(self):
            if dry:
                self.lab = A.newlab("L_sk")
                A(f"s_cmp_lg_u32 s{sDRY}, 0")
                A(f"s_cbranch_scc1 {self.lab}")
        def __exit__(self, *a):
            if dry: A.lab(self.lab)
    def tbar():
        with skipdry(): A("s_barrier")
    if dry:
        A(f"s_cmp_eq_u32 s{sW}, 0")
        A(f"s_cselect_b32 s{sDRY}, 1, 0")
    A.lab("L_tail")
    A(f"v_mov_b32 v12, {L_FLAG+4}")
    with skipdry():
        lds_wait(12, 13, 1, sleep=8)
    A(f"s_lshr_b32 s{sA}, s{sW}, 1")
    A(f"s_lshl_b32 s{sA}, s{sA}, 2")
    A(f"s_add_u32 s{sA}, s{sA}, {L_F}")
    A(f"v_mov_b32 v12, s{sA}")
    A("ds_read_b32 v64, v12 offset:40")
    A("v_and_b32 v14, 31, v0")
    A("v_lshlrev_b32 v14, 4, v14")
    A(f"s_lshl_b32 s{sA}, s{sW}, 9")
    A("v_lshrrev_b32 v13, 5, v0")
    A("v_lshl_add_u32 v12, v13, 12, v14")
    A(f"s_add_u32 s{sD}, s{sA}, {L_PART}")
    A(f"v_add_u32 v12, s{sD}, v12")
    A(f"s_lshl_b32 s{sD}, s{sLID}, 11")
    A(f"s_add_u32 s{sD}, s{sD}, {WS_OB1}")
    A(f"s_add_u32 s{sD}, s{sD}, s{sA}")
    A(f"s_and_b32 s{sBq}, s{sLID}, 3")
    A(f"s_xor_b32 s20, s{sBq}, 1")
    A(f"s_xor_b32 s21, s{sBq}, 2")
    A(f"s_xor_b32 s22, s{sBq}, 3")
    for k in range(3): A(f"s_lshl_b32 s{20+k}, s{20+k}, 11")
    A("v_cmp_eq_u32 vcc, 0, v13")
    A("v_mov_b32 v16, s20")
    A("v_mov_b32 v17, s21")
    A("v_mov_b32 v18, s22")
    A("v_cndmask_b32 v16, v18, v16, vcc")
    A("v_add_u32 v65, v16, v14")
    A("v_add_u32 v66, v17, v14")
    A(f"s_andn2_b32 s{sBq}, s{sD}, 0x1800")
    A("v_lshrrev_b32 v15, 1, v14")
    A(f"s_lshl_b32 s{sA}, s{sW}, 8")
    A(f"s_add_u32 s{sA}, s{sA}, {L_OBF}")
    A(f"v_add_u32 v15, s{sA}, v15")
    A("s_waitcnt lgkmcnt(0)")
    tbar()
    stamp(1)
    A("ds_read_b128 v[16:19], v12")
    A("ds_read_b128 v[20:23], v12 offset:2048")
    A("s_waitcnt lgkmcnt(0)")
    for k in range(4): A(f"v_add_f32 v{16+k}, v{16+k}, v{20+k}")
    for k in range(4): A(f"v_mov_b32 v{20+k}, v{16+k}")
    A("s_nop 0")
    for k in range(4): A(f"v_permlane32_swap_b32 v{16+k}, v{20+k}")
    A("s_nop 0")
    for k in range(4): A(f"v_add_f32 v{24+k}, v{16+k}, v{20+k}")
    guard(range(24, 28))
    with skipdry():
        A("s_mov_b32 exec_hi, 0")
        A(f"buffer_store_dwordx4 v[24:27], v14, {sr(S_WS,4)}, s{sD} offen sc1")
        A("s_mov_b64 exec, -1")

    A.lab("L_t3pre")
    A("v_lshrrev_b32 v4, 2, v2")
    A("v_and_b32 v5, 1, v3")
    A("v_lshl_or_b32 v5, v5, 2, v4")
    A(f"v_xor_b32 v5, s{sWAVE}, v5")
    A("v_lshlrev_b32 v5, 5, v5")
    A("v_and_b32 v6, 3, v2")
    A("v_lshl_add_u32 v5, v6, 3, v5")
    A("v_lshl_add_u32 v4, v3, 3, v4")
    A("v_lshl_add_u32 v5, v4, 8, v5")
    A("v_add_u32 v6, 0x10000, v5")
    for ks in range(16):
        b = 5 if ks < 8 else 6
        A(f"ds_read_b64_tr_b16 {vr(vY+4*ks,2)}, v{b} offset:{(ks%8)*8192}")
        A(f"ds_read_b64_tr_b16 {vr(vY+4*ks+2,2)}, v{b} offset:{(ks%8)*8192 + 1024}")
        if ks % 6 == 5: A("s_waitcnt lgkmcnt(2)")
    A("v_lshlrev_b32 v7, 4, v3")
    A(f"v_add_u32 v4, {L_OBF}, v7")
    A(f"s_lshl_b32 s{sT1}, s{sLID}, 9")
    A(f"s_add_u32 s{sT1}, s{sT1}, {WS_OB2}")
    A(f"s_lshl_b32 s{sT2}, s{sWAVE}, 6")
    A(f"s_add_u32 s{sT1}, s{sT1}, s{sT2}")
    A("s_mov_b32 s26, 0x00010001")
    A("s_mov_b32 s27, 0x00010001")
    A(f"s_cmp_ge_u32 s{sWAVE}, 4")
    A("s_cbranch_scc1 L_t3")
    for k in range(4): A(f"v_mov_b32 v{vX+4+k}, 0")
    if ack: A("s_waitcnt vmcnt(0)")
    with skipdry():
        poll([f"buffer_load_dwordx4 {vr(vX,4)}, v65, {sr(S_WS,4)}, s{sBq} offen sc1",
              "s_mov_b32 exec_hi, 0",
              f"buffer_load_dwordx4 {vr(vX+4,4)}, v66, {sr(S_WS,4)}, s{sBq} offen sc1",
              "s_mov_b64 exec, -1"], range(vX, vX + 8), 12, spin)
    stamp(2)
    for k in range(4): A(f"v_add_f32 v{16+k}, v{vX+k}, v{vX+4+k}")
    for k in range(4): A(f"v_mov_b32 v{20+k}, v{16+k}")
    A("s_nop 0")
    for k in range(4): A(f"v_permlane32_swap_b32 v{16+k}, v{20+k}")
    for k in range(4): A(f"v_add_f32 v{24+k}, v{24+k}, v{16+k}")
    for k in range(4): A(f"v_add_f32 v{24+k}, v{24+k}, v{20+k}")
    for k in range(4): A(f"v_mul_f32 v{24+k}, v{24+k}, v64")
    A("v_cvt_pk_bf16_f32 v24, v24, v25")
    A("v_cvt_pk_bf16_f32 v25, v26, v27")
    A("ds_write_b64 v15, v[24:25]")
    A.lab("L_t3")
    A("s_waitcnt lgkmcnt(0)")
    tbar()
    for ks in range(8): A(f"ds_read_b128 {vr(vX+4*ks,4)}, v4 offset:{ks*64}")
    for ks in range(16):
        A(f"s_waitcnt lgkmcnt({min(7, 15-ks)})")
        c = "0" if ks == 0 else "v[16:19]"
        A(f"v_mfma_f32_16x16x32_bf16 v[16:19], {vr(vY+4*ks,4)}, {vr(vX+4*(ks%8),4)}, {c}")
        if ks < 8: A(f"ds_read_b128 {vr(vX+4*ks,4)}, v4 offset:{(ks+8)*64}")
    A("s_mov_b64 exec, s[26:27]")
    A("s_nop 6")
    guard(range(16, 20))
    with skipdry():
        A(f"buffer_store_dwordx4 v[16:19], v7, {sr(S_WS,4)}, s{sT1} offen sc1")
    A("s_mov_b64 exec, -1")
    stamp(8, 't')
    A(f"s_cmp_ge_u32 s{sWAVE}, 4")
    A("s_cbranch_scc1 L_send")
    A(f"s_cmp_ge_u32 s{sF}, 28")
    A("s_cbranch_scc1 L_fin")
    A("v_lshl_add_u32 v12, v13, 13, v14")
    A(f"s_lshl_b32 s{sD}, s{sB}, 5")
    A(f"s_add_u32 s{sD}, s{sD}, s{sW}")
    A(f"s_lshl_b32 s{sD}, s{sD}, 9")
    A(f"s_add_u32 s{sD}, s{sD}, {WS_OB2}")
    A(f"s_add_u32 s{sBq}, s{sD}, 4096")
    A("v_lshrrev_b32 v15, 1, v14")
    A(f"s_lshl_b32 s{sA}, s{sW}, 8")
    A(f"s_add_u32 s{sA}, s{sA}, {L_H}")
    A(f"v_add_u32 v15, s{sA}, v15")
    A("v_lshlrev_b32 v10, 4, v0")
    A(f"s_lshl_b32 s{sA}, s{sW}, 10")
    A(f"s_add_u32 s{sA}, s{sA}, {L_XN2}")
    A(f"v_add_u32 v4, s{sA}, v10")
    A(f"v_add_u32 v10, {L_H}, v10")
    A(f"v_add_u32 v6, {L_R2}, v7")
    A(f"v_add_u32 v5, s{sA}, v7")
    A("v_lshl_add_u32 v8, v2, 6, v7")
    A("v_lshlrev_b32 v7, 3, v3")
    A(f"s_lshl_b32 s{sA}, s{sW}, 5")
    A(f"s_add_u32 s{sA}, s{sA}, {L_R2}")
    A(f"v_add_u32 v7, s{sA}, v7")
    for k in range(56): A(f"v_mov_b32 v{vY+k}, 0")
    if ack: A("s_waitcnt vmcnt(0)")
    with skipdry():
        poll([f"buffer_load_dwordx4 {vr(vX,4)}, v12, {sr(S_WS,4)}, s{sD} offen sc1",
              f"buffer_load_dwordx4 {vr(vX+4,4)}, v12, {sr(S_WS,4)}, s{sD} offen offset:2048 sc1",
              f"buffer_load_dwordx4 {vr(vX+8,4)}, v12, {sr(S_WS,4)}, s{sBq} offen sc1",
              f"buffer_load_dwordx4 {vr(vX+12,4)}, v12, {sr(S_WS,4)}, s{sBq} offen offset:2048 sc1"],
             range(vX, vX + 16), 16, spin)
    stamp(3)
    for k in range(4): A(f"v_add_f32 v{16+k}, v{vX+k}, v{vX+4+k}")
    for k in range(4): A(f"v_add_f32 v{20+k}, v{vX+8+k}, v{vX+12+k}")
    for k in range(4): A(f"v_add_f32 v{16+k}, v{16+k}, v{20+k}")
    for k in range(4): A(f"v_mov_b32 v{20+k}, v{16+k}")
    A("s_nop 0")
    for k in range(4): A(f"v_permlane32_swap_b32 v{16+k}, v{20+k}")
    A("s_nop 0")
    for k in range(4): A(f"v_add_f32 v{16+k}, v{16+k}, v{20+k}")
    A("v_cvt_pk_bf16_f32 v20, v16, v17")
    A("v_cvt_pk_bf16_f32 v21, v18, v19")
    A("v_lshlrev_b32 v16, 16, v20")
    A("v_and_b32 v17, 0xffff0000, v20")
    A("v_lshlrev_b32 v18, 16, v21")
    A("v_and_b32 v19, 0xffff0000, v21")
    for k in range(4): A(f"v_add_f32 v{16+k}, v{16+k}, v{70+k}")
    A("v_cvt_pk_bf16_f32 v20, v16, v17")
    A("v_cvt_pk_bf16_f32 v21, v18, v19")
    A("ds_write_b64 v15, v[20:21]")
    for k in range(4): A(f"v_mov_b32 v{16+k}, 0")
    A("s_waitcnt lgkmcnt(0)")
    tbar()
    A("s_mov_b32 exec_hi, 0x00ffffff")
    A("ds_read_b128 v[16:19], v10")
    A("s_mov_b64 exec, -1")
    A("s_waitcnt lgkmcnt(0)")
    layernorm(16, 8, 20, 32, 28, 11, True)
    A("ds_write_b128 v4, v[16:19]")
    A("s_waitcnt lgkmcnt(0)")
    stamp(5, 't')
    for ks in range(8): A(f"ds_read_b128 {vr(vX+4*ks,4)}, v5 offset:{ks*64}")
    for ks in range(14):
        nout = min(14, ks + 8) - ks - 1
        A(f"s_waitcnt lgkmcnt({nout})")
        c = "0" if ks == 0 else "v[16:19]"
        A(f"v_mfma_f32_16x16x32_bf16 v[16:19], {vr(vW1+4*ks,4)}, {vr(vX+4*(ks%8),4)}, {c}")
        if ks + 8 < 14: A(f"ds_read_b128 {vr(vX+4*ks,4)}, v5 offset:{(ks+8)*64}")
    A(f"s_lshl_b32 s{sD}, s{sB}, 5")
    A(f"s_add_u32 s{sD}, s{sD}, s{sF}")
    A(f"s_lshl_b32 s{sD}, s{sD}, 11")
    A(f"s_add_u32 s{sD}, s{sD}, {WS_OB3}")
    A(f"s_mul_i32 s{sA}, s{sW}, 448")
    A(f"s_add_u32 s{sD}, s{sD}, s{sA}")
    A("s_mov_b32 s24, 0x007f007f")
    A("s_mov_b32 s25, 0x007f007f")
    A("v_cvt_pk_bf16_f32 v20, v16, v17")
    A("v_cvt_pk_bf16_f32 v21, v18, v19")
    A("v_lshlrev_b32 v16, 16, v20")
    A("v_and_b32 v17, 0xffff0000, v20")
    A("v_lshlrev_b32 v18, 16, v21")
    A("v_and_b32 v19, 0xffff0000, v21")
    for k in range(4): A(f"v_add_f32 v{16+k}, v{16+k}, v{74+k}")
    A("v_cvt_pk_bf16_f32 v20, v16, v17")
    A("v_cvt_pk_bf16_f32 v21, v18, v19")
    A("v_lshlrev_b32 v16, 16, v20")
    A("v_and_b32 v17, 0xffff0000, v20")
    A("v_lshlrev_b32 v18, 16, v21")
    A("v_and_b32 v19, 0xffff0000, v21")
    for k in range(4): A(f"v_max_f32 v{16+k}, 0, v{16+k}")
    for k in range(4): A(f"v_mul_f32 v{16+k}, v{16+k}, v{16+k}")
    A("v_cvt_pk_bf16_f32 v20, v16, v17")
    A("v_cvt_pk_bf16_f32 v21, v18, v19")
    A("ds_write_b64 v7, v[20:21]")
    A("s_waitcnt lgkmcnt(0)")
    tbar()
    stamp(6, 't')
    for j in range(7):
        A(f"s_lshl_b64 exec, s[26:27], {j}")
        for ks in range(2):
            A(f"ds_read_b128 {vr(vY+4*(2*j+ks),4)}, v6 offset:{ks*64}")
    A("s_mov_b64 exec, -1")
    for q in range(14):
        A(f"s_waitcnt lgkmcnt({13-q})")
        c = "0" if q == 0 else "v[16:19]"
        A(f"v_mfma_f32_16x16x32_bf16 v[16:19], {vr(vW2+4*q,4)}, {vr(vY+4*q,4)}, {c}")
    A("s_mov_b64 exec, s[24:25]")
    A("s_nop 6")
    guard(range(16, 20))
    with skipdry():
        A(f"buffer_store_dwordx4 v[16:19], v8, {sr(S_WS,4)}, s{sD} offen sc1")
    A("s_mov_b64 exec, -1")
    stamp(7, 't')
    A(f"s_cmp_lg_u32 s{sW}, 0")
    A("s_cbranch_scc1 L_fin")
    A("v_lshrrev_b32 v12, 3, v0")
    A("v_lshlrev_b32 v12, 11, v12")
    A("v_and_b32 v13, 7, v0")
    A("v_lshl_add_u32 v12, v13, 3, v12")
    A(f"s_lshl_b32 s{sD}, s{sB}, 16")
    A(f"s_add_u32 s{sD}, s{sD}, {WS_OB3}")
    A(f"s_lshl_b32 s{sA}, s{sF}, 6")
    A(f"s_add_u32 s{sD}, s{sD}, s{sA}")
    for k in range(4): A(f"s_add_u32 s{20+k}, s{sD}, {k*16384}")
    A(f"v_mov_b32 v{vX+6}, 0")
    A(f"v_mov_b32 v{vX+7}, 0")
    A("v_lshlrev_b32 v13, 2, v13")
    A(f"s_lshl_b32 s{sA}, s{sF}, 5")
    A(f"s_add_u32 s{sBq}, s{sA}, {L_H}")
    A(f"v_add_u32 v14, s{sBq}, v13")
    A("ds_read_b32 v28, v14")
    A(f"s_mul_i32 s{sD}, s{sB}, 896")
    A(f"s_add_u32 s{sD}, s{sD}, s{sA}")
    A("s_waitcnt lgkmcnt(0)")
    A("v_lshlrev_b32 v29, 16, v28")
    A("v_and_b32 v28, 0xffff0000, v28")
    if ack: A("s_waitcnt vmcnt(0)")
    loads = [f"buffer_load_dwordx2 {vr(vX+2*k,2)}, v12, {sr(S_WS,4)}, s{20+k} offen sc1" for k in range(3)]
    loads += ["s_mov_b32 exec_hi, 0",
              f"buffer_load_dwordx2 {vr(vX+6,2)}, v12, {sr(S_WS,4)}, s23 offen sc1",
              "s_mov_b64 exec, -1"]
    with skipdry():
        poll(loads, range(vX, vX + 8), 15, spin)
    stamp(4)
    A(f"v_add_f32 v16, v{vX}, v{vX+2}")
    A(f"v_add_f32 v18, v{vX+1}, v{vX+3}")
    A(f"v_add_f32 v17, v{vX+4}, v{vX+6}")
    A(f"v_add_f32 v19, v{vX+5}, v{vX+7}")
    A("v_add_f32 v16, v16, v17")
    A("v_add_f32 v18, v18, v19")
    A("s_nop 0")
    A(f"v_add_f32_dpp v16, v16, v16 row_ror:8 {DPPM}")
    A(f"v_add_f32_dpp v18, v18, v18 row_ror:8 {DPPM}")
    for sw in ("v_permlane16_swap_b32", "v_permlane32_swap_b32"):
        A("v_mov_b32 v17, v16")
        A("v_mov_b32 v19, v18")
        A("s_nop 1")
        A(f"{sw} v16, v17")
        A(f"{sw} v18, v19")
        A("s_nop 1")
        A("v_add_f32 v16, v16, v17")
        A("v_add_f32 v18, v18, v19")
    A("v_cvt_pk_bf16_f32 v16, v16, v18")
    A("v_lshlrev_b32 v17, 16, v16")
    A("v_and_b32 v16, 0xffff0000, v16")
    A("v_add_f32 v17, v17, v78")
    A("v_add_f32 v16, v16, v79")
    A("v_cvt_pk_bf16_f32 v16, v17, v16")
    A("v_lshlrev_b32 v17, 16, v16")
    A("v_and_b32 v16, 0xffff0000, v16")
    A("v_add_f32 v17, v17, v29")
    A("v_add_f32 v16, v16, v28")
    A("v_cvt_pk_bf16_f32 v16, v17, v16")
    A("s_mov_b64 exec, 0xff")
    with skipdry():
        A(f"buffer_store_dword v16, v13, {sr(S_OUT,4)}, s{sD} offen")
    A("s_mov_b64 exec, -1")
    A.lab("L_fin")
    if dry:
        A(f"s_cmp_eq_u32 s{sDRY}, 0")
        A("s_cbranch_scc1 L_fin2")
        A(f"s_mov_b32 s{sDRY}, 0")
        A("s_waitcnt lgkmcnt(0)")
        A("s_branch L_tail")
        A.lab("L_fin2")
    if stamps:
        A("s_waitcnt vmcnt(0)")
        stamp(11)
        if dbgt:
            A("s_waitcnt lgkmcnt(0)")
            A(f"s_cmp_lg_u32 s2, {77 if dbgt == 1 else 999}")
            A("s_cbranch_scc1 L_end")
            A(f"s_cmp_lg_u32 s{sWAVE}, 0")
            A("s_cbranch_scc1 L_end")
            A("v_mov_b32 v20, 0")
            A("s_mov_b64 exec, 1")
            for w_, k in ((1, 9), (2, 1), (3, 2), (5, 8), (6, 3), (7, 5), (9, 6), (10, 7), (11, 4), (12, 11)):
                A(f"s_sub_u32 s{sT1}, s{slot(k)}, s{slot(0)}")
                A(f"v_mov_b32 v{22+w_}, s{sT1}")
                A(f"buffer_store_dword v{22+w_}, v20, {sr(S_DBG,4)}, 0 offen offset:{4*w_}")
            A("s_endpgm")
        dump_stamps(12)
        A("s_endpgm")
    A.lab("L_send")
    if stamps and dbgt == 2:
        A("s_waitcnt lgkmcnt(0)")
        A("s_cmp_lg_u32 s2, 77")
        A("s_cbranch_scc1 L_end")
        A(f"s_cmp_lg_u32 s{sWAVE}, 4")
        A("s_cbranch_scc1 L_end")
        A("s_load_dwordx2 s[84:85], s[0:1], 88")
        A("s_waitcnt lgkmcnt(0)")
        A("s_mov_b32 s86, 256")
        A("s_mov_b32 s87, 0x20000")
        A("v_mov_b32 v20, 0")
        A("s_mov_b64 exec, 1")
        for w_, k in ((1, 5), (2, 6), (3, 4), (5, 1), (6, 2), (7, 9), (9, 10), (10, 7), (11, 3), (12, 8)):
            A(f"s_sub_u32 s{sT1}, s{slot(k)}, s{slot(0)}")
            A(f"v_mov_b32 v{22+w_}, s{sT1}")
            A(f"buffer_store_dword v{22+w_}, v20, {sr(S_DBG,4)}, 0 offen offset:{4*w_}")
    if stamps and not dbgt:
        dump_stamps(11)
    A.lab("L_end")
    A("s_endpgm")

    tail = []
    tail.append('.section .rodata,"a"')
    tail.append(".p2align 6")
    tail.append(f".amdhsa_kernel {KN}")
    tail.append("  .amdhsa_next_free_vgpr 256")
    tail.append("  .amdhsa_next_free_sgpr 102")
    tail.append("  .amdhsa_accum_offset 256")
    tail.append("  .amdhsa_group_segment_fixed_size 0")
    tail.append("  .amdhsa_kernarg_size 104")
    tail.append("  .amdhsa_user_sgpr_count 2")
    tail.append("  .amdhsa_user_sgpr_kernarg_segment_ptr 1")
    tail.append("  .amdhsa_system_sgpr_workgroup_id_x 1")
    tail.append("  .amdhsa_float_denorm_mode_32 3")
    tail.append(".end_amdhsa_kernel")
    return "\n".join(hdr + A.L + tail) + "\n"

if __name__ == "__main__":
    kw = eval("dict(%s)" % (sys.argv[2] if len(sys.argv) > 2 else ""))
    open(sys.argv[1], "w").write(gen(**kw))
```
